```python
import torch

def _softmax(x, axis=-1):
    return torch.softmax(x, dim=axis)
def _gelu(x):
    return torch.nn.functional.gelu(x, approximate="tanh")
def _silu(x):
    return torch.nn.functional.silu(x)
def _sigmoid(x):
    return torch.sigmoid(x)
def _layernorm(x, axis=-1, eps=1e-5):
    m = x.mean(dim=axis, keepdim=True)
    v = x.var(dim=axis, keepdim=True, unbiased=False)
    return (x - m) / torch.sqrt(v + eps)
def _scatter_add(tgt, idx, src, axis=0):
    return tgt.clone().index_add_(axis, idx, src)
def _segment_sum(src, seg, n):
    out = torch.zeros((n,) + src.shape[1:], dtype=src.dtype)
    return out.index_add_(0, seg, src)
def _pad(x, pw):
    flat = tuple(v for pair in reversed(pw) for v in pair)
    return torch.nn.functional.pad(x, flat)

kernel_name = 'concat_heads__gqa_block_cached__gqa_block_cached__near_ridge'

def setup_inputs():

    _w = (lambda a: (lambda t: t.to(torch.bfloat16) if t.is_floating_point() else t)(torch.as_tensor(a)))
    def _A_setup():
        B, Sq, D = 8, 64, 512
        Hq, Hkv, Sk, Dh = 32, 8, 2048, 128
        assert Hq % Hkv == 0, (Hq, Hkv)
        return {
            "x": _w((lambda *s: torch.randn(*s, dtype=torch.bfloat16) * 0.8)(B, Sq, D)),
            "k_cache": _w((lambda *s: torch.randn(*s, dtype=torch.bfloat16) * 0.8)(B, Hkv, Sk, Dh)),
            "v_cache": _w((lambda *s: torch.randn(*s, dtype=torch.bfloat16) * 0.05)(B, Hkv, Sk, Dh)),
            "wq": _w((lambda *s: torch.randn(*s, dtype=torch.bfloat16) * 0.8)(D, Hq * Dh) * (D ** -0.5)),
            "wo": _w((lambda *s: torch.randn(*s, dtype=torch.bfloat16) * 0.05)(Hq * Dh, D) * ((Hq * Dh) ** -0.5)),
        }
    _A_in = _A_setup()

    def _B_setup():
        B, Sq, D = 8, 64, 512
        Hq, Hkv, Sk, Dh = 32, 8, 2048, 128
        assert Hq % Hkv == 0, (Hq, Hkv)
        return {
            "x": _w((lambda *s: torch.randn(*s, dtype=torch.bfloat16) * 0.8)(B, Sq, D)),
            "k_cache": _w((lambda *s: torch.randn(*s, dtype=torch.bfloat16) * 0.8)(B, Hkv, Sk, Dh)),
            "v_cache": _w((lambda *s: torch.randn(*s, dtype=torch.bfloat16) * 0.05)(B, Hkv, Sk, Dh)),
            "wq": _w((lambda *s: torch.randn(*s, dtype=torch.bfloat16) * 0.8)(D, Hq * Dh) * (D ** -0.5)),
            "wo": _w((lambda *s: torch.randn(*s, dtype=torch.bfloat16) * 0.05)(Hq * Dh, D) * ((Hq * Dh) ** -0.5)),
        }
    _B_in = _B_setup()

    return {
        "A_x": _A_in["x"],
        "A_k_cache": _A_in["k_cache"],
        "A_v_cache": _A_in["v_cache"],
        "A_wq": _A_in["wq"],
        "A_wo": _A_in["wo"],
        "B_x": _B_in["x"],
        "B_k_cache": _B_in["k_cache"],
        "B_v_cache": _B_in["v_cache"],
        "B_wq": _B_in["wq"],
        "B_wo": _B_in["wo"],
    }

def reference(A_x, A_k_cache, A_v_cache, A_wq, A_wo, B_x, B_k_cache, B_v_cache, B_wq, B_wo):
    def _A_ref(x, k_cache, v_cache, wq, wo):
        B, Sq, D = x.shape
        Hq, Dh = 32, 128
        Hkv = k_cache.shape[1]
        rep = Hq // Hkv
        q = (lambda x, *d: x.permute(*d))((x @ wq).reshape(B, Sq, Hq, Dh), 0, 2, 1, 3)
        k = (lambda x, n, axis: torch.repeat_interleave(x, n, dim=axis))(k_cache, rep, axis=1)
        v = (lambda x, n, axis: torch.repeat_interleave(x, n, dim=axis))(v_cache, rep, axis=1)
        scores = torch.einsum("bhqd,bhkd->bhqk", q, k) * (Dh ** -0.5)
        p = _softmax(scores, axis=-1)
        o = torch.einsum("bhqk,bhkd->bhqd", p, v)
        return (lambda x, *d: x.permute(*d))(o, 0, 2, 1, 3).reshape(B, Sq, Hq * Dh) @ wo

    def _B_ref(x, k_cache, v_cache, wq, wo):
        B, Sq, D = x.shape
        Hq, Dh = 32, 128
        Hkv = k_cache.shape[1]
        rep = Hq // Hkv
        q = (lambda x, *d: x.permute(*d))((x @ wq).reshape(B, Sq, Hq, Dh), 0, 2, 1, 3)
        k = (lambda x, n, axis: torch.repeat_interleave(x, n, dim=axis))(k_cache, rep, axis=1)
        v = (lambda x, n, axis: torch.repeat_interleave(x, n, dim=axis))(v_cache, rep, axis=1)
        scores = torch.einsum("bhqd,bhkd->bhqk", q, k) * (Dh ** -0.5)
        p = _softmax(scores, axis=-1)
        o = torch.einsum("bhqk,bhkd->bhqd", p, v)
        return (lambda x, *d: x.permute(*d))(o, 0, 2, 1, 3).reshape(B, Sq, Hq * Dh) @ wo

    a = _A_ref(A_x, A_k_cache, A_v_cache, A_wq, A_wo)
    b = _B_ref(B_x, B_k_cache, B_v_cache, B_wq, B_wo)
    return torch.concatenate([a, b], axis=-1)
```

```python
import re
VOP12 = ('v_exp_f32', 'v_add_f32', 'v_mul_f32', 'v_sub_f32', 'v_mov_b32', 'v_max_f32', 'v_rcp_f32', 'v_add_u32', 'v_and_b32',
         'v_lshlrev_b32', 'v_lshrrev_b32', 'v_xor_b32', 'v_or_b32', 'v_subrev_f32', 'v_fmac_f32', 'v_min_f32', 'v_sub_u32', 'v_subrev_u32', 'v_max_u32')
INL = re.compile(r'^-?(\d+|0\.5|1\.0|2\.0|4\.0)$')
def has_literal(ops):
    for o in ops:
        o = o.strip()
        if re.match(r'^-?0x[0-9a-fA-F]+$', o) or re.match(r'^-?\d+$', o):
            v = int(o, 0)
            if not (-16 <= v <= 64): return True
        if o.startswith('L_'): return True
    return False
def size(line):
    t = line.split(';')[0].strip()
    if not t or t.endswith(':') or t.startswith('.'): return 0
    p = t.split(None, 1); op = p[0]
    ops = p[1].split(',') if len(p) > 1 else []
    if op in VOP12 or op.endswith('_e32') or op in ('v_readfirstlane_b32', 'v_permlane32_swap_b32', 'v_permlane16_swap_b32', 'v_nop', 'v_accvgpr_mov_b32', 'v_dot2c_f32_bf16'):
        return 8 if has_literal(ops) else 4
    if op.startswith('v_cmp'):
        return (8 if has_literal(ops) else 4) if ops[0].strip() == 'vcc' else 8
    if op.startswith('v_cndmask'):
        return 4 if ops[-1].strip() == 'vcc' else 8
    if op.startswith('v_') or op.startswith('ds_') or op.startswith('buffer_') or op.startswith('global_') or op.startswith('s_load') or op.startswith('s_mem'):
        return 8
    if op in ('s_waitcnt', 's_barrier', 's_nop', 's_endpgm', 's_branch', 's_setprio', 's_sleep') or op.startswith('s_cbranch') or op.startswith('s_movk') or op.startswith('s_addk') or op.startswith('s_cmpk') or op.startswith('s_getreg'):
        return 4
    if op.startswith('s_'):
        return 8 if has_literal(ops) else 4
    raise ValueError(line)
def promotable(line):
    t = line.split(';')[0].strip(); op = t.split(None, 1)[0]
    return op in VOP12 and size(line) == 4
def align8(lines, pad=False):
    out = list(lines); pos = 0; run = []
    bad = 0
    res = []
    for l in lines:
        s = size(l)
        if s == 8 and pos % 8 == 4:
            fixed = False
            for j in reversed(run):
                if j is not None and promotable(res[j]):
                    t = res[j].strip(); op, rest = t.split(None, 1)
                    k = run.index(j)
                    if k % 2 == 0:
                        res[j] = f"{op}_e64 {rest}"; pos += 4; fixed = True; break
            if not fixed:
                if pad:
                    res.append("s_nop 0"); pos += 4
                else:
                    bad += 1
        if s == 8: run = [] if pos % 8 == 0 else [None]
        res.append(l)
        if s == 4: run.append(len(res) - 1)
        pos += s
        run = [r for r in run]
        if None in run[1:]: raise Exception
    return res, bad
```

```python
KNAME = "concat_heads__gqa_block_cached__gqa_block_cached__near_ridge_kernel"

def header(launch_lines):
    s = ""
    for l in launch_lines:
        s += "; " + l + "\n"
    s += '.amdgcn_target "amdgcn-amd-amdhsa--gfx950"\n.text\n'
    return s

def kernel_begin(name):
    return f".globl {name}\n.p2align 8\n.type {name},@function\n{name}:\n"

def descriptor(name, vgpr=512, sgpr=102, accum=256):
    return f""".amdhsa_kernel {name}
  .amdhsa_next_free_vgpr {vgpr}
  .amdhsa_next_free_sgpr {sgpr}
  .amdhsa_accum_offset {accum}
  .amdhsa_group_segment_fixed_size 0
  .amdhsa_kernarg_size 104
  .amdhsa_user_sgpr_count 2
  .amdhsa_user_sgpr_kernarg_segment_ptr 1
  .amdhsa_system_sgpr_workgroup_id_x 1
  .amdhsa_float_denorm_mode_32 3
.end_amdhsa_kernel
"""

def rodata(descs):
    s = '.section .rodata,"a"\n'
    for d in descs:
        s += ".p2align 6\n" + d
    return s
```

```python
import re

REG = re.compile(r'^(-?)(?:abs\()?([vas])(?:(\d+)|\[(\d+):(\d+)\])\)?$')

def regs(tok):
    tok = tok.strip()
    m = REG.match(tok)
    if m:
        k = m.group(2)
        if m.group(3) is not None:
            return [(k, int(m.group(3)))]
        return [(k, i) for i in range(int(m.group(4)), int(m.group(5)) + 1)]
    if tok == 'vcc':
        return [('s', 'vcc')]
    if tok == 'm0':
        return [('s', 'm0')]
    if tok == 'exec':
        return [('s', 'exec')]
    return []

TRANS = ('v_exp_f32', 'v_log_f32', 'v_rcp_f32', 'v_rsq_f32', 'v_sqrt_f32')

class I:
    def __init__(self, text):
        self.text = text
        t = text.split(';')[0].strip()
        self.label = t.endswith(':')
        parts = t.split(None, 1)
        self.op = parts[0] if parts else ''
        rest = parts[1] if len(parts) > 1 else ''
        rest = re.sub(r'op_sel(_hi)?:\[[^\]]*\]', '', rest)
        ops = [o.strip() for o in rest.split(',')] if rest else []
        self.mods = ''
        if ops:
            sp = ops[-1].split(None, 1)
            ops[-1] = sp[0]
            self.mods = sp[1] if len(sp) > 1 else ''
        self.ops = ops
        op = self.op
        self.kind = 'other'
        self.w = []; self.r = []
        self.srcc = []; self.ab = []
        R = lambda i: regs(ops[i]) if i < len(ops) else []
        if op.startswith('v_mfma'):
            self.kind = 'mfma'
            self.w = R(0); self.ab = R(1) + R(2); self.srcc = R(3); self.r = self.ab + self.srcc
            self.passes = 8 if '32x32x16' in op else 4
        elif op.startswith('v_smfmac'):
            self.kind = 'mfma'
            self.w = R(0); self.ab = R(1) + R(2) + R(3); self.srcc = R(0); self.r = self.ab + self.srcc
            self.passes = 4
        elif op.startswith('v_'):
            self.kind = 'valu'
            if op.startswith('v_permlane32_swap') or op.startswith('v_permlane16_swap') or op.startswith('v_swap'):
                self.w = R(0) + R(1); self.r = R(0) + R(1)
            elif op.startswith('v_cmp'):
                self.w = R(0); self.r = R(1) + R(2)
            elif op.startswith('v_add_co') or op.startswith('v_addc_co'):
                self.w = R(0) + R(1); self.r = sum((R(i) for i in range(2, len(ops))), [])
            elif op == 'v_nop':
                pass
            else:
                self.w = R(0); self.r = sum((R(i) for i in range(1, len(ops))), [])
                if op.startswith('v_fmac') or op.startswith('v_dot2c') or 'UNUSED_PRESERVE' in self.mods or op.startswith('v_writelane'):
                    self.r += R(0)
        elif op.startswith('ds_read') or op.startswith('ds_bpermute'):
            self.kind = 'ds'; self.w = R(0); self.r = sum((R(i) for i in range(1, len(ops))), [])
        elif op.startswith('ds_write') or op.startswith('ds_add') or op.startswith('ds_or') or op.startswith('ds_max'):
            self.kind = 'ds'; self.r = sum((R(i) for i in range(len(ops))), [])
        elif op.startswith('buffer_load'):
            self.kind = 'vmem'
            if 'lds' in self.mods.split():
                self.r = sum((R(i) for i in range(len(ops))), []) + [('s', 'm0')]
                self.dma = True
            else:
                self.w = R(0); self.r = sum((R(i) for i in range(1, len(ops))), [])
        elif op.startswith('buffer_store'):
            self.kind = 'vmem'; self.r = sum((R(i) for i in range(len(ops))), [])
            self.sdata = R(0)
        elif op.startswith('buffer_atomic'):
            self.kind = 'vmem'; self.r = sum((R(i) for i in range(len(ops))), [])
            if 'sc0' in self.mods.split(): self.w = R(0)
        elif op in ('buffer_wbl2', 'buffer_inv'):
            self.kind = 'vmem'
        elif op.startswith('s_load') or op.startswith('s_memtime') or op.startswith('s_memrealtime'):
            self.kind = 'smem'; self.w = R(0); self.r = sum((R(i) for i in range(1, len(ops))), [])
        elif op == 's_waitcnt':
            self.kind = 'wait'
            self.vm = self.lg = None
            m = re.search(r'vmcnt\((\d+)\)', t)
            if m: self.vm = int(m.group(1))
            m = re.search(r'lgkmcnt\((\d+)\)', t)
            if m: self.lg = int(m.group(1))
        elif op == 's_nop':
            self.kind = 'nop'
        elif op.startswith('s_cmp') or op.startswith('s_bitcmp') or op.startswith('s_cbranch') or op in ('s_branch', 's_barrier', 's_endpgm', 's_setprio', 's_sleep'):
            self.kind = 'salu'; self.r = sum((R(i) for i in range(len(ops))), [])
            if 'vcc' in op: self.r.append(('s', 'vcc'))
        elif op.startswith('s_'):
            self.kind = 'salu'; self.w = R(0); self.r = sum((R(i) for i in range(1, len(ops))), [])
            if op.startswith('s_bitset'): self.r += R(0)
            if 'saveexec' in op:
                self.w += [('s', 'exec')]
        self.states = (int(ops[0], 0) + 1) if op == 's_nop' else 1

def fix(lines):
    lines = list(lines); total = 0
    while True:
        fx = {}
        check(lines, verbose=False, fixes=fx)
        if not fx: return lines, total
        done = []
        for li in sorted(fx):
            if done and li - done[-1] < 16: continue
            done.append(li)
        for li in reversed(done):
            lines.insert(li, f"s_nop {fx[li]-1} ; autonop"); total += 1

def check(lines, verbose=True, fixes=None):
    ins = []
    for li, l in enumerate(lines):
        t = l.split(';')[0].strip()
        if t and not t.startswith('.') and not t.endswith(':'):
            x = I(l); x.li = li; ins.append(x)
    errs = []
    pos = 0
    P = []
    for i in ins:
        P.append(pos); pos += i.states
    last = {}
    lgq = []; vmq = []
    def dist(a, b):
        return P[b] - P[a] - ins[a].states
    def need(cls, reg, n, idx, why):
        a = last.get((cls, reg))
        if a is not None and dist(a, idx) < n:
            if fixes is not None: fixes[ins[idx].li] = max(fixes.get(ins[idx].li, 0), n - dist(a, idx))
            errs.append(f"[{why}] need {n} got {dist(a, idx)}: '{ins[a].text.strip()}' -> '{ins[idx].text.strip()}' (#{idx})")
    for idx, i in enumerate(ins):
        touched = set(i.r) | set(i.w)
        for q, nm in ((lgq, 'lgkm'), (vmq, 'vm')):
            for (a, ws) in q:
                if ws & touched:
                    errs.append(f"[{nm}cnt] unwaited '{ins[a].text.strip()}' -> '{i.text.strip()}' (#{idx})")
        if i.kind == 'wait':
            if i.lg is not None:
                if any(ins[a].kind == 'smem' for a, _ in lgq) and i.lg != 0:
                    pass
                else:
                    while len(lgq) > i.lg: lgq.pop(0)
            if i.vm is not None:
                while len(vmq) > i.vm: vmq.pop(0)
        if i.kind in ('ds', 'smem'):
            lgq.append((idx, set(i.w)))
            if len(lgq) > 15 and False:
                errs.append(f"[lgkm overflow] at #{idx} {i.text.strip()}")
        if i.kind == 'vmem':
            vmq.append((idx, set(i.w)))
            if len(vmq) > 63:
                errs.append(f"[vm overflow] at #{idx} {i.text.strip()}")
        if i.kind == 'mfma':
            for r in i.r: need('valu_w', r, 2, idx, 'valu->mfma')
            for r in i.ab:
                a = last.get(('mfma_w', r))
                if a is not None: need('mfma_w', r, 12 if ins[a].passes == 8 else 8, idx, 'mfma D->AB')
            for r in i.srcc:
                a = last.get(('mfma_w', r))
                if a is not None and not (ins[a].w == i.srcc and ins[a].passes == i.passes):
                    need('mfma_w', r, 10 if ins[a].passes == 8 else 6, idx, 'mfma D->C overlap')
            if i.srcc != i.w:
                for r in i.w:
                    a = last.get(('mfma_w', r))
                    if a is not None: need('mfma_w', r, 10 if ins[a].passes == 8 else 6, idx, 'mfma WAW')
        if i.kind in ('valu', 'ds', 'vmem'):
            for r in set(i.r) | set(i.w):
                a = last.get(('mfma_w', r))
                if a is not None: need('mfma_w', r, 12 if ins[a].passes == 8 else 8, idx, 'mfma D->use')
            for r in i.w:
                a = last.get(('mfma_c', r))
                if a is not None: need('mfma_c', r, 7 if ins[a].passes == 8 else 3, idx, 'mfma C WAR')
                need('store_d', r, 2, idx, 'store data WAR')
        if i.kind == 'valu':
            if i.op.split('_e')[0] not in TRANS and not any(i.op.startswith(t) for t in TRANS):
                for r in i.r: need('trans_w', r, 1, idx, 'trans->valu')
            if i.op.startswith('v_permlane') or 'dpp' in i.op or 'row_' in i.mods or 'quad_perm' in i.mods:
                for r in i.r: need('valu_w', r, 2, idx, 'valu->permlane/dpp')
            if i.op.startswith('v_readfirstlane') or i.op.startswith('v_readlane'):
                for r in i.r: need('valu_w', r, 1, idx, 'valu->readlane')
            for r in i.r:
                if r[0] == 's': need('valu_w', r, 2, idx, 'valu sgpr->valu')
            for r in i.r: need('sdwa_w', r, 1, idx, 'sdwa/opsel->valu')
        if i.kind in ('ds', 'vmem'):
            for r in i.r: need('trans_w', r, 1, idx, 'trans->mem')
        if i.kind == 'vmem':
            for r in i.r:
                if r[0] == 's': need('valu_w', r, 5, idx, 'valu sgpr->vmem')
            if getattr(i, 'dma', False): need('salu_w', ('s', 'm0'), 1, idx, 'm0->dma')
        if i.kind in ('salu', 'smem'):
            for r in i.r:
                if r[0] == 's': need('valu_w', r, 1, idx, 'valu sgpr->salu(paranoid)')
        if i.kind == 'mfma':
            for r in i.w: last[('mfma_w', r)] = idx; last.pop(('valu_w', r), None)
            for r in i.srcc: last[('mfma_c', r)] = idx
        elif i.kind == 'valu':
            for r in i.w:
                last[('valu_w', r)] = idx
                last.pop(('trans_w', r), None)
                if any(i.op.startswith(t) for t in TRANS): last[('trans_w', r)] = idx
                if 'dst_sel:WORD' in i.mods or 'dst_sel:BYTE' in i.mods: last[('sdwa_w', r)] = idx
        elif i.kind == 'salu':
            for r in i.w: last[('salu_w', r)] = idx; last.pop(('valu_w', r), None)
        if i.kind == 'vmem' and hasattr(i, 'sdata') and len(i.sdata) >= 3:
            for r in i.sdata: last[('store_d', r)] = idx
    if verbose:
        for e in errs[:8]: print("HAZARD", e)
        print(f"hazard check: {len(ins)} instrs, {len(errs)} problems")
    return errs
```

```python
import re
from hazard import I

def rank(x):
    if x.startswith('s_') or x.startswith('@'): return 0
    if x.startswith('ds_') or x.startswith('buffer'): return 1
    return 2
def cost(x):
    r = rank(x)
    if r == 0: return 0
    if x.startswith('v_exp') or x.startswith('v_rcp') or x.startswith('v_permlane'): return 2
    return 1

class Stream:
    def __init__(self, cap=2):
        self.mf = []; self.fill = []; self.used = []; self.cap = cap
    def add(self, m):
        self.mf.append(m); self.fill.append([]); self.used.append(0); return len(self.mf) - 1
    def n(self): return len(self.mf)
    def force(self, g, x):
        self.fill[g].append(x); self.used[g] += cost(x); return g
    def room(self, g, x, strict):
        c = cost(x); r = rank(x)
        if r == 0: return not any(rank(y) == 0 for y in self.fill[g])
        if self.used[g] + c > self.cap: return False
        if strict and r == 1 and any(rank(y) == 1 for y in self.fill[g]): return False
        return True
    def put(self, g, x, maxg=None):
        n = self.n()
        if maxg is None or maxg > n - 1: maxg = n - 1
        g = min(max(g, 0), maxg)
        for strict in (True, False):
            for gg in range(g, maxg + 1):
                if self.room(gg, x, strict): return self.force(gg, x)
        gg = min(range(g, maxg + 1), key=lambda t: (self.used[t], t))
        return self.force(gg, x)
    def spread(self, items, g0, g1):
        g1 = min(g1, self.n() - 1)
        free = []
        for g in range(g0, g1 + 1):
            k = self.cap - self.used[g]
            hasmem = any(rank(y) == 1 for y in self.fill[g])
            for j in range(k): free.append((g, j + (1 if hasmem else 0)))
        first = [g for g, j in free if j == 0]
        second = [g for g, j in free if j > 0]
        m = len(items)
        if m <= len(first):
            ch = [first[(i * len(first)) // m] for i in range(m)]
        else:
            need = m - len(first)
            if need <= len(second):
                ex = [second[(i * len(second)) // need] for i in range(need)]
            else:
                ex = list(second)
                rest = need - len(second)
                cand = first if first else list(range(g0, g1 + 1))
                ex += [cand[((2 * i + 1) * len(cand)) // (2 * rest)] for i in range(rest)]
            ch = sorted(first + ex)
        for g, x in zip(ch, items): self.force(g, x)
        return ch
    def lines(self):
        out = []
        for m, f in zip(self.mf, self.fill):
            if m: out.append(m)
            out += sorted(f, key=rank)
        return out

def tag_of(line, key):
    m = re.search(key + r'=([\w,]+)', line.split(';', 1)[1]) if ';' in line else None
    return m.group(1).split(',') if m else []

def auto_wait(lines):
    out = []
    lgq = []; vmq = []
    last_mfma = -1
    def setwait(kind, n, pos):
        txt = f"s_waitcnt {kind}({n})"
        if pos < len(out) and out[pos].startswith('s_waitcnt') and kind not in out[pos] and 'auto' in out[pos]:
            out[pos] = out[pos].split(';')[0].strip() + f" {kind}({n}) ; auto"
            return False
        if pos < len(out) and out[pos].startswith('s_waitcnt') and kind in out[pos] and 'auto' in out[pos]:
            old = int(re.search(kind + r'\((\d+)\)', out[pos]).group(1))
            out[pos] = re.sub(kind + r'\(\d+\)', f"{kind}({min(old, n)})", out[pos])
            return False
        out.insert(pos, txt + " ; auto")
        return True
    for l in lines:
        t = l.split(';')[0].strip()
        if t.startswith('@vmwait'):
            p = t.split()
            tags = set(p[1].split(','))
            idx = max([k for k, e in enumerate(vmq) if e[1] & tags], default=-1)
            s = ""
            if idx >= 0:
                n = len(vmq) - 1 - idx
                assert n <= 63
                s += f" vmcnt({n})"; del vmq[:idx + 1]
            if len(p) > 2 and p[2] == 'lgkm0':
                s += " lgkmcnt(0)"; lgq.clear()
            if s: out.append("s_waitcnt" + s + f" ; for {p[1]}")
            continue
        if not t or t.endswith(':') or t.startswith('.'):
            out.append(l); continue
        i = I(l)
        touched = set(i.r) | set(i.w)
        for q, kind, mx in ((lgq, 'lgkmcnt', 15), (vmq, 'vmcnt', 63)):
            idx = max([k for k, e in enumerate(q) if e[0] & touched], default=-1)
            if idx < 0: continue
            if kind == 'lgkmcnt' and any(e[2] for e in q):
                setwait(kind, 0, len(out)); q.clear(); continue
            pos = len(out); n = len(q) - 1 - idx
            if i.kind == 'mfma' and last_mfma >= 0 and q[idx][3] < last_mfma:
                later = sum(1 for e in q if e[3] > last_mfma)
                pos = last_mfma + 1; n = n - later
            n = min(n, mx)
            ins = setwait(kind, n, pos)
            if ins:
                for e in lgq + vmq:
                    if e[3] >= pos: e[3] += 1
            before = [e for e in q if e[3] < pos]
            keep = before[len(before) - n:] if n > 0 else []
            q[:] = keep + [e for e in q if e[3] > pos]
        if i.kind == 'wait':
            if i.lg is not None and not (i.lg > 0 and any(e[2] for e in lgq)):
                while len(lgq) > i.lg: lgq.pop(0)
            if i.vm is not None:
                while len(vmq) > i.vm: vmq.pop(0)
        out.append(l)
        if i.kind in ('ds', 'smem'): lgq.append([set(i.w), set(), i.kind == 'smem', len(out) - 1])
        if i.kind == 'vmem': vmq.append([set(i.w), set(tag_of(l, 'tag')), False, len(out) - 1])
        if i.kind == 'mfma': last_mfma = len(out) - 1
    return out

def lds_check(lines):
    errs = []
    lgq = []; vmq = []
    content = {}
    wr_state = {}
    rd_state = {}
    dead = set()
    def upd():
        fl = {t for q in (vmq, lgq) for k, t in q if k == 'w'}
        for c in wr_state:
            if wr_state[c] == 'flight' and c not in fl: wr_state[c] = 'landed'
        fl = {t for k, t in lgq if k == 'r'}
        for c in rd_state:
            if rd_state[c] == 'flight' and c not in fl: rd_state[c] = 'done'
    for l in lines:
        t = l.split(';')[0].strip()
        if not t or t.endswith(':') or t.startswith('.'): continue
        i = I(l)
        priv = ' priv' in l
        tag = tag_of(l, 'tag'); loc = tag_of(l, 'loc'); rd = tag_of(l, 'rd')
        if i.kind == 'wait':
            if i.lg is not None:
                while len(lgq) > i.lg: lgq.pop(0)
            if i.vm is not None:
                while len(vmq) > i.vm: vmq.pop(0)
            upd()
        elif i.op == 's_barrier':
            for c in wr_state:
                if wr_state[c] == 'landed': wr_state[c] = 'visible'
            for c in rd_state:
                if rd_state[c] == 'done': rd_state[c] = 'released'
        if loc:
            c = tag[0]
            for L in loc:
                old = content.get(L)
                if old is not None and old != c:
                    s = rd_state.get(old)
                    ok = s == 'released' or (s == 'done' and old.startswith('p')) or s is None
                    if not ok: errs.append(f"WAR {old} ({s}) overwritten by {l.strip()}")
                    dead.add(old)
                content[L] = c
            wr_state[c] = 'flight'
        if rd:
            c = rd[0]
            s = wr_state.get(c)
            if c in dead: errs.append(f"read of overwritten {c}: {l.strip()}")
            if not (s == 'visible' or (c.startswith('p') and s == 'landed')): errs.append(f"RAW {c} ({s}) read by {l.strip()}")
            rd_state[c] = 'flight'
        if i.kind in ('ds', 'smem'): lgq.append(('r', rd[0]) if rd else ('w', tag[0]) if loc else ('x', None))
        if i.kind == 'vmem': vmq.append(('w', tag[0]) if loc else ('x', None))
    return errs
```

```python
import sys, struct
from gen_common import *
import hazard, align
from sched import Stream, auto_wait, lds_check

MF = "v_mfma_f32_16x16x32_bf16"
def f2u(x): return struct.unpack('<I', struct.pack('<f', x))[0]
QSCALE = f2u(1.4426950408889634 * 128 ** -0.5)

def vr(a, n=4): return f"v[{a}:{a+n-1}]"
def ar(a, n=4): return f"a[{a}:{a+n-1}]"

SX, SK, SV, SWQ, SWO, SWS, SOUT, SDBG = (f"s[{i}:{i+3}]" for i in (4, 8, 12, 16, 20, 24, 28, 32))
sHKV, sP, sB, sBR, sW, sW4K, sROT = "s36", "s37", "s38", "s39", "s40", "s41", "s42"
sKO, sVO, sT0, sT1, sT2, sJ0, sJ1, sGRP, sMEM = "s43", "s44", "s45", "s46", "s47", "s58", "s59", "s60", "s61"
vKA, vVA, vKD, vVD = 4, 8, 16, 20
vLANE, vI15, vG = 22, 23, 24
vS, vP, vCI, vQ, vO = 32, 48, 56, 72, 128
vT = 104
aQ, aKF, aVF, aL, aONE = 0, 64, 128, 192, 208
VBASE, XBASE = 65536, 131072

class Cfg:
    C0 = 32; R = 0; C1 = 0
    polkv = "nt"; polx = ""; polw = ""; polst = ""
    diag = False
    expoff = 8
    dK = 3; dV = 2
    def __init__(self, **kw):
        self.__dict__.update(kw)

def stamp(e, cfg, k):
    if cfg.diag:
        e(f"s_memrealtime s[{70+2*k}:{71+2*k}]")
        e("s_waitcnt lgkmcnt(0)")

def srd(e, base, lo, hi, size):
    n = int(base[2:base.index(':')])
    e(f"s_mov_b32 s{n+2}, {size}")
    e(f"s_mov_b32 s{n+3}, 0x20000")

def prologue(e, cfg):
    e("s_cmp_ge_u32 s2, 256")
    e("s_cbranch_scc1 L_end")
    e(f"s_lshr_b32 {sBR}, s2, 7")
    e(f"s_mul_i32 {sT0}, {sBR}, 40")
    e(f"s_add_u32 s62, s0, {sT0}")
    e("s_addc_u32 s63, s1, 0")
    e("s_load_dwordx8 s[48:55], s[62:63], 0")
    e("s_load_dwordx2 s[56:57], s[62:63], 32")
    e("s_load_dwordx4 s[64:67], s[0:1], 80")
    e("s_load_dwordx2 s[24:25], s[0:1], 96")
    if cfg.diag: e("s_memrealtime s[70:71]")
    e(f"s_and_b32 {sHKV}, s2, 7")
    e(f"s_bfe_u32 {sP}, s2, 0x10003")
    e(f"s_bfe_u32 {sB}, s2, 0x30004")
    e(f"s_lshr_b32 {sGRP}, s2, 4")
    e(f"s_lshl_b32 {sMEM}, {sHKV}, 1")
    e(f"s_add_u32 {sMEM}, {sMEM}, {sP}")
    e(f"s_lshl_b32 {sROT}, {sP}, 2")
    e(f"s_add_u32 {sROT}, {sROT}, {sB}")
    e(f"s_and_b32 {sROT}, {sROT}, 7")
    e("v_lshrrev_b32 v1, 6, v0")
    e(f"v_and_b32 v{vLANE}, 63, v0")
    e(f"v_readfirstlane_b32 {sW}, v1")
    e(f"v_and_b32 v{vI15}, 15, v0")
    e(f"v_lshrrev_b32 v{vG}, 4, v{vLANE}")
    e(f"s_lshl_b32 {sW4K}, {sW}, 12")
    T = vT
    e(f"v_lshl_add_u32 v2, v1, 4, v{vG}")
    e(f"s_lshl_b32 {sT0}, {sROT}, 7")
    for n in range(4):
        e(f"v_add_u32 v3, {4*n}, v{vG}")
        e(f"v_xor_b32 v3, v3, v{vI15}")
        e(f"v_lshlrev_b32 v{vKD+n}, 4, v3")
        e(f"v_add_u32 v{T+n}, {sT0}, v{vKD+n}")
        e(f"v_add_u32 v3, {3*n}, v2")
        e(f"v_lshlrev_b32 v{T+4+n}, 10, v3")
    for n in range(2):
        e(f"v_add_u32 v3, {4*n}, v{vG}")
        e("v_lshlrev_b32 v3, 1, v3")
        e(f"v_xor_b32 v3, v3, v{vI15}")
        e(f"v_lshlrev_b32 v{vVD+n}, 4, v3")
    e("v_lshrrev_b32 v3, 1, v1")
    e(f"v_lshl_add_u32 v3, v3, 5, v{vG}")
    e("v_and_b32 v25, 1, v1")
    e("v_lshl_add_u32 v3, v25, 2, v3")
    e("v_lshlrev_b32 v3, 13, v3")
    for n in range(4):
        e(f"v_add_u32 v{T+8+n}, {n*(65536-1024)}, v3")
        e(f"v_add_u32 v{T+8+n}, v{T+8+n}, v{vVD+(n&1)}")
    e("s_waitcnt lgkmcnt(0)")
    e(f"s_lshl_b32 {sT0}, {sB}, 16")
    e(f"s_add_u32 s4, s48, {sT0}"); e("s_addc_u32 s5, s49, 0"); srd(e, SX, 0, 0, 65536)
    e(f"s_lshl_b32 {sT0}, {sMEM}, 9")
    e(f"s_add_u32 s16, s54, {sT0}"); e("s_addc_u32 s17, s55, 0")
    e(f"s_sub_u32 s18, 4194304, {sT0}"); e("s_mov_b32 s19, 0x20000")

def prologue2(e, cfg):
    e(f"s_lshl_b32 {sT0}, {sB}, 3")
    e(f"s_add_u32 {sT0}, {sT0}, {sHKV}")
    e(f"s_lshl_b32 {sT0}, {sT0}, 19")
    e(f"s_add_u32 s8, s50, {sT0}"); e("s_addc_u32 s9, s51, 0"); srd(e, SK, 0, 0, 524288)
    e(f"s_add_u32 s12, s52, {sT0}"); e("s_addc_u32 s13, s53, 0"); srd(e, SV, 0, 0, 524288)
    e(f"s_lshl_b32 {sT0}, {sMEM}, 18")
    e(f"s_add_u32 s20, s56, {sT0}"); e("s_addc_u32 s21, s57, 0"); srd(e, SWO, 0, 0, 262144)
    srd(e, SWS, 0, 0, 268435456)
    e("s_mov_b32 s28, s64"); e("s_mov_b32 s29, s65"); srd(e, SOUT, 0, 0, 1048576)
    e("s_mov_b32 s32, s66"); e("s_mov_b32 s33, s67"); srd(e, SDBG, 0, 0, 256)
    e(f"s_mov_b32 {sKO}, 0"); e(f"s_mov_b32 {sVO}, 0")
    e(f"s_mul_i32 {sJ0}, {sP}, {cfg.R*16384}")
    e(f"s_sub_u32 {sJ1}, {cfg.R*16384}, {sJ0}")
    e(f"s_add_u32 {sJ0}, {sJ0}, 16384"); e(f"s_add_u32 {sJ1}, {sJ1}, 16384")
    e("v_lshlrev_b32 v3, 8, v2")
    for n in range(4): e(f"v_add_u32 v{vKD+n}, v{vKD+n}, v3")
    for n in range(2): e(f"v_add_u32 v{vVD+n}, v{vVD+n}, v3")
    e(f"v_xor_b32 v3, v{vG}, v{vI15}")
    e(f"v_lshlrev_b32 v25, 8, v{vI15}")
    for s in range(4):
        e(f"v_xor_b32 v26, {4*s}, v3")
        e(f"v_lshl_add_u32 v{vKA+s}, v26, 4, v25")
    e(f"v_lshrrev_b32 v3, 2, v{vI15}")
    e(f"v_lshl_add_u32 v3, v{vG}, 2, v3")
    e("v_and_b32 v25, 7, v3")
    e("v_lshlrev_b32 v3, 8, v3")
    e(f"v_and_b32 v26, 3, v{vI15}")
    e("v_lshl_add_u32 v3, v26, 3, v3")
    e(f"v_add_u32 v3, {VBASE}, v3")
    for dt in range(8):
        e(f"v_xor_b32 v26, {dt}, v25")
        e(f"v_lshl_add_u32 v{vVA+dt}, v26, 5, v3")

def x_dma(cfg, j):
    T = vT
    L = [f"s_add_u32 m0, {sW4K}, {j*16384}"]
    for n in range(4):
        L.append(f"v_add_u32 v{T+12+n}, {256*j}, v{T+n}")
        L.append(f"v_and_or_b32 v{T+12+n}, v{T+12+n}, {sT2}, v{T+4+n}")
    for n in range(4):
        L.append(f"buffer_load_dwordx4 v{T+12+n}, {SX}, 0 offen offset:{1024*n} {cfg.polx} lds")
    return L

def wq_dma(cfg, i):
    T = vT
    G = []
    for hh in range(2):
        for n in range(4):
            pre = []
            if n == 0:
                if hh == 0:
                    pre += [f"s_add_u32 {sT0}, {sROT}, {i}", f"s_and_b32 {sT0}, {sT0}, 7", f"s_lshl_b32 {sT0}, {sT0}, 19"]
                else:
                    pre += [f"s_add_u32 {sT0}, {sT0}, 256"]
                pre += [f"s_add_u32 m0, {sW4K}, {VBASE + hh*49152 + (i%3)*16384}"]
            G.append((pre, f"buffer_load_dwordx4 v{T+8+n}, {SWQ}, {sT0} offen offset:{1024*n} {cfg.polw} lds ; tag=W{i} loc=u{4 + hh*3 + i%3}"))
    return G

def kslot(t): return (t & 3) * 16384
def vslot(t): return ((t + 2) & 3) * 16384

def kv_dma(cfg, which, t):
    so = sKO if which == 'K' else sVO
    G = []
    for n in range(4):
        pre = []
        if n == 0:
            if t > 0:
                inc = sJ0 if (t == cfg.C0 and cfg.R) else sJ1 if (t == cfg.C0 + cfg.R and cfg.R) else "0x4000"
                pre.append(f"s_add_u32 {so}, {so}, {inc}")
            pre.append(f"s_add_u32 m0, {sW4K}, {kslot(t) if which == 'K' else VBASE + vslot(t)}")
        v = vKD + n if which == 'K' else vVD + (n & 1)
        G.append((pre, f"buffer_load_dwordx4 v{v}, {SK if which == 'K' else SV}, {so} offen offset:{1024*n} {cfg.polkv} lds"))
    return G

def flat(G):
    L = []
    for pre, d in G:
        L += pre
        if pre and 'm0' in pre[-1]: L.append("s_nop 0")
        L.append(d)
    return L

def place_dma(st, G, g0, g1):
    nsal = sum(len(p) for p, _ in G)
    ch = st.spread([d for _, d in G], g0 + len(G[0][0]), g1)
    prev = g0 - 1
    for (pre, d), g in zip(G, ch):
        lo = prev + 1 if prev >= g0 else g0
        assert not pre or g - lo >= 1, (g, lo, pre)
        k = len(pre)
        for idx, s in enumerate(pre):
            gg = min(max(lo, g - k + idx), g - 1)
            st.force(gg, s)
        prev = g

def qproj(e, cfg):
    T = vT
    e(f"s_movk_i32 {sT2}, 0x3ff")
    for l in x_dma(cfg, 0): e(l)
    for l in flat(wq_dma(cfg, 0)): e(l)
    for l in x_dma(cfg, 1): e(l)
    for l in flat(wq_dma(cfg, 1)): e(l)
    prologue2(e, cfg)
    for l in x_dma(cfg, 2): e(l)
    for l in x_dma(cfg, 3): e(l)
    vX, vW = T + 0, T + 16
    e(f"s_and_b32 {sT1}, {sW}, 1"); e(f"s_lshl_b32 {sT1}, {sT1}, 13")
    for s in range(4): e(f"v_add_u32 v{vX+s}, {sT1}, v{vKA+s}")
    e(f"s_lshr_b32 {sT1}, {sW}, 1"); e(f"s_mul_i32 {sT1}, {sT1}, 49152")
    for dt in range(8): e(f"v_add_u32 v{vW+dt}, {sT1}, v{vVA+dt}")
    for i in range(4): e(f"v_mov_b32 v3, 0x3f803f80") if i == 0 else None
    for i in range(4): e(f"v_accvgpr_write_b32 a{aONE+i}, v3")
    st = Stream()
    D = 10
    for _ in range(D): st.add(None)
    def xfrag(i, ks, qq): return ((i * 2 + ks) * 2 + qq) * 4 % 64
    def wfrag(i, ks, dt): return aVF + ((ks * 8 + dt) % 16) * 4
    for i in range(8):
        for ks in range(2):
            for dt in range(8):
                for qq in range(2):
                    acc = vr(vO + (qq * 8 + dt) * 4)
                    c = "0" if (i == 0 and ks == 0) else acc
                    st.add(f"{MF} {acc}, {ar(wfrag(i, ks, dt))}, {ar(xfrag(i, ks, qq))}, {c}")
    for i in range(8):
        g0 = 32 * i
        need = f"W{i}" + (f",X{i>>1}" if i % 2 == 0 else "")
        st.force(g0, f"@vmwait {need} lgkm0")
        st.force(g0, "s_barrier")
        rd = []
        for ks in range(2):
            for qq in range(2):
                s = 2 * (i & 1) + ks
                rd.append(f"ds_read_b128 {ar(xfrag(i, ks, qq))}, v{vX+s} offset:{(i>>1)*16384 + qq*4096} ; rd=X{i>>1}")
            for dt in range(8):
                for u in range(2):
                    rd.append(f"ds_read_b64_tr_b16 {ar(wfrag(i, ks, dt) + 2*u, 2)}, v{vW+dt} offset:{(i%3)*16384 + ks*8192 + u*4096} ; rd=W{i}")
        if i + 2 < 8: G = wq_dma(cfg, i + 2)
        else: G = kv_dma(cfg, 'K', i - 6) + kv_dma(cfg, 'V', i - 6)
        place_dma(st, G, g0 + 1, g0 + 26)
        st.spread(rd, g0, g0 + 27)
    for l in st.lines(): e(l)
    e("s_nop 7")
    e(f"s_mov_b32 {sT0}, {hex(QSCALE)}")
    for qq in range(2):
        for s in range(4):
            a = vO + (qq * 8 + 2 * s) * 4
            q = vQ + (qq * 4 + s) * 4
            for j in range(8): e(f"v_mul_f32 v{a+j}, {sT0}, v{a+j}")
            for j in range(4): e(f"v_cvt_pk_bf16_f32 v{q+j}, v{a+2*j}, v{a+2*j+1}")
    e("s_nop 1")
    for op in ("v_permlane32_swap_b32", "v_permlane16_swap_b32"):
        for f in range(8):
            q = vQ + f * 4
            e(f"{op} v{q}, v{q+2}"); e(f"{op} v{q+1}, v{q+3}")

def Qreg(qt, s):
    return vr(vQ + (qt * 4 + s) * 4) if qt < 2 else ar(aQ + ((qt - 2) * 4 + s) * 4)

def k_reads(kb):
    t, half = kb >> 1, kb & 1
    return [f"ds_read_b128 {ar(aKF + (kb & 1)*32 + (kt*4+s)*4)}, v{vKA+s} offset:{kslot(t) + half*8192 + kt*4096} ; rd=K{t}" for kt in range(2) for s in range(4)]
def v_reads(kb):
    t, half = kb >> 1, kb & 1
    return [f"ds_read_b64_tr_b16 {ar(aVF + (kb & 1)*32 + dt*4 + 2*u, 2)}, v{vVA+dt} offset:{vslot(t) + half*8192 + u*4096} ; rd=V{t}" for dt in range(8) for u in range(2)]

def attention(e, cfg):
    NT = cfg.C0 + cfg.R + cfg.C1
    NKB = 2 * NT
    def qts(kb): return [0, 1, 2, 3] if cfg.C0 <= (kb >> 1) < cfg.C0 + cfg.R else [0, 1]
    mu = [(kb, qt) for kb in range(NKB) for qt in qts(kb)]
    e("@vmwait K0,V0 lgkm0")
    e("s_barrier")
    for l in k_reads(0): e(l)
    for l in v_reads(0): e(l)
    issued = {'K': 2, 'V': 2}
    for wh, d in (('K', cfg.dK), ('V', cfg.dV)):
        while issued[wh] < min(d + 1, NT):
            for l in flat(kv_dma(cfg, wh, issued[wh])): e(l)
            issued[wh] += 1
    for qt in range(2):
        for s in range(4):
            d = vr(vS + 4 * qt)
            e(f"{MF} {d}, {ar(aKF + s*4)}, {Qreg(qt, s)}, {'0' if s == 0 else d}")
    e("s_nop 7")
    for qt in range(2):
        a = vS + 4 * qt
        e(f"v_max3_f32 v{a}, v{a}, v{a+1}, v{a+2}")
        e(f"v_max_f32 v{a}, v{a}, v{a+3}")
    for op in ("v_permlane32_swap_b32", "v_permlane16_swap_b32"):
        for qt in range(2): e(f"v_mov_b32 v{vS+4*qt+1}, v{vS+4*qt}")
        e("s_nop 1")
        for qt in range(2): e(f"{op} v{vS+4*qt}, v{vS+4*qt+1}")
        e("s_nop 0")
        for qt in range(2): e(f"v_max_f32 v{vS+4*qt}, v{vS+4*qt}, v{vS+4*qt+1}")
    for qt in range(2):
        for j in range(4): e(f"v_sub_f32 v{vCI+4*qt+j}, 0, v{vS+4*qt}")
    e("s_nop 1")
    st = Stream()
    qk0 = {}; pv0 = {}
    seenO = set()
    for i in range(-1, len(mu)):
        if i + 1 < len(mu):
            kb, qt = mu[i + 1]
            qk0[i + 1] = st.n()
            for kt in range(2):
                d = vr(vS + ((i + 1) & 1) * 8 + kt * 4)
                for s in range(4):
                    st.add(f"{MF} {d}, {ar(aKF + (kb & 1)*32 + (kt*4+s)*4)}, {Qreg(qt, s)}, {vr(vCI + 4*qt) if s == 0 else d}")
        else:
            for _ in range(8): st.add(None)
        if i >= 0:
            kb, qt = mu[i]
            pv0[i] = st.n()
            p = vr(vP + (i & 1) * 4)
            first = qt not in seenO; seenO.add(qt)
            for dt in range(8):
                o = vr(vO + (qt * 8 + dt) * 4)
                st.add(f"{MF} {o}, {ar(aVF + (kb & 1)*32 + dt*4)}, {p}, {'0' if first else o}")
            l = ar(aL + 4 * qt)
            st.add(f"{MF} {l}, {ar(aONE)}, {p}, {'0' if first else l}")
        else:
            for _ in range(9): st.add(None)
    for i in range(len(mu)):
        g = qk0[i] + cfg.expoff
        sb = vS + (i & 1) * 8; pb = vP + (i & 1) * 4
        for j in range(8):
            st.force(g + 2 * j, f"v_exp_f32 v{sb+j}, v{sb+j}")
            if j & 1: st.force(g + 2 * j + 1, f"v_cvt_pk_bf16_f32 v{pb + j//2}, v{sb+j-1}, v{sb+j}")
    first_mu = {}
    for i, (kb, qt) in enumerate(mu): first_mu.setdefault(kb, i)
    for kb in range(NKB - 1):
        g0 = qk0[first_mu[kb]]
        g1 = qk0[first_mu[kb + 1]]
        gv = qk0[first_mu[kb] + 1]
        nb = kb + 1
        if nb % 2 == 0:
            t = nb >> 1
            st.force(g0, f"@vmwait K{t},V{t}")
            st.force(g0 + 1, "s_barrier")
            gk = g0 + 1
            G = []
            if t + cfg.dK < NT: place_dma(st, kv_dma(cfg, 'K', t + cfg.dK), g0 + 2, g1 - 1)
        else:
            gk = g0
            t = kb >> 1
            if t >= 1 and t + cfg.dV < NT: place_dma(st, kv_dma(cfg, 'V', t + cfg.dV), g0, g1 - 1)
        span = g1 - gk
        kend = max(gv - 1, gk + span // 3)
        st.spread(k_reads(nb), gk, min(kend, g1 - 8))
        st.spread(v_reads(nb), max(gv, kend + 1), g1 - 1)
    L = st.lines()
    for l in L: e(l)
    if '-v' in sys.argv:
        over = sum(max(0, u - 2) for u, m in zip(st.used, st.mf) if m)
        print("attention gaps", st.n(), "overfull slots", over)

def selector(e, base, tmp):
    e(f"v_lshrrev_b32 v{tmp}, 2, v{vI15}")
    e(f"v_cmp_eq_u32 vcc, v{tmp}, v{vG}")
    e(f"v_and_b32 v{tmp}, 1, v{vI15}")
    e(f"v_lshlrev_b32 v{tmp}, 4, v{tmp}")
    e(f"v_mov_b32 v{tmp+1}, 0x3f80")
    e(f"v_lshlrev_b32 v{tmp}, v{tmp}, v{tmp+1}")
    e(f"v_cndmask_b32 v{tmp}, 0, v{tmp}, vcc")
    e(f"v_and_b32 v{tmp+1}, 2, v{vI15}")
    e(f"v_cmp_eq_u32 vcc, 0, v{tmp+1}")
    for i in (0, 1, 4, 5): e(f"v_mov_b32 v{base+i}, 0")
    e(f"v_cndmask_b32 v{base+2}, 0, v{tmp}, vcc")
    e(f"v_sub_u32 v{base+3}, v{tmp}, v{base+2}")

def wo_dma(cfg, kc):
    T = vT
    G = []
    for n in range(16):
        pre = []
        if n % 4 == 0:
            pre.append(f"s_add_u32 {sT0}, {sT1}, {kc*65536 + (n>>2)*16384}")
            pre.append(f"s_add_u32 m0, {sT2}, {(kc&1)*16384 + (n>>2)*4096}")
        G.append((pre, f"buffer_load_dwordx4 v{T+(n&3)}, {SWO}, {sT0} offen offset:{1024*(n&3)} {cfg.polw} lds ; tag=pO{kc} loc={','.join('u%d' % (2*w + (kc&1)) for w in range(4))}"))
    return G

def oproj(e, cfg):
    T = vT
    e("s_barrier")
    e(f"s_lshl_b32 {sT1}, {sW}, 8")
    e(f"s_lshl_b32 {sT2}, {sW}, 15")
    for n in range(4):
        e(f"v_and_b32 v3, 0xff, v{vVD+(n&1)}")
        e(f"v_add_u32 v25, {3*n}, v{vG}")
        e(f"v_lshl_add_u32 v{T+n}, v25, 10, v3")
    for l in flat(wo_dma(cfg, 0)): e(l)
    for l in flat(wo_dma(cfg, 1)): e(l)
    for qt in range(2): e(f"v_accvgpr_read_b32 v{26+qt}, a{aL+4*qt}")
    e("s_nop 0")
    for qt in range(2): e(f"v_rcp_f32 v{26+qt}, v{26+qt}")
    e(f"s_lshr_b32 {sT0}, {sW}, 1"); e(f"s_lshl_b32 {sT0}, {sT0}, 14")
    e(f"s_and_b32 s62, {sW}, 1"); e("s_lshl_b32 s62, s62, 11")
    e(f"s_add_u32 {sT0}, {sT0}, s62")
    e(f"v_lshlrev_b32 v28, 4, v{vLANE}")
    e(f"v_add_u32 v28, {XBASE}, v28")
    e(f"v_add_u32 v29, {sT0}, v28")
    for qt in range(2):
        for s in range(4):
            a = vO + (qt * 8 + 2 * s) * 4
            q = vQ + (qt * 4 + s) * 4
            for j in range(8): e(f"v_mul_f32 v{a+j}, v{26+qt}, v{a+j}")
            for j in range(4): e(f"v_cvt_pk_bf16_f32 v{q+j}, v{a+2*j}, v{a+2*j+1}")
            e(f"ds_write_b128 v29, {vr(q)} offset:{(s*4+qt)*1024}")
    vW = T + 16
    e(f"s_sub_u32 {sT0}, {sT2}, {VBASE}")
    for dt in range(8): e(f"v_add_u32 v{vW+dt}, {sT0}, v{vVA+dt}")
    e("s_waitcnt lgkmcnt(0)")
    e("s_barrier")
    stamp(e, cfg, 3)
    st = Stream()
    D = 12
    for _ in range(D): st.add(None)
    def wfrag(ks8, nt): return aVF + (((ks8 & 1) * 8 + nt) % 16) * 4
    for ks8 in range(8):
        for nt in range(8):
            for q4 in range(4):
                acc = vr(vO + (q4 * 8 + nt) * 4)
                st.add(f"{MF} {acc}, {ar(wfrag(ks8, nt))}, {ar((ks8*4+q4)*4)}, {'0' if ks8 == 0 else acc}")
    for ks8 in range(8):
        g0 = 32 * ks8
        kc, ks = ks8 >> 1, ks8 & 1
        rd = [f"ds_read_b128 {ar((ks8*4+q4)*4)}, v28 offset:{(ks8*4+q4)*1024} ; rd=G" for q4 in range(4)]
        for nt in range(8):
            for u in range(2):
                rd.append(f"ds_read_b64_tr_b16 {ar(wfrag(ks8, nt) + 2*u, 2)}, v{vW+nt} offset:{(kc&1)*16384 + ks*8192 + u*4096} ; rd=pO{kc}")
        if ks == 0:
            st.force(g0, f"@vmwait pO{kc}")
            if kc >= 1 and kc + 1 < 4:
                place_dma(st, wo_dma(cfg, kc + 1), g0 + D + 1, g0 + D + 36)
        st.spread(rd, g0, g0 + 29)
    for l in st.lines(): e(l)
    stamp(e, cfg, 4)
    e("s_nop 7")
    e(f"s_lshl_b32 {sT0}, {sGRP}, 20")
    e(f"s_lshl_b32 {sT1}, {sW}, 18")
    e(f"s_add_u32 {sT0}, {sT0}, {sT1}")
    e(f"s_lshl_b32 {sT1}, {sMEM}, 10")
    e(f"s_add_u32 {sT0}, {sT0}, {sT1}")
    e(f"v_lshlrev_b32 v28, 4, v{vLANE}")
    k = 0
    for m in range(4):
        for q4 in range(4):
            a = vO + (q4 * 8 + 2 * m) * 4
            q = vS + 4 * k; k += 1
            for j in range(4): e(f"v_cvt_pk_bf16_f32 v{q+j}, v{a+2*j}, v{a+2*j+1}")
            e(f"s_add_u32 {sT1}, {sT0}, {(m*4+q4)*16384}")
            e(f"buffer_store_dwordx4 {vr(q)}, v28, {SWS}, {sT1} offen {cfg.polst}")

def diag_dump(e, cfg, n):
    if not cfg.diag: return
    e("s_waitcnt vmcnt(0)")
    stamp(e, cfg, n - 1)
    e("s_lshl_b32 s3, s2, 6")
    e("s_add_u32 s3, s3, 0x8000000")
    e("v_mov_b32 v3, s3")
    for k in range(n):
        e(f"v_mov_b32 v4, s{70+2*k}")
        e(f"buffer_store_dword v4, v3, {SWS}, 0 offen offset:{4*k}")

def reduce_kernel(cfg):
    L = []; e = L.append
    e("s_cmp_ge_u32 s2, 256")
    e("s_cbranch_scc1 R_end")
    e("s_load_dwordx2 s[28:29], s[0:1], 80")
    e("s_load_dwordx2 s[24:25], s[0:1], 96")
    e(f"s_lshr_b32 {sGRP}, s2, 4")
    e(f"s_and_b32 {sHKV}, s2, 7")
    e(f"s_bfe_u32 {sP}, s2, 0x10003")
    e("v_lshrrev_b32 v1, 6, v0")
    e(f"v_and_b32 v{vLANE}, 63, v0")
    e(f"v_readfirstlane_b32 {sW}, v1")
    e(f"v_and_b32 v{vI15}, 15, v0")
    e(f"v_lshrrev_b32 v{vG}, 4, v{vLANE}")
    srd(e, SWS, 0, 0, 268435456)
    srd(e, SOUT, 0, 0, 1048576)
    reduce_body(e, cfg)
    e("R_end:")
    e("s_endpgm")
    return L

def reduce_body(e, cfg, pol=""):
    e(f"s_and_b32 {sT0}, {sW}, 1"); e(f"s_lshl_b32 {sT1}, {sHKV}, 1"); e(f"s_add_u32 {sT0}, {sT0}, {sT1}")
    e(f"s_lshr_b32 {sT1}, {sW}, 1"); e(f"s_lshl_b32 {sT2}, {sP}, 1"); e(f"s_add_u32 {sT1}, {sT1}, {sT2}")
    e(f"s_lshl_b32 {sT2}, {sGRP}, 20")
    e(f"s_lshl_b32 s62, {sT0}, 16"); e(f"s_add_u32 {sT2}, {sT2}, s62")
    e(f"s_lshl_b32 s62, {sT1}, 14"); e(f"s_add_u32 {sT2}, {sT2}, s62")
    e(f"v_lshlrev_b32 v28, 4, v{vLANE}")
    e("s_waitcnt lgkmcnt(0)")
    for j in range(16):
        if j and j % 4 == 0: e(f"s_add_u32 {sT2}, {sT2}, 4096")
        e(f"buffer_load_dwordx4 {vr(32+4*j)}, v28, {SWS}, {sT2} offen offset:{1024*(j&3)} {pol}")
    selector(e, 8, 2)
    e(f"s_and_b32 s62, {sGRP}, 7"); e("s_lshl_b32 s62, s62, 17")
    e(f"s_lshl_b32 {sT1}, {sT1}, 15"); e(f"s_add_u32 s62, s62, {sT1}")
    e(f"s_lshr_b32 {sT1}, {sGRP}, 3"); e(f"s_lshl_b32 {sT1}, {sT1}, 10"); e(f"s_add_u32 s62, s62, {sT1}")
    e(f"s_lshl_b32 {sT0}, {sT0}, 6"); e(f"s_add_u32 s62, s62, {sT0}")
    e(f"v_lshlrev_b32 v2, 11, v{vI15}")
    e(f"v_lshl_add_u32 v2, v{vG}, 4, v2")
    for j in range(16):
        e(f"{MF} v[16:19], v[10:13], {vr(32+4*j)}, {'0' if j == 0 else 'v[16:19]'}")
        e(f"{MF} v[4:7], v[8:11], {vr(32+4*j)}, {'0' if j == 0 else 'v[4:7]'}")
    e("s_nop 7")
    e("v_cvt_pk_bf16_f32 v16, v16, v17"); e("v_cvt_pk_bf16_f32 v17, v18, v19")
    e("v_cvt_pk_bf16_f32 v18, v4, v5"); e("v_cvt_pk_bf16_f32 v19, v6, v7")
    for op in ("v_permlane32_swap_b32", "v_permlane16_swap_b32"):
        e("s_nop 1")
        e(f"{op} v16, v18"); e(f"{op} v17, v19")
    e(f"buffer_store_dwordx4 v[16:19], v2, {SOUT}, s62 offen")

def finish(L):
    L = auto_wait(L)
    L, nn = hazard.fix(L)
    if '-v' in sys.argv: print("auto nops", nn)
    L, bad = align.align8(L)
    errs = hazard.check(L, verbose=('-v' in sys.argv))
    assert not errs, errs[:5]
    errs = lds_check(L)
    assert not errs, errs[:5]
    return L

def gen(cfg):
    L = []; e = L.append
    prologue(e, cfg)
    qproj(e, cfg)
    stamp(e, cfg, 1)
    attention(e, cfg)
    stamp(e, cfg, 2)
    oproj(e, cfg)
    diag_dump(e, cfg, 6)
    e("L_end:")
    e("s_endpgm")
    L = finish(L)
    R = finish(reduce_kernel(cfg))
    RN = "reduce_kernel"
    s = header([f"@launch kernel={KNAME} grid=(256,1,1) block=(256,1,1) lds=163840",
                f"@launch kernel={RN} grid=(256,1,1) block=(256,1,1) lds=0"])
    fmt = lambda X: "\n".join((x if x.endswith(':') else "  " + x.split(' ; ')[0].rstrip()) for x in X) + "\n"
    s += kernel_begin(KNAME) + fmt(L)
    s += kernel_begin(RN) + fmt(R)
    s += rodata([descriptor(KNAME), descriptor(RN, vgpr=96, accum=96)])
    return s

if __name__ == "__main__":
    out = sys.argv[1]
    kw = {}
    for a in sys.argv[2:]:
        if '=' in a:
            k, v = a.split('=', 1)
            kw[k] = int(v) if v.lstrip('-').isdigit() else v.replace('+', ' ')
    open(out, "w").write(gen(Cfg(**kw)))
```

```python
import sys, struct
from gen_common import *
import hazard, align
from sched import Stream, auto_wait, lds_check

MF = "v_mfma_f32_16x16x32_bf16"
def f2u(x): return struct.unpack('<I', struct.pack('<f', x))[0]
QSCALE = f2u(1.4426950408889634 * 128 ** -0.5)

def vr(a, n=4): return f"v[{a}:{a+n-1}]"
def ar(a, n=4): return f"a[{a}:{a+n-1}]"

SX, SK, SV, SWQ, SWO, SWS, SOUT, SDBG = (f"s[{i}:{i+3}]" for i in (4, 8, 12, 16, 20, 24, 28, 32))
sHKV, sP, sB, sBR, sW, sW4K, sROT = "s36", "s37", "s38", "s39", "s40", "s41", "s42"
sKO, sVO, sT0, sT1, sT2, sJ0, sJ1, sGRP, sMEM = "s43", "s44", "s45", "s46", "s47", "s58", "s59", "s60", "s61"
vKA, vVA, vKD, vVD = 4, 8, 16, 20
vLANE, vI15, vG = 22, 23, 24
vS, vP, vCI, vQ, vO = 32, 48, 56, 72, 128
vT = 104
aQ, aKF, aVF, aL, aONE = 0, 64, 128, 192, 208
VBASE, XBASE = 65536, 131072

class Cfg:
    C0 = 32; R = 0; C1 = 0
    polkv = "nt"; polx = ""; polw = ""; polst = ""
    diag = False; spin = -1
    expoff = 8
    dK = 3; dV = 2
    def __init__(self, **kw):
        self.__dict__.update(kw)

def stamp(e, cfg, k):
    if cfg.diag:
        e(f"s_memrealtime s[{70+2*k}:{71+2*k}]")
        e("s_waitcnt lgkmcnt(0)")

def srd(e, base, lo, hi, size):
    n = int(base[2:base.index(':')])
    e(f"s_mov_b32 s{n+2}, {size}")
    e(f"s_mov_b32 s{n+3}, 0x20000")

def prologue(e, cfg):
    e("s_cmp_ge_u32 s2, 256")
    e("s_cbranch_scc1 L_end")
    e(f"s_lshr_b32 {sBR}, s2, 7")
    e(f"s_mul_i32 {sT0}, {sBR}, 40")
    e(f"s_add_u32 s62, s0, {sT0}")
    e("s_addc_u32 s63, s1, 0")
    e("s_load_dwordx8 s[48:55], s[62:63], 0")
    e("s_load_dwordx2 s[56:57], s[62:63], 32")
    e("s_load_dwordx4 s[64:67], s[0:1], 80")
    e("s_load_dwordx2 s[24:25], s[0:1], 96")
    if cfg.diag: e("s_memrealtime s[70:71]")
    e(f"s_and_b32 {sHKV}, s2, 7")
    e(f"s_bfe_u32 {sP}, s2, 0x10003")
    e(f"s_bfe_u32 {sB}, s2, 0x30004")
    e(f"s_lshr_b32 {sGRP}, s2, 4")
    e(f"s_lshl_b32 {sMEM}, {sHKV}, 1")
    e(f"s_add_u32 {sMEM}, {sMEM}, {sP}")
    e(f"s_lshl_b32 {sROT}, {sP}, 2")
    e(f"s_add_u32 {sROT}, {sROT}, {sB}")
    e(f"s_and_b32 {sROT}, {sROT}, 7")
    e("v_lshrrev_b32 v1, 6, v0")
    e(f"v_and_b32 v{vLANE}, 63, v0")
    e(f"v_readfirstlane_b32 {sW}, v1")
    e(f"v_and_b32 v{vI15}, 15, v0")
    e(f"v_lshrrev_b32 v{vG}, 4, v{vLANE}")
    e(f"s_lshl_b32 {sW4K}, {sW}, 12")
    T = vT
    e(f"v_lshl_add_u32 v2, v1, 4, v{vG}")
    e(f"s_lshl_b32 {sT0}, {sROT}, 7")
    for n in range(4):
        e(f"v_add_u32 v3, {4*n}, v{vG}")
        e(f"v_xor_b32 v3, v3, v{vI15}")
        e(f"v_lshlrev_b32 v{vKD+n}, 4, v3")
        e(f"v_add_u32 v{T+n}, {sT0}, v{vKD+n}")
        e(f"v_add_u32 v3, {3*n}, v2")
        e(f"v_lshlrev_b32 v{T+4+n}, 10, v3")
    for n in range(2):
        e(f"v_add_u32 v3, {4*n}, v{vG}")
        e("v_lshlrev_b32 v3, 1, v3")
        e(f"v_xor_b32 v3, v3, v{vI15}")
        e(f"v_lshlrev_b32 v{vVD+n}, 4, v3")
    e("v_lshrrev_b32 v3, 1, v1")
    e(f"v_lshl_add_u32 v3, v3, 5, v{vG}")
    e("v_and_b32 v25, 1, v1")
    e("v_lshl_add_u32 v3, v25, 2, v3")
    e("v_lshlrev_b32 v3, 13, v3")
    for n in range(4):
        e(f"v_add_u32 v{T+8+n}, {n*(65536-1024)}, v3")
        e(f"v_add_u32 v{T+8+n}, v{T+8+n}, v{vVD+(n&1)}")
    e("s_waitcnt lgkmcnt(0)")
    e(f"s_lshl_b32 {sT0}, {sB}, 16")
    e(f"s_add_u32 s4, s48, {sT0}"); e("s_addc_u32 s5, s49, 0"); srd(e, SX, 0, 0, 65536)
    e(f"s_lshl_b32 {sT0}, {sMEM}, 9")
    e(f"s_add_u32 s16, s54, {sT0}"); e("s_addc_u32 s17, s55, 0")
    e(f"s_sub_u32 s18, 4194304, {sT0}"); e("s_mov_b32 s19, 0x20000")

def prologue2(e, cfg):
    e(f"s_lshl_b32 {sT0}, {sB}, 3")
    e(f"s_add_u32 {sT0}, {sT0}, {sHKV}")
    e(f"s_lshl_b32 {sT0}, {sT0}, 19")
    e(f"s_add_u32 s8, s50, {sT0}"); e("s_addc_u32 s9, s51, 0"); srd(e, SK, 0, 0, 524288)
    e(f"s_add_u32 s12, s52, {sT0}"); e("s_addc_u32 s13, s53, 0"); srd(e, SV, 0, 0, 524288)
    e(f"s_lshl_b32 {sT0}, {sMEM}, 18")
    e(f"s_add_u32 s20, s56, {sT0}"); e("s_addc_u32 s21, s57, 0"); srd(e, SWO, 0, 0, 262144)
    srd(e, SWS, 0, 0, 268435456)
    e("s_mov_b32 s28, s64"); e("s_mov_b32 s29, s65"); srd(e, SOUT, 0, 0, 1048576)
    e("s_mov_b32 s32, s66"); e("s_mov_b32 s33, s67"); srd(e, SDBG, 0, 0, 256)
    e(f"s_mov_b32 {sKO}, 0"); e(f"s_mov_b32 {sVO}, 0")
    e(f"s_mul_i32 {sJ0}, {sP}, {cfg.R*16384}")
    e(f"s_sub_u32 {sJ1}, {cfg.R*16384}, {sJ0}")
    e(f"s_add_u32 {sJ0}, {sJ0}, 16384"); e(f"s_add_u32 {sJ1}, {sJ1}, 16384")
    e("v_lshlrev_b32 v3, 8, v2")
    for n in range(4): e(f"v_add_u32 v{vKD+n}, v{vKD+n}, v3")
    for n in range(2): e(f"v_add_u32 v{vVD+n}, v{vVD+n}, v3")
    e(f"v_xor_b32 v3, v{vG}, v{vI15}")
    e(f"v_lshlrev_b32 v25, 8, v{vI15}")
    for s in range(4):
        e(f"v_xor_b32 v26, {4*s}, v3")
        e(f"v_lshl_add_u32 v{vKA+s}, v26, 4, v25")
    e(f"v_lshrrev_b32 v3, 2, v{vI15}")
    e(f"v_lshl_add_u32 v3, v{vG}, 2, v3")
    e("v_and_b32 v25, 7, v3")
    e("v_lshlrev_b32 v3, 8, v3")
    e(f"v_and_b32 v26, 3, v{vI15}")
    e("v_lshl_add_u32 v3, v26, 3, v3")
    e(f"v_add_u32 v3, {VBASE}, v3")
    for dt in range(8):
        e(f"v_xor_b32 v26, {dt}, v25")
        e(f"v_lshl_add_u32 v{vVA+dt}, v26, 5, v3")

def x_dma(cfg, j):
    T = vT
    L = [f"s_add_u32 m0, {sW4K}, {j*16384}"]
    for n in range(4):
        L.append(f"v_add_u32 v{T+12+n}, {256*j}, v{T+n}")
        L.append(f"v_and_or_b32 v{T+12+n}, v{T+12+n}, {sT2}, v{T+4+n}")
    for n in range(4):
        L.append(f"buffer_load_dwordx4 v{T+12+n}, {SX}, 0 offen offset:{1024*n} {cfg.polx} lds")
    return L

def wq_dma(cfg, i):
    T = vT
    G = []
    for hh in range(2):
        for n in range(4):
            pre = []
            if n == 0:
                if hh == 0:
                    pre += [f"s_add_u32 {sT0}, {sROT}, {i}", f"s_and_b32 {sT0}, {sT0}, 7", f"s_lshl_b32 {sT0}, {sT0}, 19"]
                else:
                    pre += [f"s_add_u32 {sT0}, {sT0}, 256"]
                pre += [f"s_add_u32 m0, {sW4K}, {VBASE + hh*49152 + (i%3)*16384}"]
            G.append((pre, f"buffer_load_dwordx4 v{T+8+n}, {SWQ}, {sT0} offen offset:{1024*n} {cfg.polw} lds ; tag=W{i} loc=u{4 + hh*3 + i%3}"))
    return G

def kslot(t): return (t & 3) * 16384
def vslot(t): return ((t + 2) & 3) * 16384

def kv_dma(cfg, which, t):
    so = sKO if which == 'K' else sVO
    G = []
    for n in range(4):
        pre = []
        if n == 0:
            if t > 0:
                inc = sJ0 if (t == cfg.C0 and cfg.R) else sJ1 if (t == cfg.C0 + cfg.R and cfg.R) else "0x4000"
                pre.append(f"s_add_u32 {so}, {so}, {inc}")
            pre.append(f"s_add_u32 m0, {sW4K}, {kslot(t) if which == 'K' else VBASE + vslot(t)}")
        v = vKD + n if which == 'K' else vVD + (n & 1)
        G.append((pre, f"buffer_load_dwordx4 v{v}, {SK if which == 'K' else SV}, {so} offen offset:{1024*n} {cfg.polkv} lds"))
    return G

def flat(G):
    L = []
    for pre, d in G:
        L += pre
        if pre and 'm0' in pre[-1]: L.append("s_nop 0")
        L.append(d)
    return L

def place_dma(st, G, g0, g1):
    nsal = sum(len(p) for p, _ in G)
    ch = st.spread([d for _, d in G], g0 + len(G[0][0]), g1)
    prev = g0 - 1
    for (pre, d), g in zip(G, ch):
        lo = prev + 1 if prev >= g0 else g0
        assert not pre or g - lo >= 1, (g, lo, pre)
        k = len(pre)
        for idx, s in enumerate(pre):
            gg = min(max(lo, g - k + idx), g - 1)
            st.force(gg, s)
        prev = g

def qproj(e, cfg):
    T = vT
    e(f"s_movk_i32 {sT2}, 0x3ff")
    for l in x_dma(cfg, 0): e(l)
    for l in flat(wq_dma(cfg, 0)): e(l)
    for l in x_dma(cfg, 1): e(l)
    for l in flat(wq_dma(cfg, 1)): e(l)
    prologue2(e, cfg)
    for l in x_dma(cfg, 2): e(l)
    for l in x_dma(cfg, 3): e(l)
    vX, vW = T + 0, T + 16
    e(f"s_and_b32 {sT1}, {sW}, 1"); e(f"s_lshl_b32 {sT1}, {sT1}, 13")
    for s in range(4): e(f"v_add_u32 v{vX+s}, {sT1}, v{vKA+s}")
    e(f"s_lshr_b32 {sT1}, {sW}, 1"); e(f"s_mul_i32 {sT1}, {sT1}, 49152")
    for dt in range(8): e(f"v_add_u32 v{vW+dt}, {sT1}, v{vVA+dt}")
    for i in range(4): e(f"v_mov_b32 v3, 0x3f803f80") if i == 0 else None
    for i in range(4): e(f"v_accvgpr_write_b32 a{aONE+i}, v3")
    st = Stream()
    D = 10
    for _ in range(D): st.add(None)
    def xfrag(i, ks, qq): return ((i * 2 + ks) * 2 + qq) * 4 % 64
    def wfrag(i, ks, dt): return aVF + ((ks * 8 + dt) % 16) * 4
    for i in range(8):
        for ks in range(2):
            for dt in range(8):
                for qq in range(2):
                    acc = vr(vO + (qq * 8 + dt) * 4)
                    c = "0" if (i == 0 and ks == 0) else acc
                    st.add(f"{MF} {acc}, {ar(wfrag(i, ks, dt))}, {ar(xfrag(i, ks, qq))}, {c}")
    for i in range(8):
        g0 = 32 * i
        need = f"W{i}" + (f",X{i>>1}" if i % 2 == 0 else "")
        st.force(g0, f"@vmwait {need} lgkm0")
        st.force(g0, "s_barrier")
        rd = []
        for ks in range(2):
            for qq in range(2):
                s = 2 * (i & 1) + ks
                rd.append(f"ds_read_b128 {ar(xfrag(i, ks, qq))}, v{vX+s} offset:{(i>>1)*16384 + qq*4096} ; rd=X{i>>1}")
            for dt in range(8):
                for u in range(2):
                    rd.append(f"ds_read_b64_tr_b16 {ar(wfrag(i, ks, dt) + 2*u, 2)}, v{vW+dt} offset:{(i%3)*16384 + ks*8192 + u*4096} ; rd=W{i}")
        if i + 2 < 8: G = wq_dma(cfg, i + 2)
        else: G = kv_dma(cfg, 'K', i - 6) + kv_dma(cfg, 'V', i - 6)
        place_dma(st, G, g0 + 1, g0 + 26)
        st.spread(rd, g0, g0 + 27)
    for l in st.lines(): e(l)
    e("s_nop 7")
    e(f"s_mov_b32 {sT0}, {hex(QSCALE)}")
    for qq in range(2):
        for s in range(4):
            a = vO + (qq * 8 + 2 * s) * 4
            q = vQ + (qq * 4 + s) * 4
            for j in range(8): e(f"v_mul_f32 v{a+j}, {sT0}, v{a+j}")
            for j in range(4): e(f"v_cvt_pk_bf16_f32 v{q+j}, v{a+2*j}, v{a+2*j+1}")
    e("s_nop 1")
    for op in ("v_permlane32_swap_b32", "v_permlane16_swap_b32"):
        for f in range(8):
            q = vQ + f * 4
            e(f"{op} v{q}, v{q+2}"); e(f"{op} v{q+1}, v{q+3}")

def Qreg(qt, s):
    return vr(vQ + (qt * 4 + s) * 4) if qt < 2 else ar(aQ + ((qt - 2) * 4 + s) * 4)

def k_reads(kb):
    t, half = kb >> 1, kb & 1
    return [f"ds_read_b128 {ar(aKF + (kb & 1)*32 + (kt*4+s)*4)}, v{vKA+s} offset:{kslot(t) + half*8192 + kt*4096} ; rd=K{t}" for kt in range(2) for s in range(4)]
def v_reads(kb):
    t, half = kb >> 1, kb & 1
    return [f"ds_read_b64_tr_b16 {ar(aVF + (kb & 1)*32 + dt*4 + 2*u, 2)}, v{vVA+dt} offset:{vslot(t) + half*8192 + u*4096} ; rd=V{t}" for dt in range(8) for u in range(2)]

def attention(e, cfg):
    NT = cfg.C0 + cfg.R + cfg.C1
    NKB = 2 * NT
    def qts(kb): return [0, 1, 2, 3] if cfg.C0 <= (kb >> 1) < cfg.C0 + cfg.R else [0, 1]
    mu = [(kb, qt) for kb in range(NKB) for qt in qts(kb)]
    e("@vmwait K0,V0 lgkm0")
    e("s_barrier")
    for l in k_reads(0): e(l)
    for l in v_reads(0): e(l)
    issued = {'K': 2, 'V': 2}
    for wh, d in (('K', cfg.dK), ('V', cfg.dV)):
        while issued[wh] < min(d + 1, NT):
            for l in flat(kv_dma(cfg, wh, issued[wh])): e(l)
            issued[wh] += 1
    for qt in range(2):
        for s in range(4):
            d = vr(vS + 4 * qt)
            e(f"{MF} {d}, {ar(aKF + s*4)}, {Qreg(qt, s)}, {'0' if s == 0 else d}")
    e("s_nop 7")
    for qt in range(2):
        a = vS + 4 * qt
        e(f"v_max3_f32 v{a}, v{a}, v{a+1}, v{a+2}")
        e(f"v_max_f32 v{a}, v{a}, v{a+3}")
    for op in ("v_permlane32_swap_b32", "v_permlane16_swap_b32"):
        for qt in range(2): e(f"v_mov_b32 v{vS+4*qt+1}, v{vS+4*qt}")
        e("s_nop 1")
        for qt in range(2): e(f"{op} v{vS+4*qt}, v{vS+4*qt+1}")
        e("s_nop 0")
        for qt in range(2): e(f"v_max_f32 v{vS+4*qt}, v{vS+4*qt}, v{vS+4*qt+1}")
    for qt in range(2):
        for j in range(4): e(f"v_sub_f32 v{vCI+4*qt+j}, 0, v{vS+4*qt}")
    e("s_nop 1")
    st = Stream()
    qk0 = {}; pv0 = {}
    seenO = set()
    for i in range(-1, len(mu)):
        if i + 1 < len(mu):
            kb, qt = mu[i + 1]
            qk0[i + 1] = st.n()
            for kt in range(2):
                d = vr(vS + ((i + 1) & 1) * 8 + kt * 4)
                for s in range(4):
                    st.add(f"{MF} {d}, {ar(aKF + (kb & 1)*32 + (kt*4+s)*4)}, {Qreg(qt, s)}, {vr(vCI + 4*qt) if s == 0 else d}")
        else:
            for _ in range(8): st.add(None)
        if i >= 0:
            kb, qt = mu[i]
            pv0[i] = st.n()
            p = vr(vP + (i & 1) * 4)
            first = qt not in seenO; seenO.add(qt)
            for dt in range(8):
                o = vr(vO + (qt * 8 + dt) * 4)
                st.add(f"{MF} {o}, {ar(aVF + (kb & 1)*32 + dt*4)}, {p}, {'0' if first else o}")
            l = ar(aL + 4 * qt)
            st.add(f"{MF} {l}, {ar(aONE)}, {p}, {'0' if first else l}")
        else:
            for _ in range(9): st.add(None)
    for i in range(len(mu)):
        g = qk0[i] + cfg.expoff
        sb = vS + (i & 1) * 8; pb = vP + (i & 1) * 4
        for j in range(8):
            st.force(g + 2 * j, f"v_exp_f32 v{sb+j}, v{sb+j}")
            if j & 1: st.force(g + 2 * j + 1, f"v_cvt_pk_bf16_f32 v{pb + j//2}, v{sb+j-1}, v{sb+j}")
    first_mu = {}
    for i, (kb, qt) in enumerate(mu): first_mu.setdefault(kb, i)
    for kb in range(NKB - 1):
        g0 = qk0[first_mu[kb]]
        g1 = qk0[first_mu[kb + 1]]
        gv = qk0[first_mu[kb] + 1]
        nb = kb + 1
        if nb % 2 == 0:
            t = nb >> 1
            st.force(g0, f"@vmwait K{t},V{t}")
            st.force(g0 + 1, "s_barrier")
            gk = g0 + 1
            G = []
            if t + cfg.dK < NT: place_dma(st, kv_dma(cfg, 'K', t + cfg.dK), g0 + 2, g1 - 1)
        else:
            gk = g0
            t = kb >> 1
            if t >= 1 and t + cfg.dV < NT: place_dma(st, kv_dma(cfg, 'V', t + cfg.dV), g0, g1 - 1)
        span = g1 - gk
        kend = max(gv - 1, gk + span // 3)
        st.spread(k_reads(nb), gk, min(kend, g1 - 8))
        st.spread(v_reads(nb), max(gv, kend + 1), g1 - 1)
    L = st.lines()
    for l in L: e(l)
    if '-v' in sys.argv:
        over = sum(max(0, u - 2) for u, m in zip(st.used, st.mf) if m)
        print("attention gaps", st.n(), "overfull slots", over)

def selector(e, base, tmp):
    e(f"v_lshrrev_b32 v{tmp}, 2, v{vI15}")
    e(f"v_cmp_eq_u32 vcc, v{tmp}, v{vG}")
    e(f"v_and_b32 v{tmp}, 1, v{vI15}")
    e(f"v_lshlrev_b32 v{tmp}, 4, v{tmp}")
    e(f"v_mov_b32 v{tmp+1}, 0x3f80")
    e(f"v_lshlrev_b32 v{tmp}, v{tmp}, v{tmp+1}")
    e(f"v_cndmask_b32 v{tmp}, 0, v{tmp}, vcc")
    e(f"v_and_b32 v{tmp+1}, 2, v{vI15}")
    e(f"v_cmp_eq_u32 vcc, 0, v{tmp+1}")
    for i in (0, 1, 4, 5): e(f"v_mov_b32 v{base+i}, 0")
    e(f"v_cndmask_b32 v{base+2}, 0, v{tmp}, vcc")
    e(f"v_sub_u32 v{base+3}, v{tmp}, v{base+2}")

def wo_dma(cfg, kc):
    T = vT
    G = []
    for n in range(16):
        pre = []
        if n % 4 == 0:
            pre.append(f"s_add_u32 {sT0}, {sT1}, {kc*65536 + (n>>2)*16384}")
            pre.append(f"s_add_u32 m0, {sT2}, {(kc&1)*16384 + (n>>2)*4096}")
        G.append((pre, f"buffer_load_dwordx4 v{T+(n&3)}, {SWO}, {sT0} offen offset:{1024*(n&3)} {cfg.polw} lds ; tag=pO{kc} loc={','.join('u%d' % (2*w + (kc&1)) for w in range(4))}"))
    return G

def oproj(e, cfg):
    T = vT
    e("s_barrier")
    e(f"s_lshl_b32 {sT1}, {sW}, 8")
    e(f"s_lshl_b32 {sT2}, {sW}, 15")
    for n in range(4):
        e(f"v_and_b32 v3, 0xff, v{vVD+(n&1)}")
        e(f"v_add_u32 v25, {3*n}, v{vG}")
        e(f"v_lshl_add_u32 v{T+n}, v25, 10, v3")
    for l in flat(wo_dma(cfg, 0)): e(l)
    for l in flat(wo_dma(cfg, 1)): e(l)
    for qt in range(2): e(f"v_accvgpr_read_b32 v{26+qt}, a{aL+4*qt}")
    e("s_nop 0")
    for qt in range(2): e(f"v_rcp_f32 v{26+qt}, v{26+qt}")
    e(f"s_lshr_b32 {sT0}, {sW}, 1"); e(f"s_lshl_b32 {sT0}, {sT0}, 14")
    e(f"s_and_b32 s62, {sW}, 1"); e("s_lshl_b32 s62, s62, 11")
    e(f"s_add_u32 {sT0}, {sT0}, s62")
    e(f"v_lshlrev_b32 v28, 4, v{vLANE}")
    e(f"v_add_u32 v28, {XBASE}, v28")
    e(f"v_add_u32 v29, {sT0}, v28")
    for qt in range(2):
        for s in range(4):
            a = vO + (qt * 8 + 2 * s) * 4
            q = vQ + (qt * 4 + s) * 4
            for j in range(8): e(f"v_mul_f32 v{a+j}, v{26+qt}, v{a+j}")
            for j in range(4): e(f"v_cvt_pk_bf16_f32 v{q+j}, v{a+2*j}, v{a+2*j+1}")
            e(f"ds_write_b128 v29, {vr(q)} offset:{(s*4+qt)*1024}")
    vW = T + 16
    e(f"s_sub_u32 {sT0}, {sT2}, {VBASE}")
    for dt in range(8): e(f"v_add_u32 v{vW+dt}, {sT0}, v{vVA+dt}")
    e("s_waitcnt lgkmcnt(0)")
    e("s_barrier")
    stamp(e, cfg, 3)
    st = Stream()
    D = 12
    for _ in range(D): st.add(None)
    def wfrag(ks8, nt): return aVF + (((ks8 & 1) * 8 + nt) % 16) * 4
    for ks8 in range(8):
        for nt in range(8):
            for q4 in range(4):
                acc = vr(vO + (q4 * 8 + nt) * 4)
                st.add(f"{MF} {acc}, {ar(wfrag(ks8, nt))}, {ar((ks8*4+q4)*4)}, {'0' if ks8 == 0 else acc}")
    for ks8 in range(8):
        g0 = 32 * ks8
        kc, ks = ks8 >> 1, ks8 & 1
        rd = [f"ds_read_b128 {ar((ks8*4+q4)*4)}, v28 offset:{(ks8*4+q4)*1024} ; rd=G" for q4 in range(4)]
        for nt in range(8):
            for u in range(2):
                rd.append(f"ds_read_b64_tr_b16 {ar(wfrag(ks8, nt) + 2*u, 2)}, v{vW+nt} offset:{(kc&1)*16384 + ks*8192 + u*4096} ; rd=pO{kc}")
        if ks == 0:
            st.force(g0, f"@vmwait pO{kc}")
            if kc >= 1 and kc + 1 < 4:
                place_dma(st, wo_dma(cfg, kc + 1), g0 + D + 1, g0 + D + 36)
        st.spread(rd, g0, g0 + 29)
    for l in st.lines(): e(l)
    stamp(e, cfg, 4)
    e("s_nop 7")
    e(f"s_lshl_b32 {sT0}, {sGRP}, 20")
    e(f"s_lshl_b32 {sT1}, {sW}, 18")
    e(f"s_add_u32 {sT0}, {sT0}, {sT1}")
    e(f"s_lshl_b32 {sT1}, {sMEM}, 10")
    e(f"s_add_u32 {sT0}, {sT0}, {sT1}")
    e(f"v_lshlrev_b32 v28, 4, v{vLANE}")
    k = 0
    for m in range(4):
        for q4 in range(4):
            a = vO + (q4 * 8 + 2 * m) * 4
            q = vS + 4 * k; k += 1
            for j in range(4): e(f"v_cvt_pk_bf16_f32 v{q+j}, v{a+2*j}, v{a+2*j+1}")
            e(f"s_add_u32 {sT1}, {sT0}, {(m*4+q4)*16384}")
            e(f"buffer_store_dwordx4 {vr(q)}, v28, {SWS}, {sT1} offen {cfg.polst}")

def diag_dump(e, cfg, n):
    if not cfg.diag: return
    e("s_waitcnt vmcnt(0)")
    stamp(e, cfg, n - 1)
    if cfg.spin >= 0:
        e(f"s_sub_u32 s3, s{70+2*cfg.spin}, s70")
        e("s_min_u32 s3, s3, 20000")
        e("L_spin:")
        e("s_memrealtime s[62:63]")
        e("s_waitcnt lgkmcnt(0)")
        e(f"s_sub_u32 s62, s62, s{70+2*(n-1)}")
        e("s_cmp_lt_u32 s62, s3")
        e("s_cbranch_scc1 L_spin")
        return
    e("s_lshl_b32 s3, s2, 6")
    e("s_add_u32 s3, s3, 0x8000000")
    e("v_mov_b32 v3, s3")
    for k in range(n):
        e(f"v_mov_b32 v4, s{70+2*k}")
        e(f"buffer_store_dword v4, v3, {SWS}, 0 offen offset:{4*k}")

def reduce_kernel(cfg):
    L = []; e = L.append
    e("s_cmp_ge_u32 s2, 256")
    e("s_cbranch_scc1 R_end")
    e("s_load_dwordx2 s[28:29], s[0:1], 80")
    e("s_load_dwordx2 s[24:25], s[0:1], 96")
    e(f"s_lshr_b32 {sGRP}, s2, 4")
    e(f"s_and_b32 {sHKV}, s2, 7")
    e(f"s_bfe_u32 {sP}, s2, 0x10003")
    e("v_lshrrev_b32 v1, 6, v0")
    e(f"v_and_b32 v{vLANE}, 63, v0")
    e(f"v_readfirstlane_b32 {sW}, v1")
    e(f"v_and_b32 v{vI15}, 15, v0")
    e(f"v_lshrrev_b32 v{vG}, 4, v{vLANE}")
    srd(e, SWS, 0, 0, 268435456)
    srd(e, SOUT, 0, 0, 1048576)
    reduce_body(e, cfg)
    e("R_end:")
    e("s_endpgm")
    return L

def reduce_body(e, cfg, pol=""):
    e(f"s_and_b32 {sT0}, {sW}, 1"); e(f"s_lshl_b32 {sT1}, {sHKV}, 1"); e(f"s_add_u32 {sT0}, {sT0}, {sT1}")
    e(f"s_lshr_b32 {sT1}, {sW}, 1"); e(f"s_lshl_b32 {sT2}, {sP}, 1"); e(f"s_add_u32 {sT1}, {sT1}, {sT2}")
    e(f"s_lshl_b32 {sT2}, {sGRP}, 20")
    e(f"s_lshl_b32 s62, {sT0}, 16"); e(f"s_add_u32 {sT2}, {sT2}, s62")
    e(f"s_lshl_b32 s62, {sT1}, 14"); e(f"s_add_u32 {sT2}, {sT2}, s62")
    e(f"v_lshlrev_b32 v28, 4, v{vLANE}")
    e("s_waitcnt lgkmcnt(0)")
    for j in range(16):
        if j and j % 4 == 0: e(f"s_add_u32 {sT2}, {sT2}, 4096")
        e(f"buffer_load_dwordx4 {vr(32+4*j)}, v28, {SWS}, {sT2} offen offset:{1024*(j&3)} {pol}")
    selector(e, 8, 2)
    e(f"s_and_b32 s62, {sGRP}, 7"); e("s_lshl_b32 s62, s62, 17")
    e(f"s_lshl_b32 {sT1}, {sT1}, 15"); e(f"s_add_u32 s62, s62, {sT1}")
    e(f"s_lshr_b32 {sT1}, {sGRP}, 3"); e(f"s_lshl_b32 {sT1}, {sT1}, 10"); e(f"s_add_u32 s62, s62, {sT1}")
    e(f"s_lshl_b32 {sT0}, {sT0}, 6"); e(f"s_add_u32 s62, s62, {sT0}")
    e(f"v_lshlrev_b32 v2, 11, v{vI15}")
    e(f"v_lshl_add_u32 v2, v{vG}, 4, v2")
    for j in range(16):
        e(f"{MF} v[16:19], v[10:13], {vr(32+4*j)}, {'0' if j == 0 else 'v[16:19]'}")
        e(f"{MF} v[4:7], v[8:11], {vr(32+4*j)}, {'0' if j == 0 else 'v[4:7]'}")
    e("s_nop 7")
    e("v_cvt_pk_bf16_f32 v16, v16, v17"); e("v_cvt_pk_bf16_f32 v17, v18, v19")
    e("v_cvt_pk_bf16_f32 v18, v4, v5"); e("v_cvt_pk_bf16_f32 v19, v6, v7")
    for op in ("v_permlane32_swap_b32", "v_permlane16_swap_b32"):
        e("s_nop 1")
        e(f"{op} v16, v18"); e(f"{op} v17, v19")
    e(f"buffer_store_dwordx4 v[16:19], v2, {SOUT}, s62 offen")

def finish(L):
    L = auto_wait(L)
    L, nn = hazard.fix(L)
    if '-v' in sys.argv: print("auto nops", nn)
    L, bad = align.align8(L)
    errs = hazard.check(L, verbose=('-v' in sys.argv))
    assert not errs, errs[:5]
    errs = lds_check(L)
    assert not errs, errs[:5]
    return L

def gen(cfg):
    L = []; e = L.append
    prologue(e, cfg)
    qproj(e, cfg)
    stamp(e, cfg, 1)
    attention(e, cfg)
    stamp(e, cfg, 2)
    oproj(e, cfg)
    diag_dump(e, cfg, 6)
    e("L_end:")
    e("s_endpgm")
    L = finish(L)
    R = finish(reduce_kernel(cfg))
    RN = "reduce_kernel"
    s = header([f"@launch kernel={KNAME} grid=(256,1,1) block=(256,1,1) lds=163840",
                f"@launch kernel={RN} grid=(256,1,1) block=(256,1,1) lds=0"])
    fmt = lambda X: "\n".join((x if x.endswith(':') else "  " + x.split(' ; ')[0].rstrip()) for x in X) + "\n"
    s += kernel_begin(KNAME) + fmt(L)
    s += kernel_begin(RN) + fmt(R)
    s += rodata([descriptor(KNAME), descriptor(RN, vgpr=96, accum=96)])
    return s

if __name__ == "__main__":
    out = sys.argv[1]
    kw = {}
    for a in sys.argv[2:]:
        if '=' in a:
            k, v = a.split('=', 1)
            kw[k] = int(v) if v.lstrip('-').isdigit() else v.replace('+', ' ')
    open(out, "w").write(gen(Cfg(**kw)))
```

```python
import sys, struct
from gen_common import *
import hazard, align
from sched import Stream, auto_wait, lds_check

MF = "v_mfma_f32_16x16x32_bf16"
def f2u(x): return struct.unpack('<I', struct.pack('<f', x))[0]
QSCALE = f2u(1.4426950408889634 * 128 ** -0.5)

def vr(a, n=4): return f"v[{a}:{a+n-1}]"
def ar(a, n=4): return f"a[{a}:{a+n-1}]"

SX, SK, SV, SWQ, SWO, SWS, SOUT, SDBG = (f"s[{i}:{i+3}]" for i in (4, 8, 12, 16, 20, 24, 28, 32))
sHKV, sP, sB, sBR, sW, sW4K, sROT = "s36", "s37", "s38", "s39", "s40", "s41", "s42"
sKO, sVO, sT0, sT1, sT2, sJ0, sJ1, sGRP, sMEM = "s43", "s44", "s45", "s46", "s47", "s58", "s59", "s60", "s61"
vKA, vVA, vKD, vVD = 4, 8, 16, 20
vLANE, vI15, vG = 22, 23, 24
vS, vP, vCI, vQ, vO = 32, 48, 56, 72, 128
vT = 104
aQ, aKF, aVF, aL, aONE = 0, 64, 128, 192, 208
VBASE, XBASE = 65536, 131072
FLAGB = 0x1000000
OOB = 0x40000000
vFL = 30

class Cfg:
    C0 = 32; R = 0; C1 = 0
    polkv = "nt"; polx = ""; polw = ""; polst = ""
    diag = False; spin = -1
    fuse = 1; pf = 0
    expoff = 8
    dK = 3; dV = 2
    def __init__(self, **kw):
        self.__dict__.update(kw)

def stamp(e, cfg, k):
    if cfg.diag:
        e(f"s_memrealtime s[{70+2*k}:{71+2*k}]")
        e("s_waitcnt lgkmcnt(0)")

def srd(e, base, lo, hi, size):
    n = int(base[2:base.index(':')])
    e(f"s_mov_b32 s{n+2}, {size}")
    e(f"s_mov_b32 s{n+3}, 0x20000")

def prologue(e, cfg):
    e("s_cmp_ge_u32 s2, 256")
    e("s_cbranch_scc1 L_end")
    e(f"s_lshr_b32 {sBR}, s2, 7")
    e(f"s_mul_i32 {sT0}, {sBR}, 40")
    e(f"s_add_u32 s62, s0, {sT0}")
    e("s_addc_u32 s63, s1, 0")
    e("s_load_dwordx8 s[48:55], s[62:63], 0")
    e("s_load_dwordx2 s[56:57], s[62:63], 32")
    e("s_load_dwordx4 s[64:67], s[0:1], 80")
    e("s_load_dwordx2 s[24:25], s[0:1], 96")
    if cfg.diag: e("s_memrealtime s[70:71]")
    e(f"s_and_b32 {sHKV}, s2, 7")
    e(f"s_bfe_u32 {sP}, s2, 0x10003")
    e(f"s_bfe_u32 {sB}, s2, 0x30004")
    e(f"s_lshr_b32 {sGRP}, s2, 4")
    e(f"s_lshl_b32 {sMEM}, {sHKV}, 1")
    e(f"s_add_u32 {sMEM}, {sMEM}, {sP}")
    e(f"s_lshl_b32 {sROT}, {sP}, 2")
    e(f"s_add_u32 {sROT}, {sROT}, {sB}")
    e(f"s_and_b32 {sROT}, {sROT}, 7")
    e("v_lshrrev_b32 v1, 6, v0")
    e(f"v_and_b32 v{vLANE}, 63, v0")
    e(f"v_readfirstlane_b32 {sW}, v1")
    e(f"v_and_b32 v{vI15}, 15, v0")
    e(f"v_lshrrev_b32 v{vG}, 4, v{vLANE}")
    e(f"s_lshl_b32 {sW4K}, {sW}, 12")
    T = vT
    e(f"v_lshl_add_u32 v2, v1, 4, v{vG}")
    e(f"s_lshl_b32 {sT0}, {sROT}, 7")
    for n in range(4):
        e(f"v_add_u32 v3, {4*n}, v{vG}")
        e(f"v_xor_b32 v3, v3, v{vI15}")
        e(f"v_lshlrev_b32 v{vKD+n}, 4, v3")
        e(f"v_add_u32 v{T+n}, {sT0}, v{vKD+n}")
        e(f"v_add_u32 v3, {3*n}, v2")
        e(f"v_lshlrev_b32 v{T+4+n}, 10, v3")
    for n in range(2):
        e(f"v_add_u32 v3, {4*n}, v{vG}")
        e("v_lshlrev_b32 v3, 1, v3")
        e(f"v_xor_b32 v3, v3, v{vI15}")
        e(f"v_lshlrev_b32 v{vVD+n}, 4, v3")
    e("v_lshrrev_b32 v3, 1, v1")
    e(f"v_lshl_add_u32 v3, v3, 5, v{vG}")
    e("v_and_b32 v25, 1, v1")
    e("v_lshl_add_u32 v3, v25, 2, v3")
    e("v_lshlrev_b32 v3, 13, v3")
    for n in range(4):
        e(f"v_add_u32 v{T+8+n}, {n*(65536-1024)}, v3")
        e(f"v_add_u32 v{T+8+n}, v{T+8+n}, v{vVD+(n&1)}")
    e("s_waitcnt lgkmcnt(0)")
    e(f"s_lshl_b32 {sT0}, {sB}, 16")
    e(f"s_add_u32 s4, s48, {sT0}"); e("s_addc_u32 s5, s49, 0"); srd(e, SX, 0, 0, 65536)
    e(f"s_lshl_b32 {sT0}, {sMEM}, 9")
    e(f"s_add_u32 s16, s54, {sT0}"); e("s_addc_u32 s17, s55, 0")
    e(f"s_sub_u32 s18, 4194304, {sT0}"); e("s_mov_b32 s19, 0x20000")

def flags_clear(e, cfg):
    srd(e, SWS, 0, 0, 268435456)
    e(f"s_lshl_b32 {sT0}, {sGRP}, 11")
    e(f"s_add_u32 {sT0}, {sT0}, {FLAGB}")
    e(f"s_lshl_b32 {sT1}, {sMEM}, 7")
    e(f"s_add_u32 {sT1}, {sT1}, {sT0}")
    e(f"v_lshl_add_u32 v{vFL}, v{vI15}, 2, {sT1}")
    e(f"s_lshl_b32 {sT1}, {sW}, 9")
    e(f"s_add_u32 {sT1}, {sT1}, {sT0}")
    e(f"s_lshl_b32 s62, {sMEM}, 2")
    e(f"s_add_u32 {sT1}, {sT1}, s62")
    e(f"v_lshl_add_u32 v29, v{vLANE}, 7, {sT1}")
    e(f"v_mov_b32 v31, {OOB}")
    e(f"v_cmp_gt_u32 vcc, 4, v{vLANE}")
    e("v_cndmask_b32 v29, v31, v29, vcc")
    e("v_mov_b32 v31, 0")
    e(f"buffer_store_dword v31, v29, {SWS}, 0 offen sc1 ; tag=CLR")

def flags_announce(cfg):
    return [f"buffer_atomic_add v28, v27, {SDBG}, 0 offen sc1"]

def poll(e, name, voff, srdn, val):
    e(f"s_mov_b32 {sT0}, 0")
    e(f"{name}:")
    e(f"buffer_load_dword v31, v{voff}, {srdn}, 0 offen sc1")
    e(f"s_add_u32 {sT0}, {sT0}, 1")
    e("s_waitcnt vmcnt(0)")
    e(f"v_cmp_ne_u32 vcc, {val}, v31")
    e(f"s_cmp_ge_u32 {sT0}, 0x200000")
    e(f"s_cbranch_scc1 {name}_x")
    e(f"s_cbranch_vccnz {name}")
    e(f"{name}_x:")

def prologue2(e, cfg):
    e(f"s_lshl_b32 {sT0}, {sB}, 3")
    e(f"s_add_u32 {sT0}, {sT0}, {sHKV}")
    e(f"s_lshl_b32 {sT0}, {sT0}, 19")
    e(f"s_add_u32 s8, s50, {sT0}"); e("s_addc_u32 s9, s51, 0"); srd(e, SK, 0, 0, 524288)
    e(f"s_add_u32 s12, s52, {sT0}"); e("s_addc_u32 s13, s53, 0"); srd(e, SV, 0, 0, 524288)
    e(f"s_lshl_b32 {sT0}, {sMEM}, 18")
    e(f"s_add_u32 s20, s56, {sT0}"); e("s_addc_u32 s21, s57, 0"); srd(e, SWO, 0, 0, 262144)
    if not cfg.fuse: srd(e, SWS, 0, 0, 268435456)
    e("s_mov_b32 s28, s64"); e("s_mov_b32 s29, s65"); srd(e, SOUT, 0, 0, 1048576)
    e("s_mov_b32 s32, s66"); e("s_mov_b32 s33, s67"); srd(e, SDBG, 0, 0, 256)
    e(f"s_mov_b32 {sKO}, 0"); e(f"s_mov_b32 {sVO}, 0")
    e(f"s_mul_i32 {sJ0}, {sP}, {cfg.R*16384}")
    e(f"s_sub_u32 {sJ1}, {cfg.R*16384}, {sJ0}")
    e(f"s_add_u32 {sJ0}, {sJ0}, 16384"); e(f"s_add_u32 {sJ1}, {sJ1}, 16384")
    e("v_lshlrev_b32 v3, 8, v2")
    for n in range(4): e(f"v_add_u32 v{vKD+n}, v{vKD+n}, v3")
    for n in range(2): e(f"v_add_u32 v{vVD+n}, v{vVD+n}, v3")
    e(f"v_xor_b32 v3, v{vG}, v{vI15}")
    e(f"v_lshlrev_b32 v25, 8, v{vI15}")
    for s in range(4):
        e(f"v_xor_b32 v26, {4*s}, v3")
        e(f"v_lshl_add_u32 v{vKA+s}, v26, 4, v25")
    e(f"v_lshrrev_b32 v3, 2, v{vI15}")
    e(f"v_lshl_add_u32 v3, v{vG}, 2, v3")
    e("v_and_b32 v25, 7, v3")
    e("v_lshlrev_b32 v3, 8, v3")
    e(f"v_and_b32 v26, 3, v{vI15}")
    e("v_lshl_add_u32 v3, v26, 3, v3")
    e(f"v_add_u32 v3, {VBASE}, v3")
    for dt in range(8):
        e(f"v_xor_b32 v26, {dt}, v25")
        e(f"v_lshl_add_u32 v{vVA+dt}, v26, 5, v3")

def x_dma(cfg, j):
    T = vT
    L = [f"s_add_u32 m0, {sW4K}, {j*16384}"]
    for n in range(4):
        L.append(f"v_add_u32 v{T+12+n}, {256*j}, v{T+n}")
        L.append(f"v_and_or_b32 v{T+12+n}, v{T+12+n}, {sT2}, v{T+4+n}")
    for n in range(4):
        L.append(f"buffer_load_dwordx4 v{T+12+n}, {SX}, 0 offen offset:{1024*n} {cfg.polx} lds")
    return L

def wq_dma(cfg, i):
    T = vT
    G = []
    for hh in range(2):
        for n in range(4):
            pre = []
            if n == 0:
                if hh == 0:
                    pre += [f"s_add_u32 {sT0}, {sROT}, {i}", f"s_and_b32 {sT0}, {sT0}, 7", f"s_lshl_b32 {sT0}, {sT0}, 19"]
                else:
                    pre += [f"s_add_u32 {sT0}, {sT0}, 256"]
                pre += [f"s_add_u32 m0, {sW4K}, {VBASE + hh*49152 + (i%3)*16384}"]
            G.append((pre, f"buffer_load_dwordx4 v{T+8+n}, {SWQ}, {sT0} offen offset:{1024*n} {cfg.polw} lds ; tag=W{i} loc=u{4 + hh*3 + i%3}"))
    return G

def kslot(t): return (t & 3) * 16384
def vslot(t): return ((t + 2) & 3) * 16384

def kv_dma(cfg, which, t):
    so = sKO if which == 'K' else sVO
    G = []
    for n in range(4):
        pre = []
        if n == 0:
            if t > 0:
                inc = sJ0 if (t == cfg.C0 and cfg.R) else sJ1 if (t == cfg.C0 + cfg.R and cfg.R) else "0x4000"
                pre.append(f"s_add_u32 {so}, {so}, {inc}")
            pre.append(f"s_add_u32 m0, {sW4K}, {kslot(t) if which == 'K' else VBASE + vslot(t)}")
        v = vKD + n if which == 'K' else vVD + (n & 1)
        G.append((pre, f"buffer_load_dwordx4 v{v}, {SK if which == 'K' else SV}, {so} offen offset:{1024*n} {cfg.polkv} lds"))
    return G

def flat(G):
    L = []
    for pre, d in G:
        L += pre
        if pre and 'm0' in pre[-1]: L.append("s_nop 0")
        L.append(d)
    return L

def place_dma(st, G, g0, g1):
    nsal = sum(len(p) for p, _ in G)
    ch = st.spread([d for _, d in G], g0 + len(G[0][0]), g1)
    prev = g0 - 1
    for (pre, d), g in zip(G, ch):
        lo = prev + 1 if prev >= g0 else g0
        assert not pre or g - lo >= 1, (g, lo, pre)
        k = len(pre)
        for idx, s in enumerate(pre):
            gg = min(max(lo, g - k + idx), g - 1)
            st.force(gg, s)
        prev = g

def qproj(e, cfg):
    T = vT
    if cfg.fuse: flags_clear(e, cfg)
    if cfg.pf:
        e("s_getpc_b64 s[88:89]")
        e("L_pf:")
        e("s_mov_b32 s90, L_end-L_pf"); e("s_mov_b32 s91, 0x20000")
        e(f"s_lshr_b32 {sT0}, s2, 3"); e(f"s_lshl_b32 {sT0}, {sT0}, 11")
        e(f"v_lshl_add_u32 v31, v0, 7, {sT0}")
        e(f"v_mov_b32 v3, {OOB}")
        e("v_cmp_gt_u32 vcc, 16, v0")
        e("v_cndmask_b32 v3, v3, v31, vcc")
        e(f"buffer_load_dword v{vP+7}, v3, s[88:91], 0 offen")
    e(f"s_movk_i32 {sT2}, 0x3ff")
    for l in x_dma(cfg, 0): e(l)
    for l in flat(wq_dma(cfg, 0)): e(l)
    for l in x_dma(cfg, 1): e(l)
    for l in flat(wq_dma(cfg, 1)): e(l)
    prologue2(e, cfg)
    for l in x_dma(cfg, 2): e(l)
    for l in x_dma(cfg, 3): e(l)
    vX, vW = T + 0, T + 16
    e(f"s_and_b32 {sT1}, {sW}, 1"); e(f"s_lshl_b32 {sT1}, {sT1}, 13")
    for s in range(4): e(f"v_add_u32 v{vX+s}, {sT1}, v{vKA+s}")
    e(f"s_lshr_b32 {sT1}, {sW}, 1"); e(f"s_mul_i32 {sT1}, {sT1}, 49152")
    for dt in range(8): e(f"v_add_u32 v{vW+dt}, {sT1}, v{vVA+dt}")
    if cfg.fuse:
        e(f"s_lshl_b32 {sT1}, {sGRP}, 4")
        e(f"v_mov_b32 v27, {OOB}"); e(f"v_mov_b32 v28, {sT1}")
        e("v_cmp_eq_u32 vcc, 0, v0")
        e("v_cndmask_b32 v27, v27, v28, vcc")
        e("v_mov_b32 v28, 1")
    for i in range(4): e(f"v_mov_b32 v3, 0x3f803f80") if i == 0 else None
    for i in range(4): e(f"v_accvgpr_write_b32 a{aONE+i}, v3")
    st = Stream()
    D = 10
    for _ in range(D): st.add(None)
    def xfrag(i, ks, qq): return ((i * 2 + ks) * 2 + qq) * 4 % 64
    def wfrag(i, ks, dt): return aVF + ((ks * 8 + dt) % 16) * 4
    for i in range(8):
        for ks in range(2):
            for dt in range(8):
                for qq in range(2):
                    acc = vr(vO + (qq * 8 + dt) * 4)
                    c = "0" if (i == 0 and ks == 0) else acc
                    st.add(f"{MF} {acc}, {ar(wfrag(i, ks, dt))}, {ar(xfrag(i, ks, qq))}, {c}")
    for i in range(8):
        g0 = 32 * i
        need = f"W{i}" + (f",X{i>>1}" if i % 2 == 0 else "") + (",CLR" if i == 0 else "")
        st.force(g0, f"@vmwait {need} lgkm0")
        st.force(g0, "s_barrier")
        if i == 0 and cfg.fuse:
            for l in flags_announce(cfg): st.force(g0, l)
        rd = []
        for ks in range(2):
            for qq in range(2):
                s = 2 * (i & 1) + ks
                rd.append(f"ds_read_b128 {ar(xfrag(i, ks, qq))}, v{vX+s} offset:{(i>>1)*16384 + qq*4096} ; rd=X{i>>1}")
            for dt in range(8):
                for u in range(2):
                    rd.append(f"ds_read_b64_tr_b16 {ar(wfrag(i, ks, dt) + 2*u, 2)}, v{vW+dt} offset:{(i%3)*16384 + ks*8192 + u*4096} ; rd=W{i}")
        if i + 2 < 8: G = wq_dma(cfg, i + 2)
        else: G = kv_dma(cfg, 'K', i - 6) + kv_dma(cfg, 'V', i - 6)
        place_dma(st, G, g0 + 1, g0 + 26)
        st.spread(rd, g0, g0 + 27)
    for l in st.lines(): e(l)
    e("s_nop 7")
    e(f"s_mov_b32 {sT0}, {hex(QSCALE)}")
    for qq in range(2):
        for s in range(4):
            a = vO + (qq * 8 + 2 * s) * 4
            q = vQ + (qq * 4 + s) * 4
            for j in range(8): e(f"v_mul_f32 v{a+j}, {sT0}, v{a+j}")
            for j in range(4): e(f"v_cvt_pk_bf16_f32 v{q+j}, v{a+2*j}, v{a+2*j+1}")
    e("s_nop 1")
    for op in ("v_permlane32_swap_b32", "v_permlane16_swap_b32"):
        for f in range(8):
            q = vQ + f * 4
            e(f"{op} v{q}, v{q+2}"); e(f"{op} v{q+1}, v{q+3}")

def Qreg(qt, s):
    return vr(vQ + (qt * 4 + s) * 4) if qt < 2 else ar(aQ + ((qt - 2) * 4 + s) * 4)

def k_reads(kb):
    t, half = kb >> 1, kb & 1
    return [f"ds_read_b128 {ar(aKF + (kb & 1)*32 + (kt*4+s)*4)}, v{vKA+s} offset:{kslot(t) + half*8192 + kt*4096} ; rd=K{t}" for kt in range(2) for s in range(4)]
def v_reads(kb):
    t, half = kb >> 1, kb & 1
    return [f"ds_read_b64_tr_b16 {ar(aVF + (kb & 1)*32 + dt*4 + 2*u, 2)}, v{vVA+dt} offset:{vslot(t) + half*8192 + u*4096} ; rd=V{t}" for dt in range(8) for u in range(2)]

def attention(e, cfg):
    NT = cfg.C0 + cfg.R + cfg.C1
    NKB = 2 * NT
    def qts(kb): return [0, 1, 2, 3] if cfg.C0 <= (kb >> 1) < cfg.C0 + cfg.R else [0, 1]
    mu = [(kb, qt) for kb in range(NKB) for qt in qts(kb)]
    e("@vmwait K0,V0 lgkm0")
    e("s_barrier")
    for l in k_reads(0): e(l)
    for l in v_reads(0): e(l)
    issued = {'K': 2, 'V': 2}
    for wh, d in (('K', cfg.dK), ('V', cfg.dV)):
        while issued[wh] < min(d + 1, NT):
            for l in flat(kv_dma(cfg, wh, issued[wh])): e(l)
            issued[wh] += 1
    for qt in range(2):
        for s in range(4):
            d = vr(vS + 4 * qt)
            e(f"{MF} {d}, {ar(aKF + s*4)}, {Qreg(qt, s)}, {'0' if s == 0 else d}")
    e("s_nop 7")
    for qt in range(2):
        a = vS + 4 * qt
        e(f"v_max3_f32 v{a}, v{a}, v{a+1}, v{a+2}")
        e(f"v_max_f32 v{a}, v{a}, v{a+3}")
    for op in ("v_permlane32_swap_b32", "v_permlane16_swap_b32"):
        for qt in range(2): e(f"v_mov_b32 v{vS+4*qt+1}, v{vS+4*qt}")
        e("s_nop 1")
        for qt in range(2): e(f"{op} v{vS+4*qt}, v{vS+4*qt+1}")
        e("s_nop 0")
        for qt in range(2): e(f"v_max_f32 v{vS+4*qt}, v{vS+4*qt}, v{vS+4*qt+1}")
    for qt in range(2):
        for j in range(4): e(f"v_sub_f32 v{vCI+4*qt+j}, 0, v{vS+4*qt}")
    e("s_nop 1")
    st = Stream()
    qk0 = {}; pv0 = {}
    seenO = set()
    for i in range(-1, len(mu)):
        if i + 1 < len(mu):
            kb, qt = mu[i + 1]
            qk0[i + 1] = st.n()
            for kt in range(2):
                d = vr(vS + ((i + 1) & 1) * 8 + kt * 4)
                for s in range(4):
                    st.add(f"{MF} {d}, {ar(aKF + (kb & 1)*32 + (kt*4+s)*4)}, {Qreg(qt, s)}, {vr(vCI + 4*qt) if s == 0 else d}")
        else:
            for _ in range(8): st.add(None)
        if i >= 0:
            kb, qt = mu[i]
            pv0[i] = st.n()
            p = vr(vP + (i & 1) * 4)
            first = qt not in seenO; seenO.add(qt)
            for dt in range(8):
                o = vr(vO + (qt * 8 + dt) * 4)
                st.add(f"{MF} {o}, {ar(aVF + (kb & 1)*32 + dt*4)}, {p}, {'0' if first else o}")
            l = ar(aL + 4 * qt)
            st.add(f"{MF} {l}, {ar(aONE)}, {p}, {'0' if first else l}")
        else:
            for _ in range(9): st.add(None)
    for i in range(len(mu)):
        g = qk0[i] + cfg.expoff
        sb = vS + (i & 1) * 8; pb = vP + (i & 1) * 4
        for j in range(8):
            st.force(g + 2 * j, f"v_exp_f32 v{sb+j}, v{sb+j}")
            if j & 1: st.force(g + 2 * j + 1, f"v_cvt_pk_bf16_f32 v{pb + j//2}, v{sb+j-1}, v{sb+j}")
    first_mu = {}
    for i, (kb, qt) in enumerate(mu): first_mu.setdefault(kb, i)
    for kb in range(NKB - 1):
        g0 = qk0[first_mu[kb]]
        g1 = qk0[first_mu[kb + 1]]
        gv = qk0[first_mu[kb] + 1]
        nb = kb + 1
        if nb % 2 == 0:
            t = nb >> 1
            st.force(g0, f"@vmwait K{t},V{t}")
            st.force(g0 + 1, "s_barrier")
            gk = g0 + 1
            G = []
            if t + cfg.dK < NT: place_dma(st, kv_dma(cfg, 'K', t + cfg.dK), g0 + 2, g1 - 1)
        else:
            gk = g0
            t = kb >> 1
            if t >= 1 and t + cfg.dV < NT: place_dma(st, kv_dma(cfg, 'V', t + cfg.dV), g0, g1 - 1)
        span = g1 - gk
        kend = max(gv - 1, gk + span // 3)
        st.spread(k_reads(nb), gk, min(kend, g1 - 8))
        st.spread(v_reads(nb), max(gv, kend + 1), g1 - 1)
    L = st.lines()
    for l in L: e(l)
    if '-v' in sys.argv:
        over = sum(max(0, u - 2) for u, m in zip(st.used, st.mf) if m)
        print("attention gaps", st.n(), "overfull slots", over)

def selector(e, base, tmp):
    e(f"v_lshrrev_b32 v{tmp}, 2, v{vI15}")
    e(f"v_cmp_eq_u32 vcc, v{tmp}, v{vG}")
    e(f"v_and_b32 v{tmp}, 1, v{vI15}")
    e(f"v_lshlrev_b32 v{tmp}, 4, v{tmp}")
    e(f"v_mov_b32 v{tmp+1}, 0x3f80")
    e(f"v_lshlrev_b32 v{tmp}, v{tmp}, v{tmp+1}")
    e(f"v_cndmask_b32 v{tmp}, 0, v{tmp}, vcc")
    e(f"v_and_b32 v{tmp+1}, 2, v{vI15}")
    e(f"v_cmp_eq_u32 vcc, 0, v{tmp+1}")
    for i in (0, 1, 4, 5): e(f"v_mov_b32 v{base+i}, 0")
    e(f"v_cndmask_b32 v{base+2}, 0, v{tmp}, vcc")
    e(f"v_sub_u32 v{base+3}, v{tmp}, v{base+2}")

def wo_dma(cfg, kc):
    T = vT
    G = []
    for n in range(16):
        pre = []
        if n % 4 == 0:
            pre.append(f"s_add_u32 {sT0}, {sT1}, {kc*65536 + (n>>2)*16384}")
            pre.append(f"s_add_u32 m0, {sT2}, {(kc&1)*16384 + (n>>2)*4096}")
        G.append((pre, f"buffer_load_dwordx4 v{T+(n&3)}, {SWO}, {sT0} offen offset:{1024*(n&3)} {cfg.polw} lds ; tag=pO{kc} loc={','.join('u%d' % (2*w + (kc&1)) for w in range(4))}"))
    return G

def oproj(e, cfg):
    T = vT
    e("s_barrier")
    e(f"s_lshl_b32 {sT1}, {sW}, 8")
    e(f"s_lshl_b32 {sT2}, {sW}, 15")
    for n in range(4):
        e(f"v_and_b32 v3, 0xff, v{vVD+(n&1)}")
        e(f"v_add_u32 v25, {3*n}, v{vG}")
        e(f"v_lshl_add_u32 v{T+n}, v25, 10, v3")
    for l in flat(wo_dma(cfg, 0)): e(l)
    for l in flat(wo_dma(cfg, 1)): e(l)
    for qt in range(2): e(f"v_accvgpr_read_b32 v{26+qt}, a{aL+4*qt}")
    e("s_nop 0")
    for qt in range(2): e(f"v_rcp_f32 v{26+qt}, v{26+qt}")
    e(f"s_lshr_b32 {sT0}, {sW}, 1"); e(f"s_lshl_b32 {sT0}, {sT0}, 14")
    e(f"s_and_b32 s62, {sW}, 1"); e("s_lshl_b32 s62, s62, 11")
    e(f"s_add_u32 {sT0}, {sT0}, s62")
    e(f"v_lshlrev_b32 v28, 4, v{vLANE}")
    e(f"v_add_u32 v28, {XBASE}, v28")
    e(f"v_add_u32 v25, {sT0}, v28")
    for qt in range(2):
        for s in range(4):
            a = vO + (qt * 8 + 2 * s) * 4
            q = vQ + (qt * 4 + s) * 4
            for j in range(8): e(f"v_mul_f32 v{a+j}, v{26+qt}, v{a+j}")
            for j in range(4): e(f"v_cvt_pk_bf16_f32 v{q+j}, v{a+2*j}, v{a+2*j+1}")
            e(f"ds_write_b128 v25, {vr(q)} offset:{(s*4+qt)*1024}")
    vW = T + 16
    e(f"s_sub_u32 {sT0}, {sT2}, {VBASE}")
    for dt in range(8): e(f"v_add_u32 v{vW+dt}, {sT0}, v{vVA+dt}")
    e("s_waitcnt lgkmcnt(0)")
    e("s_barrier")
    stamp(e, cfg, 3)
    st = Stream()
    D = 12
    for _ in range(D): st.add(None)
    def wfrag(ks8, nt): return aVF + (((ks8 & 1) * 8 + nt) % 16) * 4
    for ks8 in range(8):
        for nt in range(8):
            for q4 in range(4):
                acc = vr(vO + (q4 * 8 + nt) * 4)
                st.add(f"{MF} {acc}, {ar(wfrag(ks8, nt))}, {ar((ks8*4+q4)*4)}, {'0' if ks8 == 0 else acc}")
    for ks8 in range(8):
        g0 = 32 * ks8
        kc, ks = ks8 >> 1, ks8 & 1
        rd = [f"ds_read_b128 {ar((ks8*4+q4)*4)}, v28 offset:{(ks8*4+q4)*1024} ; rd=G" for q4 in range(4)]
        for nt in range(8):
            for u in range(2):
                rd.append(f"ds_read_b64_tr_b16 {ar(wfrag(ks8, nt) + 2*u, 2)}, v{vW+nt} offset:{(kc&1)*16384 + ks*8192 + u*4096} ; rd=pO{kc}")
        if ks == 0:
            st.force(g0, f"@vmwait pO{kc}")
            if kc >= 1 and kc + 1 < 4:
                place_dma(st, wo_dma(cfg, kc + 1), g0 + D + 1, g0 + D + 36)
        st.spread(rd, g0, g0 + 29)
    for l in st.lines(): e(l)
    stamp(e, cfg, 4)
    e("s_nop 7")
    e(f"s_lshl_b32 {sT0}, {sGRP}, 20")
    e(f"s_lshl_b32 {sT1}, {sW}, 18")
    e(f"s_add_u32 {sT0}, {sT0}, {sT1}")
    e(f"s_lshl_b32 {sT1}, {sMEM}, 10")
    e(f"s_add_u32 {sT0}, {sT0}, {sT1}")
    e(f"v_lshlrev_b32 v28, 4, v{vLANE}")
    k = 0
    for m in range(4):
        for q4 in range(4):
            a = vO + (q4 * 8 + 2 * m) * 4
            q = vS + 4 * k; k += 1
            for j in range(4): e(f"v_cvt_pk_bf16_f32 v{q+j}, v{a+2*j}, v{a+2*j+1}")
            e(f"s_add_u32 {sT1}, {sT0}, {(m*4+q4)*16384}")
            e(f"buffer_store_dwordx4 {vr(q)}, v28, {SWS}, {sT1} offen {cfg.polst}")

def fused_reduce(e, cfg):
    e("v_mov_b32 v31, 1")
    e("s_waitcnt vmcnt(0)")
    e(f"buffer_store_dword v31, v29, {SWS}, 0 offen sc1")
    stamp(e, cfg, 5)
    poll(e, "L_pollF", vFL, SWS, 1)
    stamp(e, cfg, 6)
    reduce_body(e, cfg, "sc1")

def group_ready(e, cfg):
    e(f"s_lshl_b32 {sT1}, {sGRP}, 4")
    e(f"v_mov_b32 v27, {sT1}")
    poll(e, "L_pollG", 27, SDBG, 16)

def diag_dump(e, cfg, n):
    if not cfg.diag: return
    e("s_waitcnt vmcnt(0)")
    stamp(e, cfg, n - 1)
    if cfg.spin >= 0:
        e(f"s_sub_u32 s3, s{70+2*cfg.spin}, s70")
        e("s_min_u32 s3, s3, 20000")
        e("L_spin:")
        e("s_memrealtime s[62:63]")
        e("s_waitcnt lgkmcnt(0)")
        e(f"s_sub_u32 s62, s62, s{70+2*(n-1)}")
        e("s_cmp_lt_u32 s62, s3")
        e("s_cbranch_scc1 L_spin")
        return
    e("s_lshl_b32 s3, s2, 6")
    e("s_add_u32 s3, s3, 0x8000000")
    e("v_mov_b32 v3, s3")
    for k in range(n):
        e(f"v_mov_b32 v4, s{70+2*k}")
        e(f"buffer_store_dword v4, v3, {SWS}, 0 offen offset:{4*k}")

def reduce_kernel(cfg):
    L = []; e = L.append
    e("s_cmp_ge_u32 s2, 256")
    e("s_cbranch_scc1 R_end")
    e("s_load_dwordx2 s[28:29], s[0:1], 80")
    e("s_load_dwordx2 s[24:25], s[0:1], 96")
    e(f"s_lshr_b32 {sGRP}, s2, 4")
    e(f"s_and_b32 {sHKV}, s2, 7")
    e(f"s_bfe_u32 {sP}, s2, 0x10003")
    e("v_lshrrev_b32 v1, 6, v0")
    e(f"v_and_b32 v{vLANE}, 63, v0")
    e(f"v_readfirstlane_b32 {sW}, v1")
    e(f"v_and_b32 v{vI15}, 15, v0")
    e(f"v_lshrrev_b32 v{vG}, 4, v{vLANE}")
    srd(e, SWS, 0, 0, 268435456)
    srd(e, SOUT, 0, 0, 1048576)
    reduce_body(e, cfg)
    e("R_end:")
    e("s_endpgm")
    return L

def reduce_body(e, cfg, pol=""):
    e(f"s_and_b32 {sT0}, {sW}, 1"); e(f"s_lshl_b32 {sT1}, {sHKV}, 1"); e(f"s_add_u32 {sT0}, {sT0}, {sT1}")
    e(f"s_lshr_b32 {sT1}, {sW}, 1"); e(f"s_lshl_b32 {sT2}, {sP}, 1"); e(f"s_add_u32 {sT1}, {sT1}, {sT2}")
    e(f"s_lshl_b32 {sT2}, {sGRP}, 20")
    e(f"s_lshl_b32 s62, {sT0}, 16"); e(f"s_add_u32 {sT2}, {sT2}, s62")
    e(f"s_lshl_b32 s62, {sT1}, 14"); e(f"s_add_u32 {sT2}, {sT2}, s62")
    e(f"v_lshlrev_b32 v28, 4, v{vLANE}")
    e("s_waitcnt lgkmcnt(0)")
    for j in range(16):
        if j and j % 4 == 0: e(f"s_add_u32 {sT2}, {sT2}, 4096")
        e(f"buffer_load_dwordx4 {vr(32+4*j)}, v28, {SWS}, {sT2} offen offset:{1024*(j&3)} {pol}")
    selector(e, 8, 2)
    e(f"s_and_b32 s62, {sGRP}, 7"); e("s_lshl_b32 s62, s62, 17")
    e(f"s_lshl_b32 {sT1}, {sT1}, 15"); e(f"s_add_u32 s62, s62, {sT1}")
    e(f"s_lshr_b32 {sT1}, {sGRP}, 3"); e(f"s_lshl_b32 {sT1}, {sT1}, 10"); e(f"s_add_u32 s62, s62, {sT1}")
    e(f"s_lshl_b32 {sT0}, {sT0}, 6"); e(f"s_add_u32 s62, s62, {sT0}")
    e(f"v_lshlrev_b32 v2, 11, v{vI15}")
    e(f"v_lshl_add_u32 v2, v{vG}, 4, v2")
    for j in range(16):
        e(f"{MF} v[16:19], v[10:13], {vr(32+4*j)}, {'0' if j == 0 else 'v[16:19]'}")
        e(f"{MF} v[4:7], v[8:11], {vr(32+4*j)}, {'0' if j == 0 else 'v[4:7]'}")
    e("s_nop 7")
    e("v_cvt_pk_bf16_f32 v16, v16, v17"); e("v_cvt_pk_bf16_f32 v17, v18, v19")
    e("v_cvt_pk_bf16_f32 v18, v4, v5"); e("v_cvt_pk_bf16_f32 v19, v6, v7")
    for op in ("v_permlane32_swap_b32", "v_permlane16_swap_b32"):
        e("s_nop 1")
        e(f"{op} v16, v18"); e(f"{op} v17, v19")
    e(f"buffer_store_dwordx4 v[16:19], v2, {SOUT}, s62 offen")

def finish(L):
    L = auto_wait(L)
    L, nn = hazard.fix(L)
    if '-v' in sys.argv: print("auto nops", nn)
    L, bad = align.align8(L)
    errs = hazard.check(L, verbose=('-v' in sys.argv))
    assert not errs, errs[:5]
    errs = lds_check(L)
    assert not errs, errs[:5]
    return L

def gen(cfg):
    L = []; e = L.append
    prologue(e, cfg)
    qproj(e, cfg)
    stamp(e, cfg, 1)
    attention(e, cfg)
    stamp(e, cfg, 2)
    if cfg.fuse: group_ready(e, cfg)
    oproj(e, cfg)
    if cfg.fuse: fused_reduce(e, cfg)
    diag_dump(e, cfg, 8 if cfg.fuse else 6)
    e("L_end:")
    e("s_endpgm")
    L = finish(L)
    fmt = lambda X: "\n".join((x if x.endswith(':') else "  " + x.split(' ; ')[0].rstrip()) for x in X) + "\n"
    if cfg.fuse:
        s = header(["@launch grid=(256,1,1) block=(256,1,1) lds=163840"])
        s += kernel_begin(KNAME) + fmt(L)
        s += rodata([descriptor(KNAME)])
        return s
    R = finish(reduce_kernel(cfg))
    RN = "reduce_kernel"
    s = header([f"@launch kernel={KNAME} grid=(256,1,1) block=(256,1,1) lds=163840",
                f"@launch kernel={RN} grid=(256,1,1) block=(256,1,1) lds=0"])
    fmt = lambda X: "\n".join((x if x.endswith(':') else "  " + x.split(' ; ')[0].rstrip()) for x in X) + "\n"
    s += kernel_begin(KNAME) + fmt(L)
    s += kernel_begin(RN) + fmt(R)
    s += rodata([descriptor(KNAME), descriptor(RN, vgpr=96, accum=96)])
    return s

if __name__ == "__main__":
    out = sys.argv[1]
    kw = {}
    for a in sys.argv[2:]:
        if '=' in a:
            k, v = a.split('=', 1)
            kw[k] = int(v) if v.lstrip('-').isdigit() else v.replace('+', ' ')
    open(out, "w").write(gen(Cfg(**kw)))
```

```python
import sys, struct
from gen_common import *
import hazard, align
from sched import Stream, auto_wait, lds_check

MF = "v_mfma_f32_16x16x32_bf16"
def f2u(x): return struct.unpack('<I', struct.pack('<f', x))[0]
QSCALE = f2u(1.4426950408889634 * 128 ** -0.5)

def vr(a, n=4): return f"v[{a}:{a+n-1}]"
def ar(a, n=4): return f"a[{a}:{a+n-1}]"

SX, SK, SV, SWQ, SWO, SWS, SOUT, SDBG = (f"s[{i}:{i+3}]" for i in (4, 8, 12, 16, 20, 24, 28, 32))
sHKV, sP, sB, sBR, sW, sW4K, sROT = "s36", "s37", "s38", "s39", "s40", "s41", "s42"
sKO, sVO, sT0, sT1, sT2, sJ0, sJ1, sGRP, sMEM = "s43", "s44", "s45", "s46", "s47", "s58", "s59", "s60", "s61"
vKA, vVA, vKD, vVD = 4, 8, 16, 20
vLANE, vI15, vG = 22, 23, 24
vS, vP, vCI, vQ, vO = 32, 48, 56, 72, 128
vT = 104
aQ, aKF, aVF, aL, aONE = 0, 64, 128, 192, 208
VBASE, XBASE = 65536, 131072
FLAGB = 0x1000000
OOB = 0x40000000
vFL = 30

class Cfg:
    C0 = 32; R = 0; C1 = 0
    polkv = "nt"; polx = ""; polw = ""; polst = "sc1"; polout = ""
    diag = False; spin = -1
    fuse = 1; pf = 0
    expoff = 8
    dK = 3; dV = 2
    def __init__(self, **kw):
        self.__dict__.update(kw)

def stamp(e, cfg, k):
    if cfg.diag:
        e(f"s_memrealtime s[{70+2*k}:{71+2*k}]")
        e("s_waitcnt lgkmcnt(0)")

def srd(e, base, lo, hi, size):
    n = int(base[2:base.index(':')])
    e(f"s_mov_b32 s{n+2}, {size}")
    e(f"s_mov_b32 s{n+3}, 0x20000")

def prologue(e, cfg):
    e("s_cmp_ge_u32 s2, 256")
    e("s_cbranch_scc1 L_end")
    e(f"s_lshr_b32 {sBR}, s2, 7")
    e(f"s_mul_i32 {sT0}, {sBR}, 40")
    e(f"s_add_u32 s62, s0, {sT0}")
    e("s_addc_u32 s63, s1, 0")
    e("s_load_dwordx8 s[48:55], s[62:63], 0")
    e("s_load_dwordx2 s[56:57], s[62:63], 32")
    e("s_load_dwordx4 s[64:67], s[0:1], 80")
    e("s_load_dwordx2 s[24:25], s[0:1], 96")
    if cfg.diag: e("s_memrealtime s[70:71]")
    e(f"s_and_b32 {sHKV}, s2, 7")
    e(f"s_bfe_u32 {sP}, s2, 0x10003")
    e(f"s_bfe_u32 {sB}, s2, 0x30004")
    e(f"s_lshr_b32 {sGRP}, s2, 4")
    e(f"s_lshl_b32 {sMEM}, {sHKV}, 1")
    e(f"s_add_u32 {sMEM}, {sMEM}, {sP}")
    e(f"s_lshl_b32 {sROT}, {sP}, 2")
    e(f"s_add_u32 {sROT}, {sROT}, {sB}")
    e(f"s_and_b32 {sROT}, {sROT}, 7")
    e("v_lshrrev_b32 v1, 6, v0")
    e(f"v_and_b32 v{vLANE}, 63, v0")
    e(f"v_readfirstlane_b32 {sW}, v1")
    e(f"v_and_b32 v{vI15}, 15, v0")
    e(f"v_lshrrev_b32 v{vG}, 4, v{vLANE}")
    e(f"s_lshl_b32 {sW4K}, {sW}, 12")
    T = vT
    e(f"v_lshl_add_u32 v2, v1, 4, v{vG}")
    e(f"s_lshl_b32 {sT0}, {sROT}, 7")
    for n in range(4):
        e(f"v_add_u32 v3, {4*n}, v{vG}")
        e(f"v_xor_b32 v3, v3, v{vI15}")
        e(f"v_lshlrev_b32 v{vKD+n}, 4, v3")
        e(f"v_add_u32 v{T+n}, {sT0}, v{vKD+n}")
        e(f"v_add_u32 v3, {3*n}, v2")
        e(f"v_lshlrev_b32 v{T+4+n}, 10, v3")
    for n in range(2):
        e(f"v_add_u32 v3, {4*n}, v{vG}")
        e("v_lshlrev_b32 v3, 1, v3")
        e(f"v_xor_b32 v3, v3, v{vI15}")
        e(f"v_lshlrev_b32 v{vVD+n}, 4, v3")
    e("v_lshrrev_b32 v3, 1, v1")
    e(f"v_lshl_add_u32 v3, v3, 5, v{vG}")
    e("v_and_b32 v25, 1, v1")
    e("v_lshl_add_u32 v3, v25, 2, v3")
    e("v_lshlrev_b32 v3, 13, v3")
    for n in range(4):
        e(f"v_add_u32 v{T+8+n}, {n*(65536-1024)}, v3")
        e(f"v_add_u32 v{T+8+n}, v{T+8+n}, v{vVD+(n&1)}")
    e("s_waitcnt lgkmcnt(0)")
    e(f"s_lshl_b32 {sT0}, {sB}, 16")
    e(f"s_add_u32 s4, s48, {sT0}"); e("s_addc_u32 s5, s49, 0"); srd(e, SX, 0, 0, 65536)
    e(f"s_lshl_b32 {sT0}, {sMEM}, 9")
    e(f"s_add_u32 s16, s54, {sT0}"); e("s_addc_u32 s17, s55, 0")
    e(f"s_sub_u32 s18, 4194304, {sT0}"); e("s_mov_b32 s19, 0x20000")

def flags_clear(e, cfg):
    srd(e, SWS, 0, 0, 268435456)
    e(f"s_lshl_b32 {sT0}, {sGRP}, 11")
    e(f"s_add_u32 {sT0}, {sT0}, {FLAGB}")
    e(f"s_lshl_b32 {sT1}, {sMEM}, 7")
    e(f"s_add_u32 {sT1}, {sT1}, {sT0}")
    e(f"v_lshl_add_u32 v{vFL}, v{vI15}, 2, {sT1}")
    e(f"s_lshl_b32 {sT1}, {sW}, 9")
    e(f"s_add_u32 {sT1}, {sT1}, {sT0}")
    e(f"s_lshl_b32 s62, {sMEM}, 2")
    e(f"s_add_u32 {sT1}, {sT1}, s62")
    e(f"v_lshl_add_u32 v29, v{vLANE}, 7, {sT1}")
    e(f"v_mov_b32 v31, {OOB}")
    e(f"v_cmp_gt_u32 vcc, 4, v{vLANE}")
    e("v_cndmask_b32 v29, v31, v29, vcc")
    e("v_mov_b32 v31, 0")
    e(f"buffer_store_dword v31, v29, {SWS}, 0 offen sc1 ; tag=CLR")

def flags_announce(cfg):
    return [f"buffer_atomic_add v28, v27, {SDBG}, 0 offen sc1"]

def poll(e, name, voff, srdn, val, cmp='ne'):
    e(f"s_mov_b32 {sT0}, 0")
    e(f"{name}:")
    e(f"buffer_load_dword v31, v{voff}, {srdn}, 0 offen sc1")
    e(f"s_add_u32 {sT0}, {sT0}, 1")
    e("s_waitcnt vmcnt(0)")
    e(f"v_cmp_{cmp}_u32 vcc, {val}, v31")
    e(f"s_cmp_ge_u32 {sT0}, 0x40000")
    e(f"s_cbranch_scc1 {name}_x")
    e(f"s_cbranch_vccnz {name}")
    e(f"{name}_x:")

def prologue2(e, cfg):
    e(f"s_lshl_b32 {sT0}, {sB}, 3")
    e(f"s_add_u32 {sT0}, {sT0}, {sHKV}")
    e(f"s_lshl_b32 {sT0}, {sT0}, 19")
    e(f"s_add_u32 s8, s50, {sT0}"); e("s_addc_u32 s9, s51, 0"); srd(e, SK, 0, 0, 524288)
    e(f"s_add_u32 s12, s52, {sT0}"); e("s_addc_u32 s13, s53, 0"); srd(e, SV, 0, 0, 524288)
    e(f"s_lshl_b32 {sT0}, {sMEM}, 18")
    e(f"s_add_u32 s20, s56, {sT0}"); e("s_addc_u32 s21, s57, 0"); srd(e, SWO, 0, 0, 262144)
    if not cfg.fuse: srd(e, SWS, 0, 0, 268435456)
    e("s_mov_b32 s28, s64"); e("s_mov_b32 s29, s65"); srd(e, SOUT, 0, 0, 1048576)
    e("s_mov_b32 s32, s66"); e("s_mov_b32 s33, s67"); srd(e, SDBG, 0, 0, 256)
    e(f"s_mov_b32 {sKO}, 0"); e(f"s_mov_b32 {sVO}, 0")
    e(f"s_mul_i32 {sJ0}, {sP}, {cfg.R*16384}")
    e(f"s_sub_u32 {sJ1}, {cfg.R*16384}, {sJ0}")
    e(f"s_add_u32 {sJ0}, {sJ0}, 16384"); e(f"s_add_u32 {sJ1}, {sJ1}, 16384")
    e("v_lshlrev_b32 v3, 8, v2")
    for n in range(4): e(f"v_add_u32 v{vKD+n}, v{vKD+n}, v3")
    for n in range(2): e(f"v_add_u32 v{vVD+n}, v{vVD+n}, v3")
    e(f"v_xor_b32 v3, v{vG}, v{vI15}")
    e(f"v_lshlrev_b32 v25, 8, v{vI15}")
    for s in range(4):
        e(f"v_xor_b32 v26, {4*s}, v3")
        e(f"v_lshl_add_u32 v{vKA+s}, v26, 4, v25")
    e(f"v_lshrrev_b32 v3, 2, v{vI15}")
    e(f"v_lshl_add_u32 v3, v{vG}, 2, v3")
    e("v_and_b32 v25, 7, v3")
    e("v_lshlrev_b32 v3, 8, v3")
    e(f"v_and_b32 v26, 3, v{vI15}")
    e("v_lshl_add_u32 v3, v26, 3, v3")
    e(f"v_add_u32 v3, {VBASE}, v3")
    for dt in range(8):
        e(f"v_xor_b32 v26, {dt}, v25")
        e(f"v_lshl_add_u32 v{vVA+dt}, v26, 5, v3")

def x_dma(cfg, j):
    T = vT
    L = [f"s_add_u32 m0, {sW4K}, {j*16384}"]
    for n in range(4):
        L.append(f"v_add_u32 v{T+12+n}, {256*j}, v{T+n}")
        L.append(f"v_and_or_b32 v{T+12+n}, v{T+12+n}, {sT2}, v{T+4+n}")
    for n in range(4):
        L.append(f"buffer_load_dwordx4 v{T+12+n}, {SX}, 0 offen offset:{1024*n} {cfg.polx} lds")
    return L

def wq_dma(cfg, i):
    T = vT
    G = []
    for hh in range(2):
        for n in range(4):
            pre = []
            if n == 0:
                if hh == 0:
                    pre += [f"s_add_u32 {sT0}, {sROT}, {i}", f"s_and_b32 {sT0}, {sT0}, 7", f"s_lshl_b32 {sT0}, {sT0}, 19"]
                else:
                    pre += [f"s_add_u32 {sT0}, {sT0}, 256"]
                pre += [f"s_add_u32 m0, {sW4K}, {VBASE + hh*49152 + (i%3)*16384}"]
            G.append((pre, f"buffer_load_dwordx4 v{T+8+n}, {SWQ}, {sT0} offen offset:{1024*n} {cfg.polw} lds ; tag=W{i} loc=u{4 + hh*3 + i%3}"))
    return G

def kslot(t): return (t & 3) * 16384
def vslot(t): return ((t + 2) & 3) * 16384

def kv_dma(cfg, which, t):
    so = sKO if which == 'K' else sVO
    G = []
    for n in range(4):
        pre = []
        if n == 0:
            if t > 0:
                inc = sJ0 if (t == cfg.C0 and cfg.R) else sJ1 if (t == cfg.C0 + cfg.R and cfg.R) else "0x4000"
                pre.append(f"s_add_u32 {so}, {so}, {inc}")
            pre.append(f"s_add_u32 m0, {sW4K}, {kslot(t) if which == 'K' else VBASE + vslot(t)}")
        v = vKD + n if which == 'K' else vVD + (n & 1)
        G.append((pre, f"buffer_load_dwordx4 v{v}, {SK if which == 'K' else SV}, {so} offen offset:{1024*n} {cfg.polkv} lds"))
    return G

def flat(G):
    L = []
    for pre, d in G:
        L += pre
        if pre and 'm0' in pre[-1]: L.append("s_nop 0")
        L.append(d)
    return L

def place_dma(st, G, g0, g1):
    nsal = sum(len(p) for p, _ in G)
    ch = st.spread([d for _, d in G], g0 + len(G[0][0]), g1)
    prev = g0 - 1
    for (pre, d), g in zip(G, ch):
        lo = prev + 1 if prev >= g0 else g0
        assert not pre or g - lo >= 1, (g, lo, pre)
        k = len(pre)
        for idx, s in enumerate(pre):
            gg = min(max(lo, g - k + idx), g - 1)
            st.force(gg, s)
        prev = g

def qproj(e, cfg):
    T = vT
    if cfg.fuse: flags_clear(e, cfg)
    if cfg.pf:
        e("s_getpc_b64 s[88:89]")
        e("L_pf:")
        e("s_mov_b32 s90, L_end-L_pf"); e("s_mov_b32 s91, 0x20000")
        e(f"s_lshr_b32 {sT0}, s2, 3"); e(f"s_lshl_b32 {sT0}, {sT0}, 11")
        e(f"v_lshl_add_u32 v31, v0, 7, {sT0}")
        e(f"v_mov_b32 v3, {OOB}")
        e("v_cmp_gt_u32 vcc, 16, v0")
        e("v_cndmask_b32 v3, v3, v31, vcc")
        e(f"buffer_load_dword v{vP+7}, v3, s[88:91], 0 offen")
    e(f"s_movk_i32 {sT2}, 0x3ff")
    for l in x_dma(cfg, 0): e(l)
    for l in flat(wq_dma(cfg, 0)): e(l)
    for l in x_dma(cfg, 1): e(l)
    for l in flat(wq_dma(cfg, 1)): e(l)
    prologue2(e, cfg)
    for l in x_dma(cfg, 2): e(l)
    for l in x_dma(cfg, 3): e(l)
    vX, vW = T + 0, T + 16
    e(f"s_and_b32 {sT1}, {sW}, 1"); e(f"s_lshl_b32 {sT1}, {sT1}, 13")
    for s in range(4): e(f"v_add_u32 v{vX+s}, {sT1}, v{vKA+s}")
    e(f"s_lshr_b32 {sT1}, {sW}, 1"); e(f"s_mul_i32 {sT1}, {sT1}, 49152")
    for dt in range(8): e(f"v_add_u32 v{vW+dt}, {sT1}, v{vVA+dt}")
    if cfg.fuse:
        e(f"s_lshl_b32 {sT1}, {sGRP}, 4")
        e(f"v_mov_b32 v27, {OOB}"); e(f"v_mov_b32 v28, {sT1}")
        e("v_cmp_eq_u32 vcc, 0, v0")
        e("v_cndmask_b32 v27, v27, v28, vcc")
        e("v_mov_b32 v28, 1")
    for i in range(4): e(f"v_mov_b32 v3, 0x3f803f80") if i == 0 else None
    for i in range(4): e(f"v_accvgpr_write_b32 a{aONE+i}, v3")
    st = Stream()
    D = 10
    for _ in range(D): st.add(None)
    def xfrag(i, ks, qq): return ((i * 2 + ks) * 2 + qq) * 4 % 64
    def wfrag(i, ks, dt): return aVF + ((ks * 8 + dt) % 16) * 4
    for i in range(8):
        for ks in range(2):
            for dt in range(8):
                for qq in range(2):
                    acc = vr(vO + (qq * 8 + dt) * 4)
                    c = "0" if (i == 0 and ks == 0) else acc
                    st.add(f"{MF} {acc}, {ar(wfrag(i, ks, dt))}, {ar(xfrag(i, ks, qq))}, {c}")
    for i in range(8):
        g0 = 32 * i
        need = f"W{i}" + (f",X{i>>1}" if i % 2 == 0 else "") + (",CLR" if i == 0 else "")
        st.force(g0, f"@vmwait {need} lgkm0")
        st.force(g0, "s_barrier")
        if i == 0 and cfg.fuse:
            for l in flags_announce(cfg): st.force(g0, l)
        rd = []
        for ks in range(2):
            for qq in range(2):
                s = 2 * (i & 1) + ks
                rd.append(f"ds_read_b128 {ar(xfrag(i, ks, qq))}, v{vX+s} offset:{(i>>1)*16384 + qq*4096} ; rd=X{i>>1}")
            for dt in range(8):
                for u in range(2):
                    rd.append(f"ds_read_b64_tr_b16 {ar(wfrag(i, ks, dt) + 2*u, 2)}, v{vW+dt} offset:{(i%3)*16384 + ks*8192 + u*4096} ; rd=W{i}")
        if i + 2 < 8: G = wq_dma(cfg, i + 2)
        else: G = kv_dma(cfg, 'K', i - 6) + kv_dma(cfg, 'V', i - 6)
        place_dma(st, G, g0 + 1, g0 + 26)
        st.spread(rd, g0, g0 + 27)
    for l in st.lines(): e(l)
    e("s_nop 7")
    e(f"s_mov_b32 {sT0}, {hex(QSCALE)}")
    for qq in range(2):
        for s in range(4):
            a = vO + (qq * 8 + 2 * s) * 4
            q = vQ + (qq * 4 + s) * 4
            for j in range(8): e(f"v_mul_f32 v{a+j}, {sT0}, v{a+j}")
            for j in range(4): e(f"v_cvt_pk_bf16_f32 v{q+j}, v{a+2*j}, v{a+2*j+1}")
    e("s_nop 1")
    for op in ("v_permlane32_swap_b32", "v_permlane16_swap_b32"):
        for f in range(8):
            q = vQ + f * 4
            e(f"{op} v{q}, v{q+2}"); e(f"{op} v{q+1}, v{q+3}")

def Qreg(qt, s):
    return vr(vQ + (qt * 4 + s) * 4) if qt < 2 else ar(aQ + ((qt - 2) * 4 + s) * 4)

def k_reads(kb):
    t, half = kb >> 1, kb & 1
    return [f"ds_read_b128 {ar(aKF + (kb & 1)*32 + (kt*4+s)*4)}, v{vKA+s} offset:{kslot(t) + half*8192 + kt*4096} ; rd=K{t}" for kt in range(2) for s in range(4)]
def v_reads(kb):
    t, half = kb >> 1, kb & 1
    return [f"ds_read_b64_tr_b16 {ar(aVF + (kb & 1)*32 + dt*4 + 2*u, 2)}, v{vVA+dt} offset:{vslot(t) + half*8192 + u*4096} ; rd=V{t}" for dt in range(8) for u in range(2)]

def attention(e, cfg):
    NT = cfg.C0 + cfg.R + cfg.C1
    NKB = 2 * NT
    def qts(kb): return [0, 1, 2, 3] if cfg.C0 <= (kb >> 1) < cfg.C0 + cfg.R else [0, 1]
    mu = [(kb, qt) for kb in range(NKB) for qt in qts(kb)]
    e("@vmwait K0,V0 lgkm0")
    e("s_barrier")
    for l in k_reads(0): e(l)
    for l in v_reads(0): e(l)
    issued = {'K': 2, 'V': 2}
    for wh, d in (('K', cfg.dK), ('V', cfg.dV)):
        while issued[wh] < min(d + 1, NT):
            for l in flat(kv_dma(cfg, wh, issued[wh])): e(l)
            issued[wh] += 1
    for qt in range(2):
        for s in range(4):
            d = vr(vS + 4 * qt)
            e(f"{MF} {d}, {ar(aKF + s*4)}, {Qreg(qt, s)}, {'0' if s == 0 else d}")
    e("s_nop 7")
    for qt in range(2):
        a = vS + 4 * qt
        e(f"v_max3_f32 v{a}, v{a}, v{a+1}, v{a+2}")
        e(f"v_max_f32 v{a}, v{a}, v{a+3}")
    for op in ("v_permlane32_swap_b32", "v_permlane16_swap_b32"):
        for qt in range(2): e(f"v_mov_b32 v{vS+4*qt+1}, v{vS+4*qt}")
        e("s_nop 1")
        for qt in range(2): e(f"{op} v{vS+4*qt}, v{vS+4*qt+1}")
        e("s_nop 0")
        for qt in range(2): e(f"v_max_f32 v{vS+4*qt}, v{vS+4*qt}, v{vS+4*qt+1}")
    for qt in range(2):
        for j in range(4): e(f"v_sub_f32 v{vCI+4*qt+j}, 0, v{vS+4*qt}")
    e("s_nop 1")
    st = Stream()
    qk0 = {}; pv0 = {}
    seenO = set()
    for i in range(-1, len(mu)):
        if i + 1 < len(mu):
            kb, qt = mu[i + 1]
            qk0[i + 1] = st.n()
            for kt in range(2):
                d = vr(vS + ((i + 1) & 1) * 8 + kt * 4)
                for s in range(4):
                    st.add(f"{MF} {d}, {ar(aKF + (kb & 1)*32 + (kt*4+s)*4)}, {Qreg(qt, s)}, {vr(vCI + 4*qt) if s == 0 else d}")
        else:
            for _ in range(8): st.add(None)
        if i >= 0:
            kb, qt = mu[i]
            pv0[i] = st.n()
            p = vr(vP + (i & 1) * 4)
            first = qt not in seenO; seenO.add(qt)
            for dt in range(8):
                o = vr(vO + (qt * 8 + dt) * 4)
                st.add(f"{MF} {o}, {ar(aVF + (kb & 1)*32 + dt*4)}, {p}, {'0' if first else o}")
            l = ar(aL + 4 * qt)
            st.add(f"{MF} {l}, {ar(aONE)}, {p}, {'0' if first else l}")
        else:
            for _ in range(9): st.add(None)
    for i in range(len(mu)):
        g = qk0[i] + cfg.expoff
        sb = vS + (i & 1) * 8; pb = vP + (i & 1) * 4
        for j in range(8):
            st.force(g + 2 * j, f"v_exp_f32 v{sb+j}, v{sb+j}")
            if j & 1: st.force(g + 2 * j + 1, f"v_cvt_pk_bf16_f32 v{pb + j//2}, v{sb+j-1}, v{sb+j}")
    first_mu = {}
    for i, (kb, qt) in enumerate(mu): first_mu.setdefault(kb, i)
    for kb in range(NKB - 1):
        g0 = qk0[first_mu[kb]]
        g1 = qk0[first_mu[kb + 1]]
        gv = qk0[first_mu[kb] + 1]
        nb = kb + 1
        if nb % 2 == 0:
            t = nb >> 1
            st.force(g0, f"@vmwait K{t},V{t}")
            st.force(g0 + 1, "s_barrier")
            gk = g0 + 1
            G = []
            if t + cfg.dK < NT: place_dma(st, kv_dma(cfg, 'K', t + cfg.dK), g0 + 2, g1 - 1)
        else:
            gk = g0
            t = kb >> 1
            if t >= 1 and t + cfg.dV < NT: place_dma(st, kv_dma(cfg, 'V', t + cfg.dV), g0, g1 - 1)
        span = g1 - gk
        kend = max(gv - 1, gk + span // 3)
        st.spread(k_reads(nb), gk, min(kend, g1 - 8))
        st.spread(v_reads(nb), max(gv, kend + 1), g1 - 1)
    L = st.lines()
    for l in L: e(l)
    if '-v' in sys.argv:
        over = sum(max(0, u - 2) for u, m in zip(st.used, st.mf) if m)
        print("attention gaps", st.n(), "overfull slots", over)

def selector(e, base, tmp):
    e(f"v_lshrrev_b32 v{tmp}, 2, v{vI15}")
    e(f"v_cmp_eq_u32 vcc, v{tmp}, v{vG}")
    e(f"v_and_b32 v{tmp}, 1, v{vI15}")
    e(f"v_lshlrev_b32 v{tmp}, 4, v{tmp}")
    e(f"v_mov_b32 v{tmp+1}, 0x3f80")
    e(f"v_lshlrev_b32 v{tmp}, v{tmp}, v{tmp+1}")
    e(f"v_cndmask_b32 v{tmp}, 0, v{tmp}, vcc")
    e(f"v_and_b32 v{tmp+1}, 2, v{vI15}")
    e(f"v_cmp_eq_u32 vcc, 0, v{tmp+1}")
    for i in (0, 1, 4, 5): e(f"v_mov_b32 v{base+i}, 0")
    e(f"v_cndmask_b32 v{base+2}, 0, v{tmp}, vcc")
    e(f"v_sub_u32 v{base+3}, v{tmp}, v{base+2}")

def wo_dma(cfg, kc):
    T = vT
    G = []
    for n in range(16):
        pre = []
        if n % 4 == 0:
            pre.append(f"s_add_u32 {sT0}, {sT1}, {kc*65536 + (n>>2)*16384}")
            pre.append(f"s_add_u32 m0, {sT2}, {(kc&1)*16384 + (n>>2)*4096}")
        G.append((pre, f"buffer_load_dwordx4 v{T+(n&3)}, {SWO}, {sT0} offen offset:{1024*(n&3)} {cfg.polw} lds ; tag=pO{kc} loc={','.join('u%d' % (2*w + (kc&1)) for w in range(4))}"))
    return G

def oproj(e, cfg):
    T = vT
    e("s_barrier")
    e(f"s_lshl_b32 {sT1}, {sW}, 8")
    e(f"s_lshl_b32 {sT2}, {sW}, 15")
    for n in range(4):
        e(f"v_and_b32 v3, 0xff, v{vVD+(n&1)}")
        e(f"v_add_u32 v25, {3*n}, v{vG}")
        e(f"v_lshl_add_u32 v{T+n}, v25, 10, v3")
    for l in flat(wo_dma(cfg, 0)): e(l)
    for l in flat(wo_dma(cfg, 1)): e(l)
    for qt in range(2): e(f"v_accvgpr_read_b32 v{26+qt}, a{aL+4*qt}")
    e("s_nop 0")
    for qt in range(2): e(f"v_rcp_f32 v{26+qt}, v{26+qt}")
    e(f"s_lshr_b32 {sT0}, {sW}, 1"); e(f"s_lshl_b32 {sT0}, {sT0}, 14")
    e(f"s_and_b32 s62, {sW}, 1"); e("s_lshl_b32 s62, s62, 11")
    e(f"s_add_u32 {sT0}, {sT0}, s62")
    e(f"v_lshlrev_b32 v28, 4, v{vLANE}")
    e(f"v_add_u32 v28, {XBASE}, v28")
    e(f"v_add_u32 v25, {sT0}, v28")
    for qt in range(2):
        for s in range(4):
            a = vO + (qt * 8 + 2 * s) * 4
            q = vQ + (qt * 4 + s) * 4
            for j in range(8): e(f"v_mul_f32 v{a+j}, v{26+qt}, v{a+j}")
            for j in range(4): e(f"v_cvt_pk_bf16_f32 v{q+j}, v{a+2*j}, v{a+2*j+1}")
            e(f"ds_write_b128 v25, {vr(q)} offset:{(s*4+qt)*1024}")
    vW = T + 16
    e(f"s_sub_u32 {sT0}, {sT2}, {VBASE}")
    for dt in range(8): e(f"v_add_u32 v{vW+dt}, {sT0}, v{vVA+dt}")
    e("s_waitcnt lgkmcnt(0)")
    e("s_barrier")
    stamp(e, cfg, 3)
    st = Stream()
    D = 12
    for _ in range(D): st.add(None)
    def wfrag(ks8, nt): return aVF + (((ks8 & 1) * 8 + nt) % 16) * 4
    for ks8 in range(8):
        for nt in range(8):
            for q4 in range(4):
                acc = vr(vO + (q4 * 8 + nt) * 4)
                st.add(f"{MF} {acc}, {ar(wfrag(ks8, nt))}, {ar((ks8*4+q4)*4)}, {'0' if ks8 == 0 else acc}")
    for ks8 in range(8):
        g0 = 32 * ks8
        kc, ks = ks8 >> 1, ks8 & 1
        rd = [f"ds_read_b128 {ar((ks8*4+q4)*4)}, v28 offset:{(ks8*4+q4)*1024} ; rd=G" for q4 in range(4)]
        for nt in range(8):
            for u in range(2):
                rd.append(f"ds_read_b64_tr_b16 {ar(wfrag(ks8, nt) + 2*u, 2)}, v{vW+nt} offset:{(kc&1)*16384 + ks*8192 + u*4096} ; rd=pO{kc}")
        if ks == 0:
            st.force(g0, f"@vmwait pO{kc}")
            if kc >= 1 and kc + 1 < 4:
                place_dma(st, wo_dma(cfg, kc + 1), g0 + D + 1, g0 + D + 36)
        st.spread(rd, g0, g0 + 29)
    for l in st.lines(): e(l)
    stamp(e, cfg, 4)
    e("s_nop 7")
    e(f"s_lshl_b32 {sT0}, {sGRP}, 20")
    e(f"s_lshl_b32 {sT1}, {sW}, 18")
    e(f"s_add_u32 {sT0}, {sT0}, {sT1}")
    e(f"s_lshl_b32 {sT1}, {sMEM}, 10")
    e(f"s_add_u32 {sT0}, {sT0}, {sT1}")
    e(f"v_lshlrev_b32 v28, 4, v{vLANE}")
    k = 0
    for m in range(4):
        for q4 in range(4):
            a = vO + (q4 * 8 + 2 * m) * 4
            q = vS + 4 * k; k += 1
            for j in range(4): e(f"v_cvt_pk_bf16_f32 v{q+j}, v{a+2*j}, v{a+2*j+1}")
            e(f"s_add_u32 {sT1}, {sT0}, {(m*4+q4)*16384}")
            e(f"buffer_store_dwordx4 {vr(q)}, v28, {SWS}, {sT1} offen {cfg.polst}")

def fused_reduce(e, cfg):
    e("v_mov_b32 v31, 1")
    e("s_waitcnt vmcnt(0)")
    e(f"buffer_store_dword v31, v29, {SWS}, 0 offen sc1")
    stamp(e, cfg, 5)
    poll(e, "L_pollF", vFL, SWS, 1)
    stamp(e, cfg, 6)
    reduce_body(e, cfg, "sc1")

def group_ready(e, cfg):
    e(f"s_lshl_b32 {sT1}, {sGRP}, 4")
    e(f"v_mov_b32 v27, {sT1}")
    poll(e, "L_pollG", 27, SDBG, 16, "gt")

def diag_dump(e, cfg, n):
    if not cfg.diag: return
    e("s_waitcnt vmcnt(0)")
    stamp(e, cfg, n - 1)
    if cfg.spin >= 0:
        e(f"s_sub_u32 s3, s{70+2*cfg.spin}, s70")
        e("s_min_u32 s3, s3, 20000")
        e("L_spin:")
        e("s_memrealtime s[62:63]")
        e("s_waitcnt lgkmcnt(0)")
        e(f"s_sub_u32 s62, s62, s{70+2*(n-1)}")
        e("s_cmp_lt_u32 s62, s3")
        e("s_cbranch_scc1 L_spin")
        return
    e("s_lshl_b32 s3, s2, 6")
    e("s_add_u32 s3, s3, 0x8000000")
    e("v_mov_b32 v3, s3")
    for k in range(n):
        e(f"v_mov_b32 v4, s{70+2*k}")
        e(f"buffer_store_dword v4, v3, {SWS}, 0 offen offset:{4*k}")

def reduce_kernel(cfg):
    L = []; e = L.append
    e("s_cmp_ge_u32 s2, 256")
    e("s_cbranch_scc1 R_end")
    e("s_load_dwordx2 s[28:29], s[0:1], 80")
    e("s_load_dwordx2 s[24:25], s[0:1], 96")
    e(f"s_lshr_b32 {sGRP}, s2, 4")
    e(f"s_and_b32 {sHKV}, s2, 7")
    e(f"s_bfe_u32 {sP}, s2, 0x10003")
    e("v_lshrrev_b32 v1, 6, v0")
    e(f"v_and_b32 v{vLANE}, 63, v0")
    e(f"v_readfirstlane_b32 {sW}, v1")
    e(f"v_and_b32 v{vI15}, 15, v0")
    e(f"v_lshrrev_b32 v{vG}, 4, v{vLANE}")
    srd(e, SWS, 0, 0, 268435456)
    srd(e, SOUT, 0, 0, 1048576)
    reduce_body(e, cfg)
    e("R_end:")
    e("s_endpgm")
    return L

def reduce_body(e, cfg, pol=""):
    e(f"s_and_b32 {sT0}, {sW}, 1"); e(f"s_lshl_b32 {sT1}, {sHKV}, 1"); e(f"s_add_u32 {sT0}, {sT0}, {sT1}")
    e(f"s_lshr_b32 {sT1}, {sW}, 1"); e(f"s_lshl_b32 {sT2}, {sP}, 1"); e(f"s_add_u32 {sT1}, {sT1}, {sT2}")
    e(f"s_lshl_b32 {sT2}, {sGRP}, 20")
    e(f"s_lshl_b32 s62, {sT0}, 16"); e(f"s_add_u32 {sT2}, {sT2}, s62")
    e(f"s_lshl_b32 s62, {sT1}, 14"); e(f"s_add_u32 {sT2}, {sT2}, s62")
    e(f"v_lshlrev_b32 v28, 4, v{vLANE}")
    e("s_waitcnt lgkmcnt(0)")
    for j in range(16):
        if j and j % 4 == 0: e(f"s_add_u32 {sT2}, {sT2}, 4096")
        e(f"buffer_load_dwordx4 {vr(32+4*j)}, v28, {SWS}, {sT2} offen offset:{1024*(j&3)} {pol}")
    selector(e, 8, 2)
    e(f"s_and_b32 s62, {sGRP}, 7"); e("s_lshl_b32 s62, s62, 17")
    e(f"s_lshl_b32 {sT1}, {sT1}, 15"); e(f"s_add_u32 s62, s62, {sT1}")
    e(f"s_lshr_b32 {sT1}, {sGRP}, 3"); e(f"s_lshl_b32 {sT1}, {sT1}, 10"); e(f"s_add_u32 s62, s62, {sT1}")
    e(f"s_lshl_b32 {sT0}, {sT0}, 6"); e(f"s_add_u32 s62, s62, {sT0}")
    e(f"v_lshlrev_b32 v2, 11, v{vI15}")
    e(f"v_lshl_add_u32 v2, v{vG}, 4, v2")
    for j in range(16):
        e(f"{MF} v[16:19], v[10:13], {vr(32+4*j)}, {'0' if j == 0 else 'v[16:19]'}")
        e(f"{MF} v[4:7], v[8:11], {vr(32+4*j)}, {'0' if j == 0 else 'v[4:7]'}")
    e("s_nop 7")
    e("v_cvt_pk_bf16_f32 v16, v16, v17"); e("v_cvt_pk_bf16_f32 v17, v18, v19")
    e("v_cvt_pk_bf16_f32 v18, v4, v5"); e("v_cvt_pk_bf16_f32 v19, v6, v7")
    for op in ("v_permlane32_swap_b32", "v_permlane16_swap_b32"):
        e("s_nop 1")
        e(f"{op} v16, v18"); e(f"{op} v17, v19")
    e(f"buffer_store_dwordx4 v[16:19], v2, {SOUT}, s62 offen {cfg.polout}")

def finish(L):
    L = auto_wait(L)
    L, nn = hazard.fix(L)
    if '-v' in sys.argv: print("auto nops", nn)
    L, bad = align.align8(L)
    errs = hazard.check(L, verbose=('-v' in sys.argv))
    assert not errs, errs[:5]
    errs = lds_check(L)
    assert not errs, errs[:5]
    return L

def gen(cfg):
    L = []; e = L.append
    prologue(e, cfg)
    qproj(e, cfg)
    stamp(e, cfg, 1)
    attention(e, cfg)
    stamp(e, cfg, 2)
    if cfg.fuse: group_ready(e, cfg)
    oproj(e, cfg)
    if cfg.fuse: fused_reduce(e, cfg)
    diag_dump(e, cfg, 8 if cfg.fuse else 6)
    e("L_end:")
    e("s_endpgm")
    L = finish(L)
    fmt = lambda X: "\n".join((x if x.endswith(':') else "  " + x.split(' ; ')[0].rstrip()) for x in X) + "\n"
    if cfg.fuse:
        s = header(["@launch grid=(256,1,1) block=(256,1,1) lds=163840"])
        s += kernel_begin(KNAME) + fmt(L)
        s += rodata([descriptor(KNAME)])
        return s
    R = finish(reduce_kernel(cfg))
    RN = "reduce_kernel"
    s = header([f"@launch kernel={KNAME} grid=(256,1,1) block=(256,1,1) lds=163840",
                f"@launch kernel={RN} grid=(256,1,1) block=(256,1,1) lds=0"])
    fmt = lambda X: "\n".join((x if x.endswith(':') else "  " + x.split(' ; ')[0].rstrip()) for x in X) + "\n"
    s += kernel_begin(KNAME) + fmt(L)
    s += kernel_begin(RN) + fmt(R)
    s += rodata([descriptor(KNAME), descriptor(RN, vgpr=96, accum=96)])
    return s

if __name__ == "__main__":
    out = sys.argv[1]
    kw = {}
    for a in sys.argv[2:]:
        if '=' in a:
            k, v = a.split('=', 1)
            kw[k] = int(v) if v.lstrip('-').isdigit() else v.replace('+', ' ')
    open(out, "w").write(gen(Cfg(**kw)))
```

```python
import sys, struct
from gen_common import *
import hazard, align
from sched import Stream, auto_wait, lds_check

MF = "v_mfma_f32_16x16x32_bf16"
def f2u(x): return struct.unpack('<I', struct.pack('<f', x))[0]
QSCALE = f2u(1.4426950408889634 * 128 ** -0.5)

def vr(a, n=4): return f"v[{a}:{a+n-1}]"
def ar(a, n=4): return f"a[{a}:{a+n-1}]"

SX, SK, SV, SWQ, SWO, SWS, SOUT, SDBG = (f"s[{i}:{i+3}]" for i in (4, 8, 12, 16, 20, 24, 28, 32))
sHKV, sP, sB, sBR, sW, sW4K, sROT = "s36", "s37", "s38", "s39", "s40", "s41", "s42"
sKO, sVO, sT0, sT1, sT2, sJ0, sJ1, sGRP, sMEM = "s43", "s44", "s45", "s46", "s47", "s58", "s59", "s60", "s61"
vKA, vVA, vKD, vVD = 4, 8, 16, 20
vLANE, vI15, vG = 22, 23, 24
vS, vP, vCI, vQ, vO = 32, 48, 56, 72, 128
vT = 104
aQ, aKF, aVF, aL, aONE = 0, 64, 128, 192, 208
VBASE, XBASE = 65536, 131072
FLAGB = 0x1000000
OOB = 0x40000000
vFL = 30

class Cfg:
    C0 = 32; R = 0; C1 = 0
    polkv = "nt"; polx = ""; polw = ""; polst = "sc1"; polout = ""
    diag = False; spin = -1; spin0 = 0; spinmul = 1
    fuse = 1; pf = 0
    expoff = 8
    dK = 3; dV = 2
    def __init__(self, **kw):
        self.__dict__.update(kw)

def stamp(e, cfg, k):
    if cfg.diag:
        e(f"s_memrealtime s[{70+2*k}:{71+2*k}]")
        e("s_waitcnt lgkmcnt(0)")

def srd(e, base, lo, hi, size):
    n = int(base[2:base.index(':')])
    e(f"s_mov_b32 s{n+2}, {size}")
    e(f"s_mov_b32 s{n+3}, 0x20000")

def prologue(e, cfg):
    if cfg.diag:
        e("s_memrealtime s[70:71]")
        e("s_waitcnt lgkmcnt(0)")
    e("s_cmp_ge_u32 s2, 256")
    e("s_cbranch_scc1 L_end")
    e(f"s_lshr_b32 {sBR}, s2, 7")
    e(f"s_mul_i32 {sT0}, {sBR}, 40")
    e(f"s_add_u32 s62, s0, {sT0}")
    e("s_addc_u32 s63, s1, 0")
    e("s_load_dwordx8 s[48:55], s[62:63], 0")
    e("s_load_dwordx2 s[56:57], s[62:63], 32")
    e("s_load_dwordx4 s[64:67], s[0:1], 80")
    e("s_load_dwordx2 s[24:25], s[0:1], 96")
    e(f"s_and_b32 {sHKV}, s2, 7")
    e(f"s_bfe_u32 {sP}, s2, 0x10003")
    e(f"s_bfe_u32 {sB}, s2, 0x30004")
    e(f"s_lshr_b32 {sGRP}, s2, 4")
    e(f"s_lshl_b32 {sMEM}, {sHKV}, 1")
    e(f"s_add_u32 {sMEM}, {sMEM}, {sP}")
    e(f"s_lshl_b32 {sROT}, {sP}, 2")
    e(f"s_add_u32 {sROT}, {sROT}, {sB}")
    e(f"s_and_b32 {sROT}, {sROT}, 7")
    e("v_lshrrev_b32 v1, 6, v0")
    e(f"v_and_b32 v{vLANE}, 63, v0")
    e(f"v_readfirstlane_b32 {sW}, v1")
    e(f"v_and_b32 v{vI15}, 15, v0")
    e(f"v_lshrrev_b32 v{vG}, 4, v{vLANE}")
    e(f"s_lshl_b32 {sW4K}, {sW}, 12")
    T = vT
    e(f"v_lshl_add_u32 v2, v1, 4, v{vG}")
    e(f"s_lshl_b32 {sT0}, {sROT}, 7")
    for n in range(4):
        e(f"v_add_u32 v3, {4*n}, v{vG}")
        e(f"v_xor_b32 v3, v3, v{vI15}")
        e(f"v_lshlrev_b32 v{vKD+n}, 4, v3")
        e(f"v_add_u32 v{T+n}, {sT0}, v{vKD+n}")
        e(f"v_add_u32 v3, {3*n}, v2")
        e(f"v_lshlrev_b32 v{T+4+n}, 10, v3")
    for n in range(2):
        e(f"v_add_u32 v3, {4*n}, v{vG}")
        e("v_lshlrev_b32 v3, 1, v3")
        e(f"v_xor_b32 v3, v3, v{vI15}")
        e(f"v_lshlrev_b32 v{vVD+n}, 4, v3")
    e("v_lshrrev_b32 v3, 1, v1")
    e(f"v_lshl_add_u32 v3, v3, 5, v{vG}")
    e("v_and_b32 v25, 1, v1")
    e("v_lshl_add_u32 v3, v25, 2, v3")
    e("v_lshlrev_b32 v3, 13, v3")
    for n in range(4):
        e(f"v_add_u32 v{T+8+n}, {n*(65536-1024)}, v3")
        e(f"v_add_u32 v{T+8+n}, v{T+8+n}, v{vVD+(n&1)}")
    e("s_waitcnt lgkmcnt(0)")
    if cfg.diag:
        e("s_memrealtime s[86:87]")
        e("s_waitcnt lgkmcnt(0)")
    e(f"s_lshl_b32 {sT0}, {sB}, 16")
    e(f"s_add_u32 s4, s48, {sT0}"); e("s_addc_u32 s5, s49, 0"); srd(e, SX, 0, 0, 65536)
    e(f"s_lshl_b32 {sT0}, {sMEM}, 9")
    e(f"s_add_u32 s16, s54, {sT0}"); e("s_addc_u32 s17, s55, 0")
    e(f"s_sub_u32 s18, 4194304, {sT0}"); e("s_mov_b32 s19, 0x20000")

def flags_clear(e, cfg):
    srd(e, SWS, 0, 0, 268435456)
    e(f"s_lshl_b32 {sT0}, {sGRP}, 11")
    e(f"s_add_u32 {sT0}, {sT0}, {FLAGB}")
    e(f"s_lshl_b32 {sT1}, {sMEM}, 7")
    e(f"s_add_u32 {sT1}, {sT1}, {sT0}")
    e(f"v_lshl_add_u32 v{vFL}, v{vI15}, 2, {sT1}")
    e(f"s_lshl_b32 {sT1}, {sW}, 9")
    e(f"s_add_u32 {sT1}, {sT1}, {sT0}")
    e(f"s_lshl_b32 s62, {sMEM}, 2")
    e(f"s_add_u32 {sT1}, {sT1}, s62")
    e(f"v_lshl_add_u32 v29, v{vLANE}, 7, {sT1}")
    e(f"v_mov_b32 v31, {OOB}")
    e(f"v_cmp_gt_u32 vcc, 4, v{vLANE}")
    e("v_cndmask_b32 v29, v31, v29, vcc")
    e("v_mov_b32 v31, 0")
    e(f"buffer_store_dword v31, v29, {SWS}, 0 offen sc1 ; tag=CLR")

def flags_announce(cfg):
    return [f"buffer_atomic_add v28, v27, {SDBG}, 0 offen sc1"]

def poll(e, name, voff, srdn, val, cmp='ne'):
    e(f"s_mov_b32 {sT0}, 0")
    e(f"{name}:")
    e(f"buffer_load_dword v31, v{voff}, {srdn}, 0 offen sc1")
    e(f"s_add_u32 {sT0}, {sT0}, 1")
    e("s_waitcnt vmcnt(0)")
    e(f"v_cmp_{cmp}_u32 vcc, {val}, v31")
    e(f"s_cmp_ge_u32 {sT0}, 0x40000")
    e(f"s_cbranch_scc1 {name}_x")
    e(f"s_cbranch_vccnz {name}")
    e(f"{name}_x:")

def prologue2(e, cfg):
    e(f"s_lshl_b32 {sT0}, {sB}, 3")
    e(f"s_add_u32 {sT0}, {sT0}, {sHKV}")
    e(f"s_lshl_b32 {sT0}, {sT0}, 19")
    e(f"s_add_u32 s8, s50, {sT0}"); e("s_addc_u32 s9, s51, 0"); srd(e, SK, 0, 0, 524288)
    e(f"s_add_u32 s12, s52, {sT0}"); e("s_addc_u32 s13, s53, 0"); srd(e, SV, 0, 0, 524288)
    e(f"s_lshl_b32 {sT0}, {sMEM}, 18")
    e(f"s_add_u32 s20, s56, {sT0}"); e("s_addc_u32 s21, s57, 0"); srd(e, SWO, 0, 0, 262144)
    if not cfg.fuse: srd(e, SWS, 0, 0, 268435456)
    e("s_mov_b32 s28, s64"); e("s_mov_b32 s29, s65"); srd(e, SOUT, 0, 0, 1048576)
    e("s_mov_b32 s32, s66"); e("s_mov_b32 s33, s67"); srd(e, SDBG, 0, 0, 256)
    e(f"s_mov_b32 {sKO}, 0"); e(f"s_mov_b32 {sVO}, 0")
    e(f"s_mul_i32 {sJ0}, {sP}, {cfg.R*16384}")
    e(f"s_sub_u32 {sJ1}, {cfg.R*16384}, {sJ0}")
    e(f"s_add_u32 {sJ0}, {sJ0}, 16384"); e(f"s_add_u32 {sJ1}, {sJ1}, 16384")
    e("v_lshlrev_b32 v3, 8, v2")
    for n in range(4): e(f"v_add_u32 v{vKD+n}, v{vKD+n}, v3")
    for n in range(2): e(f"v_add_u32 v{vVD+n}, v{vVD+n}, v3")
    e(f"v_xor_b32 v3, v{vG}, v{vI15}")
    e(f"v_lshlrev_b32 v25, 8, v{vI15}")
    for s in range(4):
        e(f"v_xor_b32 v26, {4*s}, v3")
        e(f"v_lshl_add_u32 v{vKA+s}, v26, 4, v25")
    e(f"v_lshrrev_b32 v3, 2, v{vI15}")
    e(f"v_lshl_add_u32 v3, v{vG}, 2, v3")
    e("v_and_b32 v25, 7, v3")
    e("v_lshlrev_b32 v3, 8, v3")
    e(f"v_and_b32 v26, 3, v{vI15}")
    e("v_lshl_add_u32 v3, v26, 3, v3")
    e(f"v_add_u32 v3, {VBASE}, v3")
    for dt in range(8):
        e(f"v_xor_b32 v26, {dt}, v25")
        e(f"v_lshl_add_u32 v{vVA+dt}, v26, 5, v3")

def x_dma(cfg, j):
    T = vT
    L = [f"s_add_u32 m0, {sW4K}, {j*16384}"]
    for n in range(4):
        L.append(f"v_add_u32 v{T+12+n}, {256*j}, v{T+n}")
        L.append(f"v_and_or_b32 v{T+12+n}, v{T+12+n}, {sT2}, v{T+4+n}")
    for n in range(4):
        L.append(f"buffer_load_dwordx4 v{T+12+n}, {SX}, 0 offen offset:{1024*n} {cfg.polx} lds")
    return L

def wq_dma(cfg, i):
    T = vT
    G = []
    for hh in range(2):
        for n in range(4):
            pre = []
            if n == 0:
                if hh == 0:
                    pre += [f"s_add_u32 {sT0}, {sROT}, {i}", f"s_and_b32 {sT0}, {sT0}, 7", f"s_lshl_b32 {sT0}, {sT0}, 19"]
                else:
                    pre += [f"s_add_u32 {sT0}, {sT0}, 256"]
                pre += [f"s_add_u32 m0, {sW4K}, {VBASE + hh*49152 + (i%3)*16384}"]
            G.append((pre, f"buffer_load_dwordx4 v{T+8+n}, {SWQ}, {sT0} offen offset:{1024*n} {cfg.polw} lds ; tag=W{i} loc=u{4 + hh*3 + i%3}"))
    return G

def kslot(t): return (t & 3) * 16384
def vslot(t): return ((t + 2) & 3) * 16384

def kv_dma(cfg, which, t):
    so = sKO if which == 'K' else sVO
    G = []
    for n in range(4):
        pre = []
        if n == 0:
            if t > 0:
                inc = sJ0 if (t == cfg.C0 and cfg.R) else sJ1 if (t == cfg.C0 + cfg.R and cfg.R) else "0x4000"
                pre.append(f"s_add_u32 {so}, {so}, {inc}")
            pre.append(f"s_add_u32 m0, {sW4K}, {kslot(t) if which == 'K' else VBASE + vslot(t)}")
        v = vKD + n if which == 'K' else vVD + (n & 1)
        G.append((pre, f"buffer_load_dwordx4 v{v}, {SK if which == 'K' else SV}, {so} offen offset:{1024*n} {cfg.polkv} lds"))
    return G

def flat(G):
    L = []
    for pre, d in G:
        L += pre
        if pre and 'm0' in pre[-1]: L.append("s_nop 0")
        L.append(d)
    return L

def place_dma(st, G, g0, g1):
    nsal = sum(len(p) for p, _ in G)
    ch = st.spread([d for _, d in G], g0 + len(G[0][0]), g1)
    prev = g0 - 1
    for (pre, d), g in zip(G, ch):
        lo = prev + 1 if prev >= g0 else g0
        assert not pre or g - lo >= 1, (g, lo, pre)
        k = len(pre)
        for idx, s in enumerate(pre):
            gg = min(max(lo, g - k + idx), g - 1)
            st.force(gg, s)
        prev = g

def qproj(e, cfg):
    T = vT
    if cfg.fuse: flags_clear(e, cfg)
    if cfg.pf:
        e("s_getpc_b64 s[88:89]")
        e("L_pf:")
        e("s_mov_b32 s90, L_end-L_pf"); e("s_mov_b32 s91, 0x20000")
        e(f"s_lshr_b32 {sT0}, s2, 3"); e(f"s_lshl_b32 {sT0}, {sT0}, 11")
        e(f"v_lshl_add_u32 v31, v0, 7, {sT0}")
        e(f"v_mov_b32 v3, {OOB}")
        e("v_cmp_gt_u32 vcc, 16, v0")
        e("v_cndmask_b32 v3, v3, v31, vcc")
        e(f"buffer_load_dword v{vP+7}, v3, s[88:91], 0 offen")
    e(f"s_movk_i32 {sT2}, 0x3ff")
    for l in x_dma(cfg, 0): e(l)
    for l in flat(wq_dma(cfg, 0)): e(l)
    for l in x_dma(cfg, 1): e(l)
    for l in flat(wq_dma(cfg, 1)): e(l)
    prologue2(e, cfg)
    for l in x_dma(cfg, 2): e(l)
    for l in x_dma(cfg, 3): e(l)
    vX, vW = T + 0, T + 16
    e(f"s_and_b32 {sT1}, {sW}, 1"); e(f"s_lshl_b32 {sT1}, {sT1}, 13")
    for s in range(4): e(f"v_add_u32 v{vX+s}, {sT1}, v{vKA+s}")
    e(f"s_lshr_b32 {sT1}, {sW}, 1"); e(f"s_mul_i32 {sT1}, {sT1}, 49152")
    for dt in range(8): e(f"v_add_u32 v{vW+dt}, {sT1}, v{vVA+dt}")
    if cfg.fuse:
        e(f"s_lshl_b32 {sT1}, {sGRP}, 4")
        e(f"v_mov_b32 v27, {OOB}"); e(f"v_mov_b32 v28, {sT1}")
        e("v_cmp_eq_u32 vcc, 0, v0")
        e("v_cndmask_b32 v27, v27, v28, vcc")
        e("v_mov_b32 v28, 1")
    for i in range(4): e(f"v_mov_b32 v3, 0x3f803f80") if i == 0 else None
    for i in range(4): e(f"v_accvgpr_write_b32 a{aONE+i}, v3")
    st = Stream()
    D = 10
    for _ in range(D): st.add(None)
    def xfrag(i, ks, qq): return ((i * 2 + ks) * 2 + qq) * 4 % 64
    def wfrag(i, ks, dt): return aVF + ((ks * 8 + dt) % 16) * 4
    for i in range(8):
        for ks in range(2):
            for dt in range(8):
                for qq in range(2):
                    acc = vr(vO + (qq * 8 + dt) * 4)
                    c = "0" if (i == 0 and ks == 0) else acc
                    st.add(f"{MF} {acc}, {ar(wfrag(i, ks, dt))}, {ar(xfrag(i, ks, qq))}, {c}")
    for i in range(8):
        g0 = 32 * i
        need = f"W{i}" + (f",X{i>>1}" if i % 2 == 0 else "") + (",CLR" if i == 0 else "")
        st.force(g0, f"@vmwait {need} lgkm0")
        st.force(g0, "s_barrier")
        if i == 0 and cfg.fuse:
            for l in flags_announce(cfg): st.force(g0, l)
        rd = []
        for ks in range(2):
            for qq in range(2):
                s = 2 * (i & 1) + ks
                rd.append(f"ds_read_b128 {ar(xfrag(i, ks, qq))}, v{vX+s} offset:{(i>>1)*16384 + qq*4096} ; rd=X{i>>1}")
            for dt in range(8):
                for u in range(2):
                    rd.append(f"ds_read_b64_tr_b16 {ar(wfrag(i, ks, dt) + 2*u, 2)}, v{vW+dt} offset:{(i%3)*16384 + ks*8192 + u*4096} ; rd=W{i}")
        if i + 2 < 8: G = wq_dma(cfg, i + 2)
        else: G = kv_dma(cfg, 'K', i - 6) + kv_dma(cfg, 'V', i - 6)
        place_dma(st, G, g0 + 1, g0 + 26)
        st.spread(rd, g0, g0 + 27)
    for l in st.lines(): e(l)
    e("s_nop 7")
    e(f"s_mov_b32 {sT0}, {hex(QSCALE)}")
    for qq in range(2):
        for s in range(4):
            a = vO + (qq * 8 + 2 * s) * 4
            q = vQ + (qq * 4 + s) * 4
            for j in range(8): e(f"v_mul_f32 v{a+j}, {sT0}, v{a+j}")
            for j in range(4): e(f"v_cvt_pk_bf16_f32 v{q+j}, v{a+2*j}, v{a+2*j+1}")
    e("s_nop 1")
    for op in ("v_permlane32_swap_b32", "v_permlane16_swap_b32"):
        for f in range(8):
            q = vQ + f * 4
            e(f"{op} v{q}, v{q+2}"); e(f"{op} v{q+1}, v{q+3}")

def Qreg(qt, s):
    return vr(vQ + (qt * 4 + s) * 4) if qt < 2 else ar(aQ + ((qt - 2) * 4 + s) * 4)

def k_reads(kb):
    t, half = kb >> 1, kb & 1
    return [f"ds_read_b128 {ar(aKF + (kb & 1)*32 + (kt*4+s)*4)}, v{vKA+s} offset:{kslot(t) + half*8192 + kt*4096} ; rd=K{t}" for kt in range(2) for s in range(4)]
def v_reads(kb):
    t, half = kb >> 1, kb & 1
    return [f"ds_read_b64_tr_b16 {ar(aVF + (kb & 1)*32 + dt*4 + 2*u, 2)}, v{vVA+dt} offset:{vslot(t) + half*8192 + u*4096} ; rd=V{t}" for dt in range(8) for u in range(2)]

def attention(e, cfg):
    NT = cfg.C0 + cfg.R + cfg.C1
    NKB = 2 * NT
    def qts(kb): return [0, 1, 2, 3] if cfg.C0 <= (kb >> 1) < cfg.C0 + cfg.R else [0, 1]
    mu = [(kb, qt) for kb in range(NKB) for qt in qts(kb)]
    e("@vmwait K0,V0 lgkm0")
    e("s_barrier")
    for l in k_reads(0): e(l)
    for l in v_reads(0): e(l)
    issued = {'K': 2, 'V': 2}
    for wh, d in (('K', cfg.dK), ('V', cfg.dV)):
        while issued[wh] < min(d + 1, NT):
            for l in flat(kv_dma(cfg, wh, issued[wh])): e(l)
            issued[wh] += 1
    for qt in range(2):
        for s in range(4):
            d = vr(vS + 4 * qt)
            e(f"{MF} {d}, {ar(aKF + s*4)}, {Qreg(qt, s)}, {'0' if s == 0 else d}")
    e("s_nop 7")
    for qt in range(2):
        a = vS + 4 * qt
        e(f"v_max3_f32 v{a}, v{a}, v{a+1}, v{a+2}")
        e(f"v_max_f32 v{a}, v{a}, v{a+3}")
    for op in ("v_permlane32_swap_b32", "v_permlane16_swap_b32"):
        for qt in range(2): e(f"v_mov_b32 v{vS+4*qt+1}, v{vS+4*qt}")
        e("s_nop 1")
        for qt in range(2): e(f"{op} v{vS+4*qt}, v{vS+4*qt+1}")
        e("s_nop 0")
        for qt in range(2): e(f"v_max_f32 v{vS+4*qt}, v{vS+4*qt}, v{vS+4*qt+1}")
    for qt in range(2):
        for j in range(4): e(f"v_sub_f32 v{vCI+4*qt+j}, 0, v{vS+4*qt}")
    e("s_nop 1")
    st = Stream()
    qk0 = {}; pv0 = {}
    seenO = set()
    for i in range(-1, len(mu)):
        if i + 1 < len(mu):
            kb, qt = mu[i + 1]
            qk0[i + 1] = st.n()
            for kt in range(2):
                d = vr(vS + ((i + 1) & 1) * 8 + kt * 4)
                for s in range(4):
                    st.add(f"{MF} {d}, {ar(aKF + (kb & 1)*32 + (kt*4+s)*4)}, {Qreg(qt, s)}, {vr(vCI + 4*qt) if s == 0 else d}")
        else:
            for _ in range(8): st.add(None)
        if i >= 0:
            kb, qt = mu[i]
            pv0[i] = st.n()
            p = vr(vP + (i & 1) * 4)
            first = qt not in seenO; seenO.add(qt)
            for dt in range(8):
                o = vr(vO + (qt * 8 + dt) * 4)
                st.add(f"{MF} {o}, {ar(aVF + (kb & 1)*32 + dt*4)}, {p}, {'0' if first else o}")
            l = ar(aL + 4 * qt)
            st.add(f"{MF} {l}, {ar(aONE)}, {p}, {'0' if first else l}")
        else:
            for _ in range(9): st.add(None)
    for i in range(len(mu)):
        g = qk0[i] + cfg.expoff
        sb = vS + (i & 1) * 8; pb = vP + (i & 1) * 4
        for j in range(8):
            st.force(g + 2 * j, f"v_exp_f32 v{sb+j}, v{sb+j}")
            if j & 1: st.force(g + 2 * j + 1, f"v_cvt_pk_bf16_f32 v{pb + j//2}, v{sb+j-1}, v{sb+j}")
    first_mu = {}
    for i, (kb, qt) in enumerate(mu): first_mu.setdefault(kb, i)
    for kb in range(NKB - 1):
        g0 = qk0[first_mu[kb]]
        g1 = qk0[first_mu[kb + 1]]
        gv = qk0[first_mu[kb] + 1]
        nb = kb + 1
        if nb % 2 == 0:
            t = nb >> 1
            st.force(g0, f"@vmwait K{t},V{t}")
            st.force(g0 + 1, "s_barrier")
            gk = g0 + 1
            G = []
            if t + cfg.dK < NT: place_dma(st, kv_dma(cfg, 'K', t + cfg.dK), g0 + 2, g1 - 1)
        else:
            gk = g0
            t = kb >> 1
            if t >= 1 and t + cfg.dV < NT: place_dma(st, kv_dma(cfg, 'V', t + cfg.dV), g0, g1 - 1)
        span = g1 - gk
        kend = max(gv - 1, gk + span // 3)
        st.spread(k_reads(nb), gk, min(kend, g1 - 8))
        st.spread(v_reads(nb), max(gv, kend + 1), g1 - 1)
    L = st.lines()
    for l in L: e(l)
    if '-v' in sys.argv:
        over = sum(max(0, u - 2) for u, m in zip(st.used, st.mf) if m)
        print("attention gaps", st.n(), "overfull slots", over)

def selector(e, base, tmp):
    e(f"v_lshrrev_b32 v{tmp}, 2, v{vI15}")
    e(f"v_cmp_eq_u32 vcc, v{tmp}, v{vG}")
    e(f"v_and_b32 v{tmp}, 1, v{vI15}")
    e(f"v_lshlrev_b32 v{tmp}, 4, v{tmp}")
    e(f"v_mov_b32 v{tmp+1}, 0x3f80")
    e(f"v_lshlrev_b32 v{tmp}, v{tmp}, v{tmp+1}")
    e(f"v_cndmask_b32 v{tmp}, 0, v{tmp}, vcc")
    e(f"v_and_b32 v{tmp+1}, 2, v{vI15}")
    e(f"v_cmp_eq_u32 vcc, 0, v{tmp+1}")
    for i in (0, 1, 4, 5): e(f"v_mov_b32 v{base+i}, 0")
    e(f"v_cndmask_b32 v{base+2}, 0, v{tmp}, vcc")
    e(f"v_sub_u32 v{base+3}, v{tmp}, v{base+2}")

def wo_dma(cfg, kc):
    T = vT
    G = []
    for n in range(16):
        pre = []
        if n % 4 == 0:
            pre.append(f"s_add_u32 {sT0}, {sT1}, {kc*65536 + (n>>2)*16384}")
            pre.append(f"s_add_u32 m0, {sT2}, {(kc&1)*16384 + (n>>2)*4096}")
        G.append((pre, f"buffer_load_dwordx4 v{T+(n&3)}, {SWO}, {sT0} offen offset:{1024*(n&3)} {cfg.polw} lds ; tag=pO{kc} loc={','.join('u%d' % (2*w + (kc&1)) for w in range(4))}"))
    return G

def oproj(e, cfg):
    T = vT
    e("s_barrier")
    e(f"s_lshl_b32 {sT1}, {sW}, 8")
    e(f"s_lshl_b32 {sT2}, {sW}, 15")
    for n in range(4):
        e(f"v_and_b32 v3, 0xff, v{vVD+(n&1)}")
        e(f"v_add_u32 v25, {3*n}, v{vG}")
        e(f"v_lshl_add_u32 v{T+n}, v25, 10, v3")
    for l in flat(wo_dma(cfg, 0)): e(l)
    for l in flat(wo_dma(cfg, 1)): e(l)
    for qt in range(2): e(f"v_accvgpr_read_b32 v{26+qt}, a{aL+4*qt}")
    e("s_nop 0")
    for qt in range(2): e(f"v_rcp_f32 v{26+qt}, v{26+qt}")
    e(f"s_lshr_b32 {sT0}, {sW}, 1"); e(f"s_lshl_b32 {sT0}, {sT0}, 14")
    e(f"s_and_b32 s62, {sW}, 1"); e("s_lshl_b32 s62, s62, 11")
    e(f"s_add_u32 {sT0}, {sT0}, s62")
    e(f"v_lshlrev_b32 v28, 4, v{vLANE}")
    e(f"v_add_u32 v28, {XBASE}, v28")
    e(f"v_add_u32 v25, {sT0}, v28")
    for qt in range(2):
        for s in range(4):
            a = vO + (qt * 8 + 2 * s) * 4
            q = vQ + (qt * 4 + s) * 4
            for j in range(8): e(f"v_mul_f32 v{a+j}, v{26+qt}, v{a+j}")
            for j in range(4): e(f"v_cvt_pk_bf16_f32 v{q+j}, v{a+2*j}, v{a+2*j+1}")
            e(f"ds_write_b128 v25, {vr(q)} offset:{(s*4+qt)*1024}")
    vW = T + 16
    e(f"s_sub_u32 {sT0}, {sT2}, {VBASE}")
    for dt in range(8): e(f"v_add_u32 v{vW+dt}, {sT0}, v{vVA+dt}")
    e("s_waitcnt lgkmcnt(0)")
    e("s_barrier")
    stamp(e, cfg, 3)
    st = Stream()
    D = 12
    for _ in range(D): st.add(None)
    def wfrag(ks8, nt): return aVF + (((ks8 & 1) * 8 + nt) % 16) * 4
    for ks8 in range(8):
        for nt in range(8):
            for q4 in range(4):
                acc = vr(vO + (q4 * 8 + nt) * 4)
                st.add(f"{MF} {acc}, {ar(wfrag(ks8, nt))}, {ar((ks8*4+q4)*4)}, {'0' if ks8 == 0 else acc}")
    for ks8 in range(8):
        g0 = 32 * ks8
        kc, ks = ks8 >> 1, ks8 & 1
        rd = [f"ds_read_b128 {ar((ks8*4+q4)*4)}, v28 offset:{(ks8*4+q4)*1024} ; rd=G" for q4 in range(4)]
        for nt in range(8):
            for u in range(2):
                rd.append(f"ds_read_b64_tr_b16 {ar(wfrag(ks8, nt) + 2*u, 2)}, v{vW+nt} offset:{(kc&1)*16384 + ks*8192 + u*4096} ; rd=pO{kc}")
        if ks == 0:
            st.force(g0, f"@vmwait pO{kc}")
            if kc >= 1 and kc + 1 < 4:
                place_dma(st, wo_dma(cfg, kc + 1), g0 + D + 1, g0 + D + 36)
        st.spread(rd, g0, g0 + 29)
    for l in st.lines(): e(l)
    stamp(e, cfg, 4)
    e("s_nop 7")
    e(f"s_lshl_b32 {sT0}, {sGRP}, 20")
    e(f"s_lshl_b32 {sT1}, {sW}, 18")
    e(f"s_add_u32 {sT0}, {sT0}, {sT1}")
    e(f"s_lshl_b32 {sT1}, {sMEM}, 10")
    e(f"s_add_u32 {sT0}, {sT0}, {sT1}")
    e(f"v_lshlrev_b32 v28, 4, v{vLANE}")
    k = 0
    for m in range(4):
        for q4 in range(4):
            a = vO + (q4 * 8 + 2 * m) * 4
            q = vS + 4 * k; k += 1
            for j in range(4): e(f"v_cvt_pk_bf16_f32 v{q+j}, v{a+2*j}, v{a+2*j+1}")
            e(f"s_add_u32 {sT1}, {sT0}, {(m*4+q4)*16384}")
            e(f"buffer_store_dwordx4 {vr(q)}, v28, {SWS}, {sT1} offen {cfg.polst}")

def fused_reduce(e, cfg):
    e("v_mov_b32 v31, 1")
    e("s_waitcnt vmcnt(0)")
    e(f"buffer_store_dword v31, v29, {SWS}, 0 offen sc1")
    stamp(e, cfg, 5)
    poll(e, "L_pollF", vFL, SWS, 1)
    stamp(e, cfg, 6)
    reduce_body(e, cfg, "sc1")

def group_ready(e, cfg):
    if cfg.spin == 99:
        e("s_and_b32 s62, s70, 0x3fffffff")
        e("s_sub_u32 s63, 0x3fffffff, s62")
        e(f"v_mov_b32 v27, {OOB}"); e("v_mov_b32 v28, 240")
        e("v_cmp_eq_u32 vcc, 0, v0")
        e("v_cndmask_b32 v27, v27, v28, vcc")
        e("v_mov_b32 v28, s62"); e("v_mov_b32 v26, s63")
        e(f"buffer_atomic_umax v28, v27, {SDBG}, 0 offen offset:4 sc1")
        e(f"buffer_atomic_umax v26, v27, {SDBG}, 0 offen offset:8 sc1")
    e(f"s_lshl_b32 {sT1}, {sGRP}, 4")
    e(f"v_mov_b32 v27, {sT1}")
    poll(e, "L_pollG", 27, SDBG, 16, "gt")

def diag_dump(e, cfg, n):
    if not cfg.diag: return
    e("s_waitcnt vmcnt(0)")
    stamp(e, cfg, n - 1)
    if cfg.spin >= 0:
        if cfg.spin == 99:
            e("v_mov_b32 v3, 240")
            e(f"buffer_load_dwordx2 v[4:5], v3, {SDBG}, 0 offen offset:4 sc1")
            e("s_waitcnt vmcnt(0)")
            e("v_add_u32 v4, v4, v5")
            e("s_nop 1")
            e("v_readfirstlane_b32 s3, v4")
            e("s_nop 3")
            e("s_sub_u32 s3, s3, 0x3fffffff")
        else:
            e(f"s_sub_u32 s3, s{70+2*cfg.spin}, s{70+2*cfg.spin0}")
        e(f"s_mul_i32 s3, s3, {cfg.spinmul}")
        e("s_min_u32 s3, s3, 20000")
        e("L_spin:")
        e("s_memrealtime s[62:63]")
        e("s_waitcnt lgkmcnt(0)")
        e(f"s_sub_u32 s62, s62, s{70+2*(n-1)}")
        e("s_cmp_lt_u32 s62, s3")
        e("s_cbranch_scc1 L_spin")
        return
    e("s_lshl_b32 s3, s2, 6")
    e("s_add_u32 s3, s3, 0x8000000")
    e("v_mov_b32 v3, s3")
    for k in range(n):
        e(f"v_mov_b32 v4, s{70+2*k}")
        e(f"buffer_store_dword v4, v3, {SWS}, 0 offen offset:{4*k}")

def reduce_kernel(cfg):
    L = []; e = L.append
    e("s_cmp_ge_u32 s2, 256")
    e("s_cbranch_scc1 R_end")
    e("s_load_dwordx2 s[28:29], s[0:1], 80")
    e("s_load_dwordx2 s[24:25], s[0:1], 96")
    e(f"s_lshr_b32 {sGRP}, s2, 4")
    e(f"s_and_b32 {sHKV}, s2, 7")
    e(f"s_bfe_u32 {sP}, s2, 0x10003")
    e("v_lshrrev_b32 v1, 6, v0")
    e(f"v_and_b32 v{vLANE}, 63, v0")
    e(f"v_readfirstlane_b32 {sW}, v1")
    e(f"v_and_b32 v{vI15}, 15, v0")
    e(f"v_lshrrev_b32 v{vG}, 4, v{vLANE}")
    srd(e, SWS, 0, 0, 268435456)
    srd(e, SOUT, 0, 0, 1048576)
    reduce_body(e, cfg)
    e("R_end:")
    e("s_endpgm")
    return L

def reduce_body(e, cfg, pol=""):
    e(f"s_and_b32 {sT0}, {sW}, 1"); e(f"s_lshl_b32 {sT1}, {sHKV}, 1"); e(f"s_add_u32 {sT0}, {sT0}, {sT1}")
    e(f"s_lshr_b32 {sT1}, {sW}, 1"); e(f"s_lshl_b32 {sT2}, {sP}, 1"); e(f"s_add_u32 {sT1}, {sT1}, {sT2}")
    e(f"s_lshl_b32 {sT2}, {sGRP}, 20")
    e(f"s_lshl_b32 s62, {sT0}, 16"); e(f"s_add_u32 {sT2}, {sT2}, s62")
    e(f"s_lshl_b32 s62, {sT1}, 14"); e(f"s_add_u32 {sT2}, {sT2}, s62")
    e(f"v_lshlrev_b32 v28, 4, v{vLANE}")
    e("s_waitcnt lgkmcnt(0)")
    for j in range(16):
        if j and j % 4 == 0: e(f"s_add_u32 {sT2}, {sT2}, 4096")
        e(f"buffer_load_dwordx4 {vr(32+4*j)}, v28, {SWS}, {sT2} offen offset:{1024*(j&3)} {pol}")
    selector(e, 8, 2)
    e(f"s_and_b32 s62, {sGRP}, 7"); e("s_lshl_b32 s62, s62, 17")
    e(f"s_lshl_b32 {sT1}, {sT1}, 15"); e(f"s_add_u32 s62, s62, {sT1}")
    e(f"s_lshr_b32 {sT1}, {sGRP}, 3"); e(f"s_lshl_b32 {sT1}, {sT1}, 10"); e(f"s_add_u32 s62, s62, {sT1}")
    e(f"s_lshl_b32 {sT0}, {sT0}, 6"); e(f"s_add_u32 s62, s62, {sT0}")
    e(f"v_lshlrev_b32 v2, 11, v{vI15}")
    e(f"v_lshl_add_u32 v2, v{vG}, 4, v2")
    for j in range(16):
        e(f"{MF} v[16:19], v[10:13], {vr(32+4*j)}, {'0' if j == 0 else 'v[16:19]'}")
        e(f"{MF} v[4:7], v[8:11], {vr(32+4*j)}, {'0' if j == 0 else 'v[4:7]'}")
    e("s_nop 7")
    e("v_cvt_pk_bf16_f32 v16, v16, v17"); e("v_cvt_pk_bf16_f32 v17, v18, v19")
    e("v_cvt_pk_bf16_f32 v18, v4, v5"); e("v_cvt_pk_bf16_f32 v19, v6, v7")
    for op in ("v_permlane32_swap_b32", "v_permlane16_swap_b32"):
        e("s_nop 1")
        e(f"{op} v16, v18"); e(f"{op} v17, v19")
    e(f"buffer_store_dwordx4 v[16:19], v2, {SOUT}, s62 offen {cfg.polout}")

def finish(L):
    L = auto_wait(L)
    L, nn = hazard.fix(L)
    if '-v' in sys.argv: print("auto nops", nn)
    L, bad = align.align8(L)
    errs = hazard.check(L, verbose=('-v' in sys.argv))
    assert not errs, errs[:5]
    errs = lds_check(L)
    assert not errs, errs[:5]
    return L

def gen(cfg):
    L = []; e = L.append
    prologue(e, cfg)
    qproj(e, cfg)
    stamp(e, cfg, 1)
    attention(e, cfg)
    stamp(e, cfg, 2)
    if cfg.fuse: group_ready(e, cfg)
    oproj(e, cfg)
    if cfg.fuse: fused_reduce(e, cfg)
    diag_dump(e, cfg, 8 if cfg.fuse else 6)
    e("L_end:")
    e("s_endpgm")
    L = finish(L)
    fmt = lambda X: "\n".join((x if x.endswith(':') else "  " + x.split(' ; ')[0].rstrip()) for x in X) + "\n"
    if cfg.fuse:
        s = header(["@launch grid=(256,1,1) block=(256,1,1) lds=163840"])
        s += kernel_begin(KNAME) + fmt(L)
        s += rodata([descriptor(KNAME)])
        return s
    R = finish(reduce_kernel(cfg))
    RN = "reduce_kernel"
    s = header([f"@launch kernel={KNAME} grid=(256,1,1) block=(256,1,1) lds=163840",
                f"@launch kernel={RN} grid=(256,1,1) block=(256,1,1) lds=0"])
    fmt = lambda X: "\n".join((x if x.endswith(':') else "  " + x.split(' ; ')[0].rstrip()) for x in X) + "\n"
    s += kernel_begin(KNAME) + fmt(L)
    s += kernel_begin(RN) + fmt(R)
    s += rodata([descriptor(KNAME), descriptor(RN, vgpr=96, accum=96)])
    return s

if __name__ == "__main__":
    out = sys.argv[1]
    kw = {}
    for a in sys.argv[2:]:
        if '=' in a:
            k, v = a.split('=', 1)
            kw[k] = int(v) if v.lstrip('-').isdigit() else v.replace('+', ' ')
    open(out, "w").write(gen(Cfg(**kw)))
```

```python
import re
from hazard import I

def rank(x):
    if x.startswith('s_') or x.startswith('@'): return 0
    if x.startswith('ds_') or x.startswith('buffer'): return 1
    return 2
def cost(x):
    r = rank(x)
    if r == 0: return 0
    if x.startswith('v_exp') or x.startswith('v_rcp') or x.startswith('v_permlane'): return 2
    return 1

class Stream:
    def __init__(self, cap=2):
        self.mf = []; self.fill = []; self.used = []; self.cap = cap
    def add(self, m):
        self.mf.append(m); self.fill.append([]); self.used.append(0); return len(self.mf) - 1
    def n(self): return len(self.mf)
    def force(self, g, x):
        self.fill[g].append(x); self.used[g] += cost(x); return g
    def room(self, g, x, strict):
        c = cost(x); r = rank(x)
        if r == 0: return not any(rank(y) == 0 for y in self.fill[g])
        if self.used[g] + c > self.cap: return False
        if strict and r == 1 and any(rank(y) == 1 for y in self.fill[g]): return False
        return True
    def put(self, g, x, maxg=None):
        n = self.n()
        if maxg is None or maxg > n - 1: maxg = n - 1
        g = min(max(g, 0), maxg)
        for strict in (True, False):
            for gg in range(g, maxg + 1):
                if self.room(gg, x, strict): return self.force(gg, x)
        gg = min(range(g, maxg + 1), key=lambda t: (self.used[t], t))
        return self.force(gg, x)
    def spread(self, items, g0, g1):
        g1 = min(g1, self.n() - 1)
        free = []
        for g in range(g0, g1 + 1):
            k = self.cap - self.used[g]
            hasmem = any(rank(y) == 1 for y in self.fill[g])
            for j in range(k): free.append((g, j + (1 if hasmem else 0)))
        first = [g for g, j in free if j == 0]
        second = [g for g, j in free if j > 0]
        m = len(items)
        if m <= len(first):
            ch = [first[(i * len(first)) // m] for i in range(m)]
        else:
            need = m - len(first)
            if need <= len(second):
                ex = [second[(i * len(second)) // need] for i in range(need)]
            else:
                ex = list(second)
                rest = need - len(second)
                cand = first if first else list(range(g0, g1 + 1))
                ex += [cand[((2 * i + 1) * len(cand)) // (2 * rest)] for i in range(rest)]
            ch = sorted(first + ex)
        for g, x in zip(ch, items): self.force(g, x)
        return ch
    def spreadc(self, items, g0, g1, lo=None, hi=None, win=4):
        m = len(items); prev = g0; ch = []
        n = self.n()
        for i, x in enumerate(items):
            t = g0 + (i * (g1 - g0 + 1)) // m
            a = max(prev, lo[i] if lo else 0, t - 1, g0)
            b = min(max(a, t) + win, n - 1)
            if hi: b = max(a, min(b, hi[i]))
            g = None
            for strict in (True, False):
                for gg in range(a, (min(b, a + 2) if strict else b) + 1):
                    if self.room(gg, x, strict): g = gg; break
                if g is not None: break
            if g is None:
                isexp = lambda t: any(cost(y) == 2 for y in self.fill[t])
                g = min(range(a, b + 1), key=lambda t: (self.used[t] + (1 if isexp(t) else 0), t))
            self.force(g, x); ch.append(g); prev = g
        return ch
    def lines(self):
        out = []
        for m, f in zip(self.mf, self.fill):
            if m: out.append(m)
            out += sorted(f, key=rank)
        return out

def tag_of(line, key):
    m = re.search(key + r'=([\w,]+)', line.split(';', 1)[1]) if ';' in line else None
    return m.group(1).split(',') if m else []

def auto_wait(lines, age=9):
    out = []
    lgq = []; vmq = []
    last_mfma = -1
    nmf = 0
    def setwait(kind, n, pos):
        txt = f"s_waitcnt {kind}({n})"
        if pos < len(out) and out[pos].startswith('s_waitcnt') and kind not in out[pos] and 'auto' in out[pos]:
            out[pos] = out[pos].split(';')[0].strip() + f" {kind}({n}) ; auto"
            return False
        if pos < len(out) and out[pos].startswith('s_waitcnt') and kind in out[pos] and 'auto' in out[pos]:
            old = int(re.search(kind + r'\((\d+)\)', out[pos]).group(1))
            out[pos] = re.sub(kind + r'\(\d+\)', f"{kind}({min(old, n)})", out[pos])
            return False
        out.insert(pos, txt + " ; auto")
        return True
    for l in lines:
        t = l.split(';')[0].strip()
        if t.startswith('@vmwait'):
            p = t.split()
            tags = set(p[1].split(','))
            idx = max([k for k, e in enumerate(vmq) if e[1] & tags], default=-1)
            s = ""
            if idx >= 0:
                n = len(vmq) - 1 - idx
                assert n <= 63
                s += f" vmcnt({n})"; del vmq[:idx + 1]
            if len(p) > 2 and p[2] == 'lgkm0':
                s += " lgkmcnt(0)"; lgq.clear()
            elif len(p) > 2 and p[2].startswith('rd:'):
                rt = set(p[2][3:].split(','))
                idx = max([k for k, e in enumerate(lgq) if e[1] & rt], default=-1)
                if idx >= 0:
                    n = min(len(lgq) - 1 - idx, 15)
                    assert not any(e[2] for e in lgq)
                    s += f" lgkmcnt({n})"; del lgq[:len(lgq) - n]
            if s: out.append("s_waitcnt" + s + f" ; for {p[1]}")
            continue
        if not t or t.endswith(':') or t.startswith('.'):
            out.append(l); continue
        i = I(l)
        touched = set(i.r) | set(i.w)
        for q, kind, mx in ((lgq, 'lgkmcnt', 15), (vmq, 'vmcnt', 63)):
            idx = max([k for k, e in enumerate(q) if e[0] & touched], default=-1)
            if idx < 0: continue
            if kind == 'lgkmcnt' and any(e[2] for e in q):
                setwait(kind, 0, len(out)); q.clear(); continue
            if kind == 'lgkmcnt':
                while idx + 1 < len(q) and nmf - q[idx + 1][4] >= age: idx += 1
            pos = len(out); n = len(q) - 1 - idx
            if i.kind == 'mfma' and last_mfma >= 0 and q[idx][3] < last_mfma:
                later = sum(1 for e in q if e[3] > last_mfma)
                pos = last_mfma + 1; n = n - later
            n = min(n, mx)
            ins = setwait(kind, n, pos)
            if ins:
                for e in lgq + vmq:
                    if e[3] >= pos: e[3] += 1
            before = [e for e in q if e[3] < pos]
            keep = before[len(before) - n:] if n > 0 else []
            q[:] = keep + [e for e in q if e[3] > pos]
        if i.kind == 'wait':
            if i.lg is not None and not (i.lg > 0 and any(e[2] for e in lgq)):
                while len(lgq) > i.lg: lgq.pop(0)
            if i.vm is not None:
                while len(vmq) > i.vm: vmq.pop(0)
        out.append(l)
        if i.kind in ('ds', 'smem'): lgq.append([set(i.w), set(tag_of(l, 'rd')), i.kind == 'smem', len(out) - 1, nmf])
        if i.kind == 'vmem': vmq.append([set(i.w), set(tag_of(l, 'tag')), False, len(out) - 1, nmf])
        if i.kind == 'mfma': last_mfma = len(out) - 1; nmf += 1
    return out

def lds_check(lines):
    errs = []
    lgq = []; vmq = []
    content = {}
    wr_state = {}
    rd_state = {}
    dead = set()
    def upd():
        fl = {t for q in (vmq, lgq) for k, t in q if k == 'w'}
        for c in wr_state:
            if wr_state[c] == 'flight' and c not in fl: wr_state[c] = 'landed'
        fl = {t for k, t in lgq if k == 'r'}
        for c in rd_state:
            if rd_state[c] == 'flight' and c not in fl: rd_state[c] = 'done'
    for l in lines:
        t = l.split(';')[0].strip()
        if not t or t.endswith(':') or t.startswith('.'): continue
        i = I(l)
        priv = ' priv' in l
        tag = tag_of(l, 'tag'); loc = tag_of(l, 'loc'); rd = tag_of(l, 'rd')
        if i.kind == 'wait':
            if i.lg is not None:
                while len(lgq) > i.lg: lgq.pop(0)
            if i.vm is not None:
                while len(vmq) > i.vm: vmq.pop(0)
            upd()
        elif i.op == 's_barrier':
            for c in wr_state:
                if wr_state[c] == 'landed': wr_state[c] = 'visible'
            for c in rd_state:
                if rd_state[c] == 'done': rd_state[c] = 'released'
        if loc:
            c = tag[0]
            for L in loc:
                old = content.get(L)
                if old is not None and old != c:
                    s = rd_state.get(old)
                    ok = s == 'released' or (s == 'done' and old.startswith('p')) or s is None
                    if not ok: errs.append(f"WAR {old} ({s}) overwritten by {l.strip()}")
                    dead.add(old)
                content[L] = c
            wr_state[c] = 'flight'
        if rd:
            c = rd[0]
            s = wr_state.get(c)
            if c in dead: errs.append(f"read of overwritten {c}: {l.strip()}")
            if not (s == 'visible' or (c.startswith('p') and s == 'landed')): errs.append(f"RAW {c} ({s}) read by {l.strip()}")
            rd_state[c] = 'flight'
        if i.kind in ('ds', 'smem'): lgq.append(('r', rd[0]) if rd else ('w', tag[0]) if loc else ('x', None))
        if i.kind == 'vmem': vmq.append(('w', tag[0]) if loc else ('x', None))
    return errs

def frag_check(lines):
    from hazard import regs
    cur = {}; errs = []
    for l in lines:
        t = l.split(';')[0].strip()
        if not t or t.endswith(':') or t.startswith('.') or t.startswith('@'): continue
        i = I(l)
        use = tag_of(l, 'use')
        for k, u in enumerate(use):
            if u == '_': continue
            for r in regs(i.ops[1 + k]):
                if cur.get(r) != u: errs.append(f"{l.strip()} : {r} holds {cur.get(r)}"); break
        d = tag_of(l, 'def')
        for r in i.w: cur[r] = d[0] if d else None
    return errs
```

```python
import sys, struct
from gen_common import *
import hazard, align
from sched import Stream, auto_wait, lds_check, frag_check

MF = "v_mfma_f32_16x16x32_bf16"
def f2u(x): return struct.unpack('<I', struct.pack('<f', x))[0]
QSCALE = f2u(1.4426950408889634 * 128 ** -0.5)
def vr(a, n=4): return f"v[{a}:{a+n-1}]"
def ar(a, n=4): return f"a[{a}:{a+n-1}]"

SX, SK, SV, SWQ, SWO, SWS, SOUT, SDBG = (f"s[{i}:{i+3}]" for i in (4, 8, 12, 16, 20, 24, 28, 32))
sHKV, sP, sB, sBR, sW, sW4K, sROT = "s36", "s37", "s38", "s39", "s40", "s41", "s42"
sKO, sVO, sT0, sT1, sT2, sJ0, sJ1, sGRP, sMEM = "s43", "s44", "s45", "s46", "s47", "s58", "s59", "s60", "s61"
sT3, sT4 = "s62", "s63"
sXO, sXI, sWOB, sPST = "s48", "s49", "s50", "s51"
sWC = 52
sCNT = "s56"
vKA, vVA, vKD, vVD = 4, 8, 16, 20
vL16, vI15, vG = 22, 23, 24
vFD, vFP, vFL, vFQ = 28, 29, 30, 31
vS, vP, vCI, vQ, vO = 32, 48, 56, 72, 128
vT = 104
vGC, vPOLL, vLP, vONE1, vWD, vSEL = 104, 105, 106, 108, 112, 116
aQ, aKF, aVF, aL, aONE = 0, 64, 128, 192, 208
VBASE = 65536
FLAGB = 0x1000000
QXB = 0x1100000
OXB = 0x1b00000
OOB = 0x40000000
SPIN = 0x40000

class Cfg:
    C0 = 6; R = 10; C1 = 6
    polkv = "nt"; polc = ""; polx = ""; polw = ""; polout = ""
    diag = False; spin = -1; spin0 = 0; spinmul = 1
    pf = 1; wosp = 0
    expoff = 8
    dK = 3; dV = 2
    hf = 3; hp = 5; hc = 8
    def __init__(self, **kw):
        self.__dict__.update(kw)
        assert self.C0 + 2 * self.R + self.C1 == 32
        self.NT = self.C0 + self.R + self.C1

def stamp_l(cfg, k):
    return [f"s_memrealtime s[{70+2*k}:{71+2*k}]", "s_memtime s[96:97]", "s_waitcnt lgkmcnt(0)", f"s_mov_b32 s{71+2*k}, s96"] if cfg.diag else []
def lstamp(idx):
    return ["s_memrealtime s[98:99]", "s_memtime s[96:97]", "s_waitcnt lgkmcnt(0)", f"v_writelane_b32 v254, s98, {idx}", f"v_writelane_b32 v255, s96, {idx}"]
def stamp(e, cfg, k):
    for l in stamp_l(cfg, k): e(l)
def srd(e, base, size):
    n = int(base[2:base.index(':')])
    e(f"s_mov_b32 s{n+2}, {size}"); e(f"s_mov_b32 s{n+3}, 0x20000")

def prologue(e, cfg):
    stamp(e, cfg, 0)
    e("s_cmp_ge_u32 s2, 256")
    e("s_cbranch_scc1 L_end")
    e(f"s_lshr_b32 {sBR}, s2, 7")
    e(f"s_mul_i32 {sT0}, {sBR}, 40")
    e(f"s_add_u32 s62, s0, {sT0}")
    e("s_addc_u32 s63, s1, 0")
    e("s_load_dwordx8 s[48:55], s[62:63], 0")
    e("s_load_dwordx2 s[56:57], s[62:63], 32")
    e("s_load_dwordx4 s[64:67], s[0:1], 80")
    e("s_load_dwordx2 s[24:25], s[0:1], 96")
    if cfg.pf:
        e("s_getpc_b64 s[92:93]")
        e("L_pf:")
        e("s_mov_b32 s94, L_last-L_pf"); e("s_mov_b32 s95, 0x20000")
        e(f"s_lshr_b32 {sT0}, s2, 3"); e(f"s_lshl_b32 {sT0}, {sT0}, 11")
        e(f"v_lshl_add_u32 v2, v0, 7, {sT0}")
        e(f"v_mov_b32 v3, {OOB}")
        e("v_cmp_gt_u32 vcc, 16, v0")
        e("v_cndmask_b32 v3, v3, v2, vcc")
        e(f"buffer_load_dword v{vP+7}, v3, s[92:95], 0 offen")
    e(f"s_and_b32 {sHKV}, s2, 7")
    e(f"s_bfe_u32 {sP}, s2, 0x10003")
    e(f"s_bfe_u32 {sB}, s2, 0x30004")
    e(f"s_lshr_b32 {sGRP}, s2, 4")
    e(f"s_lshl_b32 {sMEM}, {sHKV}, 1")
    e(f"s_add_u32 {sMEM}, {sMEM}, {sP}")
    e(f"s_lshl_b32 {sROT}, {sP}, 2")
    e(f"s_add_u32 {sROT}, {sROT}, {sB}")
    e(f"s_and_b32 {sROT}, {sROT}, 7")
    e("v_lshrrev_b32 v1, 6, v0")
    e("v_and_b32 v27, 63, v0")
    e(f"v_readfirstlane_b32 {sW}, v1")
    e(f"v_and_b32 v{vI15}, 15, v0")
    e(f"v_lshrrev_b32 v{vG}, 4, v27")
    e(f"v_lshlrev_b32 v{vL16}, 4, v27")
    e(f"s_lshl_b32 {sW4K}, {sW}, 12")
    T = vT
    e(f"v_lshl_add_u32 v2, v1, 4, v{vG}")
    e(f"s_lshl_b32 {sT0}, {sROT}, 7")
    for n in range(4):
        e(f"v_add_u32 v3, {4*n}, v{vG}")
        e(f"v_xor_b32 v3, v3, v{vI15}")
        e(f"v_lshlrev_b32 v{vKD+n}, 4, v3")
        e(f"v_add_u32 v{T+n}, {sT0}, v{vKD+n}")
        e(f"v_add_u32 v3, {3*n}, v2")
        e(f"v_lshlrev_b32 v{T+4+n}, 10, v3")
    for n in range(2):
        e(f"v_add_u32 v3, {4*n}, v{vG}")
        e("v_lshlrev_b32 v3, 1, v3")
        e(f"v_xor_b32 v3, v3, v{vI15}")
        e(f"v_lshlrev_b32 v{vVD+n}, 4, v3")
    e("v_lshrrev_b32 v3, 1, v1")
    e(f"v_lshl_add_u32 v3, v3, 5, v{vG}")
    e("v_and_b32 v25, 1, v1")
    e("v_lshl_add_u32 v3, v25, 2, v3")
    e("v_lshlrev_b32 v3, 13, v3")
    for n in range(4):
        e(f"v_add_u32 v{T+8+n}, {n*(65536-1024)}, v3")
        e(f"v_add_u32 v{T+8+n}, v{T+8+n}, v{vVD+(n&1)}")
    srd(e, SX, 65536)
    e(f"s_lshl_b32 {sT1}, {sMEM}, 9")
    e(f"s_sub_u32 s18, 4194304, {sT1}"); e("s_mov_b32 s19, 0x20000")
    e(f"s_lshl_b32 {sT0}, {sB}, 16")
    e(f"s_movk_i32 {sT2}, 0x3ff")
    e("s_waitcnt lgkmcnt(0)")
    stamp(e, cfg, 8)
    e(f"s_add_u32 s4, s48, {sT0}"); e("s_addc_u32 s5, s49, 0")
    e(f"s_add_u32 s16, s54, {sT1}"); e("s_addc_u32 s17, s55, 0")

def flags_setup(e, cfg):
    srd(e, SWS, 268435456)
    e(f"s_lshl_b32 {sT0}, {sGRP}, 14")
    e(f"s_add_u32 {sT0}, {sT0}, {FLAGB}")
    e(f"s_lshl_b32 {sT1}, {sMEM}, 10")
    e(f"s_add_u32 {sT1}, {sT1}, {sT0}")
    e(f"s_lshl_b32 {sT3}, {sW}, 7")
    e(f"s_add_u32 {sT3}, {sT3}, {sT1}")
    e(f"v_lshl_add_u32 v{vFL}, v{vI15}, 2, {sT3}")
    e(f"s_lshl_b32 {sT3}, {sW}, 2")
    e(f"s_add_u32 {sT3}, {sT3}, {sT1}")
    e(f"v_mov_b32 v{vFQ}, {sT3}")
    e(f"s_xor_b32 {sT3}, {sT3}, 1024")
    e(f"s_lshl_b32 {sT4}, {sMEM}, 2")
    e(f"s_add_u32 {sT4}, {sT4}, {sT0}")
    e(f"s_add_u32 {sT4}, {sT4}, {sW4K}")
    e("v_and_b32 v3, 3, v27")
    e(f"v_lshl_add_u32 v3, v3, 10, {sT4}")
    e(f"v_mov_b32 v26, {OOB}")
    e("v_cmp_gt_u32 vcc, 4, v27")
    e(f"v_cndmask_b32 v{vFD}, v26, v3, vcc")
    e(f"v_mov_b32 v25, {sT3}")
    e("v_cmp_eq_u32 vcc, 0, v27")
    e(f"v_cndmask_b32 v{vFP}, v26, v25, vcc")
    e("v_lshrrev_b32 v1, 2, v27")
    e("v_lshl_add_u32 v3, v1, 7, v3")
    e("v_subrev_u32 v1, 12, v27")
    e("v_lshl_add_u32 v25, v1, 7, v25")
    e("v_cmp_gt_u32 vcc, 18, v27")
    e("v_cndmask_b32 v25, v26, v25, vcc")
    e("v_cmp_gt_u32 vcc, 16, v27")
    e("v_cndmask_b32 v25, v25, v3, vcc")
    e("v_mov_b32 v3, 0")
    e(f"buffer_store_dword v3, v25, {SWS}, 0 offen sc1 ; tag=CLR")

def prologue2(e, cfg):
    e(f"s_lshl_b32 {sT0}, {sB}, 3")
    e(f"s_add_u32 {sT0}, {sT0}, {sHKV}")
    e(f"s_lshl_b32 {sT0}, {sT0}, 19")
    e(f"s_add_u32 s8, s50, {sT0}"); e("s_addc_u32 s9, s51, 0"); srd(e, SK, 524288)
    e(f"s_add_u32 s12, s52, {sT0}"); e("s_addc_u32 s13, s53, 0"); srd(e, SV, 524288)
    e(f"s_lshl_b32 {sT0}, {sMEM}, 18")
    e(f"s_add_u32 s20, s56, {sT0}"); e("s_addc_u32 s21, s57, 0"); srd(e, SWO, 262144)
    e("s_mov_b32 s28, s64"); e("s_mov_b32 s29, s65"); srd(e, SOUT, 1048576)
    e("s_mov_b32 s32, s66"); e("s_mov_b32 s33, s67"); srd(e, SDBG, 256)
    e(f"s_mov_b32 {sKO}, 0"); e(f"s_mov_b32 {sVO}, 0")
    e(f"s_mul_i32 {sJ0}, {sP}, {cfg.R*16384}")
    e(f"s_sub_u32 {sJ1}, {cfg.R*16384}, {sJ0}")
    e(f"s_add_u32 {sJ0}, {sJ0}, 16384"); e(f"s_add_u32 {sJ1}, {sJ1}, 16384")
    e(f"s_lshl_b32 {sT0}, s2, 2"); e(f"s_add_u32 {sT0}, {sT0}, {sW}")
    e(f"s_xor_b32 {sT1}, {sT0}, 32")
    e(f"s_mul_i32 {sXO}, {sT0}, 10240"); e(f"s_add_u32 {sXO}, {sXO}, {QXB}")
    e(f"s_mul_i32 {sXI}, {sT1}, 10240"); e(f"s_add_u32 {sXI}, {sXI}, {QXB}")
    e(f"s_bfe_u32 {sWOB}, {sB}, 0x10002"); e(f"s_lshl_b32 {sWOB}, {sWOB}, 17")
    for c in range(4):
        e(f"s_add_u32 {sT0}, {sB}, {c}"); e(f"s_and_b32 {sT0}, {sT0}, 3"); e(f"s_lshl_b32 {sT0}, {sT0}, 8")
        e(f"s_or_b32 s{sWC+c}, {sT0}, {sWOB}")
    e("v_lshlrev_b32 v3, 8, v2")
    for n in range(4): e(f"v_add_u32 v{vKD+n}, v{vKD+n}, v3")
    for n in range(2): e(f"v_add_u32 v{vVD+n}, v{vVD+n}, v3")
    e(f"v_xor_b32 v3, v{vG}, v{vI15}")
    e(f"v_lshlrev_b32 v25, 8, v{vI15}")
    for s in range(4):
        e(f"v_xor_b32 v26, {4*s}, v3")
        e(f"v_lshl_add_u32 v{vKA+s}, v26, 4, v25")
    e(f"v_lshrrev_b32 v3, 2, v{vI15}")
    e(f"v_lshl_add_u32 v3, v{vG}, 2, v3")
    e("v_and_b32 v25, 7, v3")
    e("v_lshlrev_b32 v3, 8, v3")
    e(f"v_and_b32 v26, 3, v{vI15}")
    e("v_lshl_add_u32 v3, v26, 3, v3")
    e(f"v_add_u32 v3, {VBASE}, v3")
    for dt in range(8):
        e(f"v_xor_b32 v26, {dt}, v25")
        e(f"v_lshl_add_u32 v{vVA+dt}, v26, 5, v3")

def x_dma(cfg, j):
    T = vT
    L = [f"s_add_u32 m0, {sW4K}, {j*16384}"]
    for n in range(4):
        L.append(f"v_add_u32 v{T+12+n}, {256*j}, v{T+n}")
        L.append(f"v_and_or_b32 v{T+12+n}, v{T+12+n}, {sT2}, v{T+4+n}")
    for n in range(4):
        L.append(f"buffer_load_dwordx4 v{T+12+n}, {SX}, 0 offen offset:{1024*n} {cfg.polx} lds")
    return L

def wq_dma(cfg, i):
    T = vT; G = []
    for hh in range(2):
        for n in range(4):
            pre = []
            if n == 0:
                if hh == 0: pre += [f"s_add_u32 {sT0}, {sROT}, {i}", f"s_and_b32 {sT0}, {sT0}, 7", f"s_lshl_b32 {sT0}, {sT0}, 19"]
                else: pre += [f"s_add_u32 {sT0}, {sT0}, 256"]
                pre += [f"s_add_u32 m0, {sW4K}, {VBASE + hh*49152 + (i%3)*16384}"]
            G.append((pre, f"buffer_load_dwordx4 v{T+8+n}, {SWQ}, {sT0} offen offset:{1024*n} {cfg.polw} lds ; tag=W{i} loc=u{4 + hh*3 + i%3}"))
    return G

def kunit(t): return t & 3
def vunit(t): return 4 + ((t + 2) & 3)

def kv_dma(cfg, which, t):
    so = sKO if which == 'K' else sVO
    u = kunit(t) if which == 'K' else vunit(t)
    pol = cfg.polkv if cfg.C0 <= t < cfg.C0 + cfg.R else cfg.polc
    G = []
    for n in range(4):
        pre = []
        if n == 0:
            if t > 0:
                inc = sJ0 if t == cfg.C0 else sJ1 if t == cfg.C0 + cfg.R else "0x4000"
                pre.append(f"s_add_u32 {so}, {so}, {inc}")
            pre.append(f"s_add_u32 m0, {sW4K}, {u*16384}")
        v = vKD + n if which == 'K' else vVD + (n & 1)
        G.append((pre, f"buffer_load_dwordx4 v{v}, {SK if which == 'K' else SV}, {so} offen offset:{1024*n} {pol} lds"))
    return G

def wo_dma(cfg, i, u):
    G = []
    for n in range(4):
        pre = []
        if n == 0:
            pre.append(f"s_xor_b32 {sT4}, s{sWC + (i >> 2)}, {(i & 3) * 65536}")
            pre.append(f"s_add_u32 m0, {sW4K}, {u*16384}")
        G.append((pre, f"buffer_load_dwordx4 v{vWD+n}, {SWO}, {sT4} offen offset:{1024*n} {cfg.polw} lds"))
    return G

def flat(G):
    L = []
    for pre, d in G:
        L += pre; L.append(d)
    return L

def place_dma(st, G, g0, g1):
    ch = st.spread([d for _, d in G], g0 + len(G[0][0]), g1)
    prev = g0 - 1
    for (pre, d), g in zip(G, ch):
        lo = max(prev + 1, g0)
        k = len(pre)
        assert not pre or g >= lo, (g, lo, pre)
        for idx, s in enumerate(pre):
            st.force(min(max(lo, g - k + idx), max(lo, g - 1)), s)
        prev = g
    return ch

def qproj(e, cfg):
    T = vT
    for l in x_dma(cfg, 0): e(l)
    for l in flat(wq_dma(cfg, 0)): e(l)
    for l in x_dma(cfg, 1): e(l)
    flags_setup(e, cfg)
    for l in flat(wq_dma(cfg, 1)): e(l)
    prologue2(e, cfg)
    for l in x_dma(cfg, 2): e(l)
    for l in x_dma(cfg, 3): e(l)
    vX, vW = T + 0, T + 16
    e(f"s_and_b32 {sT1}, {sW}, 1"); e(f"s_lshl_b32 {sT1}, {sT1}, 13")
    for s in range(4): e(f"v_add_u32 v{vX+s}, {sT1}, v{vKA+s}")
    e(f"s_lshr_b32 {sT1}, {sW}, 1"); e(f"s_mul_i32 {sT1}, {sT1}, 49152")
    for dt in range(8): e(f"v_add_u32 v{vW+dt}, {sT1}, v{vVA+dt}")
    e(f"s_lshl_b32 {sT1}, {sGRP}, 4")
    e(f"v_mov_b32 v26, {OOB}"); e(f"v_mov_b32 v27, {sT1}")
    e("v_cmp_eq_u32 vcc, 0, v0")
    e("v_cndmask_b32 v26, v26, v27, vcc")
    e("v_mov_b32 v25, 1")
    e("v_mov_b32 v3, 0x3f803f80")
    for i in range(4): e(f"v_accvgpr_write_b32 a{aONE+i}, v3")
    if cfg.diag == 3:
        for l in lstamp(1): e(l)
    st = Stream()
    D = 10
    for _ in range(D): st.add(None)
    def xfrag(i, ks, qq): return ((i * 2 + ks) * 2 + qq) * 4 % 64
    def wfrag(i, ks, dt): return aVF + (ks * 8 + dt) * 4
    for i in range(8):
        for ks in range(2):
            for dt in range(8):
                for qq in range(2):
                    acc = vr(vO + (qq * 8 + dt) * 4)
                    c = "0" if (i == 0 and ks == 0) else acc
                    st.add(f"{MF} {acc}, {ar(wfrag(i, ks, dt))}, {ar(xfrag(i, ks, qq))}, {c} ; use=w{i}_{ks}_{dt},x{i}_{ks}_{qq}")
    for i in range(8):
        g0 = 32 * i
        need = f"W{i}" + (f",X{i>>1}" if i % 2 == 0 else "") + (",CLR" if i == 1 else "")
        st.force(g0, f"@vmwait {need} lgkm0")
        st.force(g0, "s_barrier")
        if cfg.diag == 3:
            for l in lstamp(i + 2): st.force(g0, l)
        if i == 1: st.force(g0, f"buffer_atomic_add v25, v26, {SDBG}, 0 offen sc1")
        rd = []
        for ks in range(2):
            for qq in range(2):
                s = 2 * (i & 1) + ks
                rd.append(f"ds_read_b128 {ar(xfrag(i, ks, qq))}, v{vX+s} offset:{(i>>1)*16384 + qq*4096}")
            for dt in range(8):
                for u in range(2):
                    rd.append(f"ds_read_b64_tr_b16 {ar(wfrag(i, ks, dt) + 2*u, 2)}, v{vW+dt} offset:{(i%3)*16384 + ks*8192 + u*4096}")
        if i + 2 < 8: G = wq_dma(cfg, i + 2)
        else: G = kv_dma(cfg, 'K', i - 6) + kv_dma(cfg, 'V', i - 6)
        place_dma(st, G, g0 + 1, g0 + 26)
        st.spread(rd, g0, g0 + 27)
    for l in st.lines(): e(l)
    if cfg.diag == 3:
        for l in lstamp(10): e(l)
    e(f"s_mov_b32 {sT0}, {hex(QSCALE)}")
    for f in range(8):
        qq, s = f >> 2, f & 3
        a = vO + (qq * 8 + 2 * s) * 4
        q = vQ + f * 4
        for j in range(8): e(f"v_mul_f32 v{a+j}, {sT0}, v{a+j}")
        for j in range(4): e(f"v_cvt_pk_bf16_f32 v{q+j}, v{a+2*j}, v{a+2*j+1}")
        if f > 0:
            q -= 4
            for op in ("v_permlane32_swap_b32", "v_permlane16_swap_b32"):
                e(f"{op} v{q}, v{q+2}"); e(f"{op} v{q+1}, v{q+3}")
    q = vQ + 28
    for op in ("v_permlane32_swap_b32", "v_permlane16_swap_b32"):
        e(f"{op} v{q}, v{q+2}"); e(f"{op} v{q+1}, v{q+3}")
    if cfg.diag == 3:
        for l in lstamp(11): e(l)
    if cfg.R:
        for f in range(8):
            if f == 4: e(f"s_add_u32 {sXO}, {sXO}, 4096")
            e(f"buffer_store_dwordx4 {vr(vQ+4*f)}, v{vL16}, {SWS}, {sXO} offen offset:{1024*(f&3)} sc1 ; tag=QST")

def Qreg(qt, s):
    return vr(vQ + (qt * 4 + s) * 4) if qt < 2 else ar(aQ + ((qt - 2) * 4 + s) * 4)
def k_reads(kb):
    t, half = kb >> 1, kb & 1
    return [f"ds_read_b128 {ar(aKF + (kb & 1)*32 + (kt*4+s)*4)}, v{vKA+s} offset:{kunit(t)*16384 + half*8192 + kt*4096}" for kt in range(2) for s in range(4)]
def v_reads(kb):
    t, half = kb >> 1, kb & 1
    return [f"ds_read_b64_tr_b16 {ar(aVF + (kb & 1)*32 + dt*4 + 2*u, 2)}, v{vVA+dt} offset:{vunit(t)*16384 - VBASE + half*8192 + u*4096}" for dt in range(8) for u in range(2)]

def selector(e, base, tmp):
    e(f"v_lshrrev_b32 v{tmp}, 2, v{vI15}")
    e(f"v_cmp_eq_u32 vcc, v{tmp}, v{vG}")
    e(f"v_and_b32 v{tmp}, 1, v{vI15}")
    e(f"v_lshlrev_b32 v{tmp}, 4, v{tmp}")
    e(f"v_mov_b32 v{tmp+1}, 0x3f80")
    e(f"v_lshlrev_b32 v{tmp}, v{tmp}, v{tmp+1}")
    e(f"v_cndmask_b32 v{tmp}, 0, v{tmp}, vcc")
    e(f"v_and_b32 v{tmp+1}, 2, v{vI15}")
    e(f"v_cmp_eq_u32 vcc, 0, v{tmp+1}")
    for i in (0, 1, 4, 5): e(f"v_mov_b32 v{base+i}, 0")
    e(f"v_cndmask_b32 v{base+2}, 0, v{tmp}, vcc")
    e(f"v_sub_u32 v{base+3}, v{tmp}, v{base+2}")

def retry_block(name, dst, voff, srdn, off, val):
    return [f"{name}:", f"s_mov_b32 {sCNT}, 0", f"{name}_l:",
            f"buffer_load_dword v{dst}, v{voff}, {srdn}, 0 offen offset:{off} sc1",
            f"s_add_u32 {sCNT}, {sCNT}, 1", "s_waitcnt vmcnt(0)",
            f"v_cmp_gt_u32 vcc, {val}, v{dst}",
            f"s_cmp_ge_u32 {sCNT}, {SPIN}", f"s_cbranch_scc1 {name}_b",
            f"s_cbranch_vccnz {name}_l", f"s_branch {name}_b"]

def check_in_stream(st, g, tag, name, dst, val):
    st.force(g, f"@vmwait {tag}")
    st.force(g, f"v_cmp_gt_u32 vcc, {val}, v{dst}")
    st.force(g + 1, f"s_cbranch_vccnz {name}")
    st.force(g + 1, f"@label {name}_b")
    return g + 1

def attention(e, cfg, ool):
    NT = cfg.NT; NKB = 2 * NT
    def qts(kb): return [0, 1, 2, 3] if cfg.C0 <= (kb >> 1) < cfg.C0 + cfg.R else [0, 1]
    mu = [(kb, qt) for kb in range(NKB) for qt in qts(kb)]
    e("@vmwait K0,V0 lgkm0")
    e("s_barrier")
    if cfg.diag == 3:
        for l in lstamp(12): e(l)
    for l in k_reads(0): e(l)
    for l in v_reads(0): e(l)
    for qt in range(2):
        for s in range(4):
            d = vr(vS + 4 * qt)
            e(f"{MF} {d}, {ar(aKF + s*4)}, {Qreg(qt, s)}, {'0' if s == 0 else d} ; use=k0_0_{s}")
    for n in range(4):
        e(f"v_and_b32 v3, 0xff, v{vVD+(n&1)}")
        e(f"v_add_u32 v{vWD+n}, v{vT+4+n}, v3")
    e(f"v_mov_b32 v{vONE1}, 1")
    for qt in range(2):
        a = vS + 4 * qt
        e(f"v_max3_f32 v{a}, v{a}, v{a+1}, v{a+2}")
        e(f"v_max_f32 v{a}, v{a}, v{a+3}")
    for op in ("v_permlane32_swap_b32", "v_permlane16_swap_b32"):
        for qt in range(2): e(f"v_mov_b32 v{vS+4*qt+1}, v{vS+4*qt}")
        for qt in range(2): e(f"{op} v{vS+4*qt}, v{vS+4*qt+1}")
        for qt in range(2): e(f"v_max_f32 v{vS+4*qt}, v{vS+4*qt}, v{vS+4*qt+1}")
    for qt in range(2):
        for j in range(4): e(f"v_sub_f32 v{vCI+4*qt+j}, 0, v{vS+4*qt}")
    if cfg.R:
        e(f"s_add_u32 {sXO}, {sXO}, 4096")
        for qt in range(2): e(f"buffer_store_dwordx4 {vr(vCI+4*qt)}, v{vL16}, {SWS}, {sXO} offen offset:{1024*qt} sc1 ; tag=QST")
        e(f"s_add_u32 {sXO}, {sXO}, {OXB - QXB - 8192}")
    e(f"buffer_load_dword v{vGC}, v27, {SDBG}, 0 offen sc1 ; tag=GC")
    if cfg.diag == 3:
        for l in lstamp(13): e(l)
        e("v_mov_b32 v126, v254"); e("v_mov_b32 v127, v255")
    st = Stream()
    qk0 = {}; pv0 = {}; pvend = {}
    seenO = set()
    addO = []
    if cfg.R:
        for qt in range(2):
            for s in range(4):
                for T in range(2):
                    o = vr(vO + (qt * 8 + 2 * s + T) * 4)
                    addO.append(f"{MF} {o}, {vr(vSEL + 2 - 2*T)}, {ar(aQ + (qt*4+s)*4)}, {o} ; use=_,po{qt}_{s}")
    for i in range(-1, len(mu)):
        if i + 1 < len(mu):
            kb, qt = mu[i + 1]
            qk0[i + 1] = st.n()
            for kt in range(2):
                d = vr(vS + ((i + 1) & 1) * 8 + kt * 4)
                for s in range(4):
                    st.add(f"{MF} {d}, {ar(aKF + (kb & 1)*32 + (kt*4+s)*4)}, {Qreg(qt, s)}, {vr(vCI + 4*qt) if s == 0 else d} ; use=k{kb}_{kt}_{s}" + (f",pq{qt}_{s}" if qt >= 2 else ""))
        else:
            for k in range(8): st.add(addO[k] if addO else None)
        if i >= 0:
            kb, qt = mu[i]
            pv0[i] = st.n()
            p = vr(vP + (i & 1) * 4)
            first = qt not in seenO; seenO.add(qt)
            for dt in range(8):
                o = vr(vO + (qt * 8 + dt) * 4)
                st.add(f"{MF} {o}, {ar(aVF + (kb & 1)*32 + dt*4)}, {p}, {'0' if first else o} ; use=v{kb}_{dt},p{i}")
            l = ar(aL + 4 * qt)
            pvend[i] = st.add(f"{MF} {l}, {ar(aONE)}, {p}, {'0' if first else l} ; use=_,p{i}")
        else:
            for _ in range(9): st.add(None)
    for k in range(8, len(addO)): st.add(addO[k])
    for i in range(len(mu)):
        g = qk0[i] + cfg.expoff
        sb = vS + (i & 1) * 8; pb = vP + (i & 1) * 4
        for j in range(8):
            st.force(g + 2 * j, f"v_exp_f32 v{sb+j}, v{sb+j}")
            if j & 1: st.force(g + 2 * j + 1, f"v_cvt_pk_bf16_f32 v{pb + j//2}, v{sb+j-1}, v{sb+j} ; def=p{i}")
    first_mu = {}
    for i, (kb, qt) in enumerate(mu): first_mu.setdefault(kb, i)
    G0 = lambda kb: qk0[first_mu[kb]]
    events = {}
    def nonexp(g):
        while st.used[g] >= 2: g += 1
        return g
    kbG = cfg.hf
    g = check_in_stream(st, nonexp(G0(kbG) + 2), "GC,QST", "L_rG", vGC, 16)
    ool += retry_block("L_rG", vGC, 27, SDBG, 0, 16)
    events[kbG] = g + 1
    if cfg.R:
        events[kbG] = st.put(g + 1, f"buffer_store_dword v{vONE1}, v{vFP}, {SWS}, 0 offen offset:512 sc1") + 1
        events[cfg.hp] = st.put(G0(cfg.hp) + 2, f"buffer_load_dword v{vPOLL}, v{vFQ}, {SWS}, 0 offen offset:512 sc1 ; tag=PQ") + 1
        g = check_in_stream(st, nonexp(G0(cfg.hc) + 2), "PQ", "L_rQ", vPOLL, 1)
        ool += retry_block("L_rQ", vPOLL, vFQ, SWS, 512, 1)
        Gq = []
        for f in range(10):
            pre = [f"s_add_u32 {sXI}, {sXI}, 4096"] if f in (4, 8) else []
            dst = ar(aQ + 4 * f) if f < 8 else vr(vCI + 8 + 4 * (f - 8))
            Gq.append((pre, f"buffer_load_dwordx4 {dst}, v{vL16}, {SWS}, {sXI} offen offset:{1024*(f&3)} sc1" + (f" ; def=pq{2+(f>>2)}_{f&3}" if f < 8 else "")))
        ch = place_dma(st, Gq, g + 1, g + 22)
        st.put(ch[-1] + 1, f"s_add_u32 {sXI}, {sXI}, {OXB - QXB - 8192}")
        events[cfg.hc] = ch[-1] + 1
        kb3 = 2 * (cfg.C0 + cfg.R)
        il = first_mu[kb3] - 1
        g = pvend[il - 1] + 4
        for f in range(8):
            qt, s = 2 + (f >> 2), f & 3
            a = vO + (qt * 8 + 2 * s) * 4
            if f == 4:
                g = max(g, pvend[il] + 4)
                st.put(g, f"s_add_u32 {sXO}, {sXO}, 4096");
            for j in range(4):
                g = nonexp(g); st.force(g, f"v_cvt_pk_bf16_f32 v{a+j}, v{a+2*j}, v{a+2*j+1}")
                if j == 1: g += 1
            g = nonexp(g + 1)
            st.force(g, f"buffer_store_dwordx4 {vr(a)}, v{vL16}, {SWS}, {sXO} offen offset:{1024*(f&3)} sc1 ; tag=OST")
            g += 1
        g = st.put(g, f"s_add_u32 {sXO}, {sXO}, 4096") + 1
        for k in range(2):
            g = st.put(g, f"buffer_store_dword a{aL + 8 + 4*k}, v{vL16}, {SWS}, {sXO} offen offset:{4*k} sc1 ; tag=OST") + 1
        ofs = cfg.__dict__.get('ho', 1)
        kf, kp, kc = kb3 + cfg.hf + ofs, kb3 + cfg.hp + ofs, kb3 + cfg.hc + ofs
        assert G0(kf) > g and kc < NKB - 1
        st.force(G0(kf) + 2, "@vmwait OST")
        events[kf] = st.put(G0(kf) + 2, f"buffer_store_dword v{vONE1}, v{vFP}, {SWS}, 0 offen offset:640 sc1") + 1
        events[kp] = st.put(G0(kp) + 2, f"buffer_load_dword v{vPOLL}, v{vFQ}, {SWS}, 0 offen offset:640 sc1 ; tag=PO") + 1
        g = check_in_stream(st, nonexp(G0(kc) + 2), "PO", "L_rO", vPOLL, 1)
        ool += retry_block("L_rO", vPOLL, vFQ, SWS, 640, 1)
        Go = []
        for f in range(9):
            pre = [f"s_add_u32 {sXI}, {sXI}, 4096"] if f in (4, 8) else []
            if f < 8: Go.append((pre, f"buffer_load_dwordx4 {ar(aQ + 4*f)}, v{vL16}, {SWS}, {sXI} offen offset:{1024*(f&3)} sc1 ; def=po{f>>2}_{f&3}"))
            else: Go.append((pre, f"buffer_load_dwordx2 {vr(vLP, 2)}, v{vL16}, {SWS}, {sXI} offen sc1"))
        ch = place_dma(st, Go, g + 1, g + 20)
        events[kc] = ch[-1] + 1
    mid = 2 * (cfg.C0 + cfg.R // 2)
    sel = []; selector(sel.append, vSEL, 2)
    g = G0(mid - 2)
    for l in sel: g = st.put(g, l) + 1
    wo_unit = {0: 8, 1: 9}
    nwo = 2
    for kb in range(NKB):
        g0 = G0(kb)
        g1 = G0(kb + 1) if kb + 1 < NKB else g0 + 30
        nb = kb + 1
        G = []
        if kb == 0:
            for t in range(2, cfg.dK + 1): G += kv_dma(cfg, 'K', t)
            for t in range(2, cfg.dV + 1): G += kv_dma(cfg, 'V', t)
        if nb % 2 == 0:
            t = nb >> 1
            st.force(g0, f"@vmwait K{t},V{t} rd:K{t-1},V{t-2}")
            st.force(g0 + 1, "s_barrier")
            if cfg.diag == 2:
                for l in ["s_memrealtime s[98:99]", "s_memtime s[96:97]", "s_waitcnt lgkmcnt(0)"]: st.force(g0 + 1, l)
                st.force(g0 + 1, f"v_writelane_b32 v126, s98, {t}")
                st.force(g0 + 1, f"v_writelane_b32 v127, s96, {t}")
            gk = g0 + 1
            if t + cfg.dK < NT: G += kv_dma(cfg, 'K', t + cfg.dK)
            elif t < NT:
                wo_unit[nwo] = kunit(t - 1); G += wo_dma(cfg, nwo, kunit(t - 1)); nwo += 1
        else:
            gk = g0
            t = kb >> 1
            if t >= 1:
                if t + cfg.dV < NT: G += kv_dma(cfg, 'V', t + cfg.dV)
                else:
                    wo_unit[nwo] = vunit(t - 2); G += wo_dma(cfg, nwo, vunit(t - 2)); nwo += 1
        if cfg.wosp == 0:
            if kb in (mid, mid + 1): G += wo_dma(cfg, kb - mid, 8 + kb - mid)
        else:
            k = kb - (mid - 4 * cfg.wosp)
            if k >= 0 and k % cfg.wosp == 0 and k // cfg.wosp < 8:
                k //= cfg.wosp
                W = wo_dma(cfg, k >> 2, 8 + (k >> 2))
                G += [(W[0][0], W[k & 3][1])]
        if G: place_dma(st, G, max(gk + 1, events.get(kb, 0)), g1 - 1)
        if nb < NKB:
            pl = pv0[first_mu[kb] - 1] if kb > 0 else 0
            lo = [0] * 8 + [pl + d // 2 for d in range(16)]
            hi = [g1 - 8] * 8 + [g1 + 6] * 16
            st.spreadc(k_reads(nb) + v_reads(nb), gk, g1 - 1, lo, hi)
    if cfg.diag:
        for k, kb in ((9, 2 * cfg.C0), (10, 2 * (cfg.C0 + cfg.R))):
            for l in stamp_l(cfg, k): st.force(G0(kb), l)
    for l in st.lines(): e(l)
    if '-v' in sys.argv:
        over = sum(max(0, u - 2) for u, m in zip(st.used, st.mf) if m)
        print("attention gaps", st.n(), "overfull slots", over, "wo units", wo_unit)
    return wo_unit

def oproj(e, cfg, wo_unit):
    NT = cfg.NT
    gA, gB = kunit(NT - 1), vunit(NT - 2)
    e(f"s_lshr_b32 {sT0}, {sW}, 1"); e(f"s_mul_i32 {sT0}, {sT0}, {(gB - gA)*16384}")
    e(f"s_and_b32 {sT1}, {sW}, 1"); e(f"s_lshl_b32 {sT1}, {sT1}, 11")
    e(f"s_add_u32 {sT0}, {sT0}, {sT1}"); e(f"s_add_u32 {sT0}, {sT0}, {gA*16384}")
    e(f"v_add_u32 v25, {sT0}, v{vL16}")
    for qt in range(2): e(f"v_accvgpr_read_b32 v{26+qt}, a{aL+4*qt}")
    if cfg.R:
        for qt in range(2): e(f"v_add_f32 v{26+qt}, v{26+qt}, v{vLP+qt}")
    for qt in range(2): e(f"v_rcp_f32 v{26+qt}, v{26+qt}")
    for qt in range(2):
        for s in range(4):
            a = vO + (qt * 8 + 2 * s) * 4
            q = vQ + (qt * 4 + s) * 4
            for j in range(8): e(f"v_mul_f32 v{a+j}, v{26+qt}, v{a+j}")
            for j in range(4): e(f"v_cvt_pk_bf16_f32 v{q+j}, v{a+2*j}, v{a+2*j+1}")
            e(f"ds_write_b128 v25, {vr(q)} offset:{(s*4+qt)*1024}")
    vGA, vWA = 32, 34
    e(f"s_cmp_eq_u32 {sWOB}, 0")
    e(f"s_cselect_b32 {sT0}, {gA*16384}, {gB*16384}" if False else f"s_mov_b32 {sT0}, {gA*16384}")
    e(f"s_mov_b32 {sT1}, {gB*16384}")
    e(f"s_cselect_b32 {sT2}, {sT0}, {sT1}")
    e(f"s_cselect_b32 {sT3}, {sT1}, {sT0}")
    e(f"v_add_u32 v{vGA}, {sT2}, v{vL16}"); e(f"v_add_u32 v{vGA+1}, {sT3}, v{vL16}")
    e(f"s_lshl_b32 {sT0}, {sW}, 6")
    for k in range(2):
        e(f"v_xor_b32 v{vWA+2+k}, {sT0}, v{vVA+k}")
        e(f"v_subrev_u32 v{vWA+k}, {VBASE}, v{vWA+2+k}")
        e(f"v_add_u32 v{vWA+4+k}, {VBASE}, v{vWA+2+k}")
    e(f"s_lshl_b32 {sPST}, {sGRP}, 20")
    e(f"s_lshl_b32 {sT1}, {sW}, 16"); e(f"s_add_u32 {sPST}, {sPST}, {sT1}")
    e(f"s_lshl_b32 {sT1}, {sMEM}, 10"); e(f"s_add_u32 {sPST}, {sPST}, {sT1}")
    st = Stream()
    NPRE = 12
    for _ in range(NPRE): st.add(None)
    def afrag(j, kk, k): return aVF + (j & 1) * 32 + (kk * 2 + k) * 4
    def acc(c, q4, k): return vO + c * 32 + q4 * 8 + k * 4
    S0 = {}
    for j in range(8):
        c = j >> 1
        S0[j] = st.n()
        for kk in range(4):
            ks8 = (j & 1) * 4 + kk
            for k in range(2):
                for q4 in range(4):
                    a = vr(acc(c, q4, k))
                    st.add(f"{MF} {a}, {ar(afrag(j, kk, k))}, {ar((ks8*4+q4)*4)}, {'0' if ks8 == 0 else a} ; use=a{j}_{kk}_{k},b{ks8}_{q4}")
    def a_reads(j):
        rd = []
        for kk in range(4):
            i = 2 * j + (kk >> 1); u = wo_unit[i]
            for k in range(2):
                for h in range(2):
                    rd.append(f"ds_read_b64_tr_b16 {ar(afrag(j, kk, k) + 2*h, 2)}, v{vWA + 2*(u>>2) + k} offset:{(u&3)*16384 + (kk&1)*8192 + h*4096}")
        return rd
    def b_reads(ks8):
        return [f"ds_read_b128 {ar((ks8*4+q4)*4)}, v{vGA + (ks8>>2)} offset:{((ks8&3)*4+q4)*1024}" for q4 in range(4)]
    nwo = len(wo_unit)
    free = []
    st.force(0, "@vmwait O0,O1 lgkm0"); st.force(0, "s_barrier")
    for l in stamp_l(cfg, 3): st.force(0, l)
    r0 = []
    a0 = a_reads(0)
    for kk in range(4): r0 += b_reads(kk) + a0[4*kk:4*kk+4]
    for k, l in enumerate(r0[:24]): st.force(k // 2, l)
    rest = r0[24:]
    for j in range(8):
        g0 = S0[j]
        rd = []
        if j == 0:
            for k, l in enumerate(rest): st.force(g0 + k // 2, l)
            g0 += 8
        if j + 1 < 8:
            st.force(g0, f"@vmwait O{2*j+2},O{2*j+3} lgkm0"); st.force(g0 + 1, "s_barrier")
            free += [wo_unit[2*j], wo_unit[2*j+1]]
            if j == 0: free = [vunit(NT - 1)] + free
            if j == 1: free += [gA, gB]
            G = []
            while free and nwo < 16 and len(G) < 16:
                wo_unit[nwo] = free.pop(0); G += wo_dma(cfg, nwo, wo_unit[nwo]); nwo += 1
            rd = a_reads(j + 1)
            if j == 0:
                rd = [x for kk in range(4) for x in b_reads(4 + kk) + rd[4*kk:4*kk+4]]
            if G: place_dma(st, G, g0 + 2, S0[j] + 31)
            st.spread(rd, g0 + 1, S0[j] + 27)
        if j >= 2 and j % 2 == 0:
            c = j // 2 - 1
            g = S0[j] + 4
            for q4 in range(4):
                a = acc(c, q4, 0)
                st.put(g, f"s_add_u32 {sT3}, {sPST}, {c*262144 + q4*16384}")
                for k in range(4): g = st.put(g, f"v_cvt_pk_bf16_f32 v{a+k}, v{a+2*k}, v{a+2*k+1}")
                g = st.put(g + 2, f"buffer_store_dwordx4 {vr(a)}, v{vL16}, {SWS}, {sT3} offen sc1 ; tag=PS{c}") + 1
        if j == 7:
            st.force(S0[j], "@vmwait PS0")
            st.put(S0[j], f"buffer_store_dword v{vONE1}, v{vFD}, {SWS}, 0 offen sc1")
    for l in st.lines(): e(l)
    stamp(e, cfg, 4)
    c = 3
    for q4 in range(4):
        a = acc(c, q4, 0)
        e(f"s_add_u32 {sT3}, {sPST}, {c*262144 + q4*16384}")
        for k in range(4): e(f"v_cvt_pk_bf16_f32 v{a+k}, v{a+2*k}, v{a+2*k+1}")
        e(f"buffer_store_dwordx4 {vr(a)}, v{vL16}, {SWS}, {sT3} offen sc1 ; tag=PS{c}")
    e(f"s_lshl_b32 {sT2}, {sGRP}, 20")
    e(f"s_lshl_b32 {sT0}, {sW}, 18"); e(f"s_add_u32 {sT2}, {sT2}, {sT0}")
    e(f"s_lshl_b32 {sT0}, {sMEM}, 14"); e(f"s_add_u32 {sT2}, {sT2}, {sT0}")
    e(f"s_lshl_b32 {sT3}, {sB}, 17")
    e(f"s_and_b32 {sT0}, {sMEM}, 3"); e(f"s_lshl_b32 {sT0}, {sT0}, 15"); e(f"s_add_u32 {sT3}, {sT3}, {sT0}")
    e(f"s_lshl_b32 {sT0}, {sBR}, 10"); e(f"s_add_u32 {sT3}, {sT3}, {sT0}")
    e(f"s_add_u32 {sT0}, {sW}, {sB}"); e(f"s_and_b32 {sT0}, {sT0}, 3"); e(f"s_lshl_b32 {sT0}, {sT0}, 8"); e(f"s_add_u32 {sT3}, {sT3}, {sT0}")
    e(f"s_lshr_b32 {sT0}, {sMEM}, 2"); e(f"s_lshl_b32 {sT0}, {sT0}, 6"); e(f"s_add_u32 {sT3}, {sT3}, {sT0}")
    e(f"v_lshlrev_b32 v2, 11, v{vI15}")
    e(f"v_lshl_add_u32 v2, v{vG}, 4, v2")
    for c in range(1, 4):
        e(f"@vmwait PS{c}")
        e(f"buffer_store_dword v{vONE1}, v{vFD}, {SWS}, 0 offen offset:{128*c} sc1")
    stamp(e, cfg, 5)
    e(f"s_mov_b32 {sCNT}, 0")
    e("L_pF:")
    e(f"buffer_load_dword v{vPOLL}, v{vFL}, {SWS}, 0 offen sc1")
    e(f"s_add_u32 {sCNT}, {sCNT}, 1")
    e("s_waitcnt vmcnt(0)")
    e(f"v_cmp_gt_u32 vcc, 1, v{vPOLL}")
    e(f"s_cmp_ge_u32 {sCNT}, {SPIN}")
    e("s_cbranch_scc1 L_pF_x")
    e("s_cbranch_vccnz L_pF")
    e("L_pF_x:")
    stamp(e, cfg, 6)
    for j in range(16):
        if j and j % 4 == 0: e(f"s_add_u32 {sT2}, {sT2}, 4096")
        e(f"buffer_load_dwordx4 {vr(32+4*j)}, v{vL16}, {SWS}, {sT2} offen offset:{1024*(j&3)} sc1")
    for j in range(16):
        e(f"{MF} v[16:19], {vr(vSEL+2)}, {vr(32+4*j)}, {'0' if j == 0 else 'v[16:19]'}")
        e(f"{MF} v[4:7], {vr(vSEL)}, {vr(32+4*j)}, {'0' if j == 0 else 'v[4:7]'}")
    e("v_cvt_pk_bf16_f32 v16, v16, v17"); e("v_cvt_pk_bf16_f32 v17, v18, v19")
    e("v_cvt_pk_bf16_f32 v18, v4, v5"); e("v_cvt_pk_bf16_f32 v19, v6, v7")
    for op in ("v_permlane32_swap_b32", "v_permlane16_swap_b32"):
        e(f"{op} v16, v18"); e(f"{op} v17, v19")
    e(f"buffer_store_dwordx4 v[16:19], v2, {SOUT}, {sT3} offen {cfg.polout}")

def diag_dump(e, cfg):
    if not cfg.diag: return
    e("s_waitcnt vmcnt(0)")
    stamp(e, cfg, 7)
    if cfg.spin >= 0:
        e(f"s_sub_u32 s3, s{70+2*cfg.spin}, s{70+2*cfg.spin0}")
        e(f"s_mul_i32 s3, s3, {cfg.spinmul}")
        e("s_min_u32 s3, s3, 20000")
        e("L_spin:")
        e("s_memrealtime s[62:63]")
        e("s_waitcnt lgkmcnt(0)")
        e("s_sub_u32 s62, s62, s84")
        e("s_cmp_lt_u32 s62, s3")
        e("s_cbranch_scc1 L_spin")
        return
    e("s_lshl_b32 s3, s2, 2"); e(f"s_add_u32 s3, s3, {sW}"); e("s_lshl_b32 s3, s3, 7")
    e("s_add_u32 s3, s3, 0x8000000")
    e("v_mov_b32 v3, s3")
    if cfg.diag >= 2:
        e("s_lshl_b32 s62, s2, 2"); e(f"s_add_u32 s62, s62, {sW}"); e("s_lshl_b32 s62, s62, 9"); e("s_add_u32 s62, s62, 0x9000000")
        e(f"v_lshrrev_b32 v4, 2, v{vL16}")
        e(f"buffer_store_dword v126, v4, {SWS}, s62 offen")
        e(f"buffer_store_dword v127, v4, {SWS}, s62 offen offset:256")
    for k in range(11):
        e(f"v_mov_b32 v4, s{70+2*k}")
        e(f"buffer_store_dword v4, v3, {SWS}, 0 offen offset:{4*k}")
        e(f"v_mov_b32 v5, s{71+2*k}")
        e(f"buffer_store_dword v5, v3, {SWS}, 0 offen offset:{64+4*k}")

def finish(L):
    L = [(x.split()[1] + ":") if x.startswith('@label') else x for x in L]
    errs = frag_check(L)
    assert not errs, errs[:5]
    L = auto_wait(L)
    L, nn = hazard.fix(L)
    L, bad = align.align8(L)
    if '-v' in sys.argv: print("auto nops", nn, "misaligned", bad)
    errs = hazard.check(L, verbose=('-v' in sys.argv))
    assert not errs, errs[:5]
    errs = lds_check(L)
    assert not errs, errs[:5]
    return L

def gen(cfg):
    L = []; e = L.append
    ool = []
    prologue(e, cfg)
    qproj(e, cfg)
    stamp(e, cfg, 1)
    wo_unit = attention(e, cfg, ool)
    stamp(e, cfg, 2)
    oproj(e, cfg, wo_unit)
    diag_dump(e, cfg)
    e("L_end:")
    e("s_endpgm")
    L = finish(L)
    L += ool + ["L_last:", "s_endpgm"]
    fmt = lambda X: "\n".join((x if x.endswith(':') else "  " + x.split(' ; ')[0].rstrip()) for x in X) + "\n"
    s = header(["@launch grid=(256,1,1) block=(256,1,1) lds=163840"])
    s += kernel_begin(KNAME) + fmt(L)
    s += rodata([descriptor(KNAME)])
    return s

if __name__ == "__main__":
    out = sys.argv[1]
    kw = {}
    for a in sys.argv[2:]:
        if '=' in a:
            k, v = a.split('=', 1)
            kw[k] = int(v) if v.lstrip('-').isdigit() else v.replace('+', ' ')
    open(out, "w").write(gen(Cfg(**kw)))
```

```python
import re
VOP12 = ('v_exp_f32', 'v_add_f32', 'v_mul_f32', 'v_sub_f32', 'v_mov_b32', 'v_max_f32', 'v_rcp_f32', 'v_add_u32', 'v_and_b32',
         'v_lshlrev_b32', 'v_lshrrev_b32', 'v_xor_b32', 'v_or_b32', 'v_subrev_f32', 'v_fmac_f32', 'v_min_f32', 'v_sub_u32', 'v_subrev_u32', 'v_max_u32', 'v_mul_u32_u24')
INL = re.compile(r'^-?(\d+|0\.5|1\.0|2\.0|4\.0)$')
def has_literal(ops):
    for o in ops:
        o = o.strip()
        if re.match(r'^-?0x[0-9a-fA-F]+$', o) or re.match(r'^-?\d+$', o):
            v = int(o, 0)
            if not (-16 <= v <= 64): return True
        if o.startswith('L_'): return True
    return False
def size(line):
    t = line.split(';')[0].strip()
    if not t or t.endswith(':') or t.startswith('.'): return 0
    p = t.split(None, 1); op = p[0]
    ops = p[1].split(',') if len(p) > 1 else []
    if op in VOP12 and len(ops) == 3 and not ops[2].strip().startswith('v'): return 8
    if op in VOP12 or op.endswith('_e32') or op in ('v_readfirstlane_b32', 'v_permlane32_swap_b32', 'v_permlane16_swap_b32', 'v_nop', 'v_accvgpr_mov_b32', 'v_dot2c_f32_bf16'):
        return 8 if has_literal(ops) else 4
    if op.startswith('v_cmp'):
        return (8 if has_literal(ops) else 4) if ops[0].strip() == 'vcc' else 8
    if op.startswith('v_cndmask'):
        return 4 if ops[-1].strip() == 'vcc' else 8
    if op.startswith('v_') or op.startswith('ds_') or op.startswith('buffer_') or op.startswith('global_') or op.startswith('s_load') or op.startswith('s_mem'):
        return 8
    if op in ('s_waitcnt', 's_barrier', 's_nop', 's_endpgm', 's_branch', 's_setprio', 's_sleep') or op.startswith('s_cbranch') or op.startswith('s_movk') or op.startswith('s_addk') or op.startswith('s_cmpk') or op.startswith('s_getreg'):
        return 4
    if op.startswith('s_'):
        return 8 if has_literal(ops) else 4
    raise ValueError(line)
def promotable(line):
    t = line.split(';')[0].strip(); op = t.split(None, 1)[0]
    return op in VOP12 and size(line) == 4
def align8(lines, pad=False):
    out = list(lines); pos = 0; run = []
    bad = 0
    res = []
    for l in lines:
        s = size(l)
        force = l.startswith('.iter')
        if (s == 8 or force) and pos % 8 == 4:
            fixed = False
            for j in reversed(run):
                if j is not None and promotable(res[j]):
                    t = res[j].strip(); op, rest = t.split(None, 1)
                    k = run.index(j)
                    if k % 2 == 0:
                        res[j] = f"{op}_e64 {rest}"; pos += 4; fixed = True; break
            if not fixed:
                if force:
                    k = len(res) - 1 if res[-1].startswith('s_cbranch') else len(res)
                    res.insert(k, "s_nop 0"); pos += 4
                elif pad:
                    res.append("s_nop 0"); pos += 4
                else:
                    bad += 1
        if s == 8 or force: run = [] if pos % 8 == 0 else [None]
        res.append(l)
        if s == 4: run.append(len(res) - 1)
        pos += s
        run = [r for r in run]
        if None in run[1:]: raise Exception
    return res, bad
```

```python
import re
from hazard import I

def rank(x):
    if x.startswith('s_') or x.startswith('@'): return 0
    if x.startswith('ds_') or x.startswith('buffer'): return 1
    return 2
def cost(x):
    r = rank(x)
    if r == 0: return 0
    if x.startswith('v_exp') or x.startswith('v_rcp') or x.startswith('v_permlane'): return 2
    return 1

class Stream:
    def __init__(self, cap=2):
        self.mf = []; self.fill = []; self.used = []; self.cap = cap; self.late = set()
    def add(self, m):
        self.mf.append(m); self.fill.append([]); self.used.append(0); return len(self.mf) - 1
    def n(self): return len(self.mf)
    def force(self, g, x):
        self.fill[g].append(x); self.used[g] += cost(x); return g
    def room(self, g, x, strict):
        c = cost(x); r = rank(x)
        if r == 0: return not any(rank(y) == 0 for y in self.fill[g])
        if self.used[g] + c > self.cap: return False
        if strict and r == 1 and any(rank(y) == 1 for y in self.fill[g]): return False
        return True
    def put(self, g, x, maxg=None):
        n = self.n()
        if maxg is None or maxg > n - 1: maxg = n - 1
        g = min(max(g, 0), maxg)
        for strict in (True, False):
            for gg in range(g, maxg + 1):
                if self.room(gg, x, strict): return self.force(gg, x)
        gg = min(range(g, maxg + 1), key=lambda t: (self.used[t], t))
        return self.force(gg, x)
    def spread(self, items, g0, g1):
        g1 = min(g1, self.n() - 1)
        free = []
        for g in range(g0, g1 + 1):
            k = self.cap - self.used[g]
            hasmem = any(rank(y) == 1 for y in self.fill[g])
            for j in range(k): free.append((g, j + (1 if hasmem else 0)))
        first = [g for g, j in free if j == 0]
        second = [g for g, j in free if j > 0]
        m = len(items)
        if m <= len(first):
            ch = [first[(i * len(first)) // m] for i in range(m)]
        else:
            need = m - len(first)
            if need <= len(second):
                ex = [second[(i * len(second)) // need] for i in range(need)]
            else:
                ex = list(second)
                rest = need - len(second)
                cand = first if first else list(range(g0, g1 + 1))
                ex += [cand[((2 * i + 1) * len(cand)) // (2 * rest)] for i in range(rest)]
            ch = sorted(first + ex)
        for g, x in zip(ch, items): self.force(g, x)
        return ch
    def spreadc(self, items, g0, g1, lo=None, hi=None, win=4):
        m = len(items); prev = g0; ch = []
        n = self.n()
        for i, x in enumerate(items):
            t = g0 + (i * (g1 - g0 + 1)) // m
            a = max(prev, lo[i] if lo else 0, t - 1, g0)
            b = min(max(a, t) + win, n - 1)
            if hi: b = max(a, min(b, hi[i]))
            g = None
            for strict in (True, False):
                for gg in range(a, (min(b, a + 2) if strict else b) + 1):
                    if self.room(gg, x, strict): g = gg; break
                if g is not None: break
            if g is None:
                isexp = lambda t: any(cost(y) == 2 for y in self.fill[t])
                g = min(range(a, b + 1), key=lambda t: (self.used[t] + (1 if isexp(t) else 0), t))
            self.force(g, x); ch.append(g); prev = g
        return ch
    def lines(self):
        out = []
        for g, (m, f) in enumerate(zip(self.mf, self.fill)):
            if m: out.append(m)
            key = rank if g not in self.late else (lambda x: 3 if x.startswith('ds_read') else rank(x))
            for x in sorted(f, key=key): out += x.split('\n')
        return out

def tag_of(line, key):
    m = re.search(key + r'=([\w,]+)', line.split(';', 1)[1]) if ';' in line else None
    return m.group(1).split(',') if m else []

def auto_wait(lines, age=9):
    out = []
    lgq = []; vmq = []
    last_mfma = -1
    nmf = 0
    def setwait(kind, n, pos):
        txt = f"s_waitcnt {kind}({n})"
        if pos < len(out) and out[pos].startswith('s_waitcnt') and kind not in out[pos] and 'auto' in out[pos]:
            out[pos] = out[pos].split(';')[0].strip() + f" {kind}({n}) ; auto"
            return False
        if pos < len(out) and out[pos].startswith('s_waitcnt') and kind in out[pos] and 'auto' in out[pos]:
            old = int(re.search(kind + r'\((\d+)\)', out[pos]).group(1))
            out[pos] = re.sub(kind + r'\(\d+\)', f"{kind}({min(old, n)})", out[pos])
            return False
        out.insert(pos, txt + " ; auto")
        return True
    for l in lines:
        t = l.split(';')[0].strip()
        if t.startswith('@vmwait'):
            p = t.split()
            tags = set(p[1].split(','))
            idx = max([k for k, e in enumerate(vmq) if e[1] & tags], default=-1)
            s = ""
            if idx >= 0:
                n = len(vmq) - 1 - idx
                assert n <= 63
                s += f" vmcnt({n})"; del vmq[:idx + 1]
            if len(p) > 2 and p[2] == 'lgkm0':
                s += " lgkmcnt(0)"; lgq.clear()
            elif len(p) > 2 and p[2].startswith('rd:'):
                rt = set(p[2][3:].split(','))
                idx = max([k for k, e in enumerate(lgq) if e[1] & rt], default=-1)
                if idx >= 0:
                    n = min(len(lgq) - 1 - idx, 15)
                    assert not any(e[2] for e in lgq)
                    s += f" lgkmcnt({n})"; del lgq[:len(lgq) - n]
            if s: out.append("s_waitcnt" + s + f" ; for {p[1]}")
            continue
        if not t or t.endswith(':') or t.startswith('.'):
            out.append(l); continue
        i = I(l)
        touched = set(i.r) | set(i.w)
        for q, kind, mx in ((lgq, 'lgkmcnt', 15), (vmq, 'vmcnt', 63)):
            idx = max([k for k, e in enumerate(q) if e[0] & touched], default=-1)
            if idx < 0: continue
            if kind == 'lgkmcnt' and any(e[2] for e in q):
                setwait(kind, 0, len(out)); q.clear(); continue
            if kind == 'lgkmcnt':
                while idx + 1 < len(q) and nmf - q[idx + 1][4] >= age: idx += 1
            pos = len(out); n = len(q) - 1 - idx
            if i.kind == 'mfma' and last_mfma >= 0 and q[idx][3] < last_mfma:
                later = sum(1 for e in q if e[3] > last_mfma)
                pos = last_mfma + 1; n = n - later
            n = min(n, mx)
            ins = setwait(kind, n, pos)
            if ins:
                for e in lgq + vmq:
                    if e[3] >= pos: e[3] += 1
            before = [e for e in q if e[3] < pos]
            keep = before[len(before) - n:] if n > 0 else []
            q[:] = keep + [e for e in q if e[3] > pos]
        if i.kind == 'wait':
            if i.lg is not None and not (i.lg > 0 and any(e[2] for e in lgq)):
                while len(lgq) > i.lg: lgq.pop(0)
            if i.vm is not None:
                while len(vmq) > i.vm: vmq.pop(0)
        out.append(l)
        if i.kind in ('ds', 'smem'): lgq.append([set(i.w), set(tag_of(l, 'rd')), i.kind == 'smem', len(out) - 1, nmf])
        if i.kind == 'vmem': vmq.append([set(i.w), set(tag_of(l, 'tag')), False, len(out) - 1, nmf])
        if i.kind == 'mfma': last_mfma = len(out) - 1; nmf += 1
    return out

def lds_check(lines):
    errs = []
    lgq = []; vmq = []
    content = {}
    wr_state = {}
    rd_state = {}
    dead = set()
    def upd():
        fl = {t for q in (vmq, lgq) for k, t in q if k == 'w'}
        for c in wr_state:
            if wr_state[c] == 'flight' and c not in fl: wr_state[c] = 'landed'
        fl = {t for k, t in lgq if k == 'r'}
        for c in rd_state:
            if rd_state[c] == 'flight' and c not in fl: rd_state[c] = 'done'
    for l in lines:
        t = l.split(';')[0].strip()
        if not t or t.endswith(':') or t.startswith('.'): continue
        i = I(l)
        priv = ' priv' in l
        tag = tag_of(l, 'tag'); loc = tag_of(l, 'loc'); rd = tag_of(l, 'rd')
        if i.kind == 'wait':
            if i.lg is not None:
                while len(lgq) > i.lg: lgq.pop(0)
            if i.vm is not None:
                while len(vmq) > i.vm: vmq.pop(0)
            upd()
        elif i.op == 's_barrier':
            for c in wr_state:
                if wr_state[c] == 'landed': wr_state[c] = 'visible'
            for c in rd_state:
                if rd_state[c] == 'done': rd_state[c] = 'released'
        if loc:
            c = tag[0]
            for L in loc:
                old = content.get(L)
                if old is not None and old != c:
                    s = rd_state.get(old)
                    ok = s == 'released' or (s == 'done' and (old.startswith('p') or ' own' in l)) or s is None
                    if not ok: errs.append(f"WAR {old} ({s}) overwritten by {l.strip()}")
                    dead.add(old)
                content[L] = c
            wr_state[c] = 'flight'
        if rd:
            c = rd[0]
            s = wr_state.get(c)
            if c in dead: errs.append(f"read of overwritten {c}: {l.strip()}")
            if not (s == 'visible' or (c.startswith('p') and s == 'landed')): errs.append(f"RAW {c} ({s}) read by {l.strip()}")
            rd_state[c] = 'flight'
        if i.kind in ('ds', 'smem'): lgq.append(('r', rd[0]) if rd else ('w', tag[0]) if loc else ('x', None))
        if i.kind == 'vmem': vmq.append(('w', tag[0]) if loc else ('x', None))
    return errs

def frag_check(lines):
    from hazard import regs
    cur = {}; errs = []
    for l in lines:
        t = l.split(';')[0].strip()
        if not t or t.endswith(':') or t.startswith('.') or t.startswith('@'): continue
        i = I(l)
        use = tag_of(l, 'use')
        for k, u in enumerate(use):
            if u == '_': continue
            for r in regs(i.ops[1 + k]):
                if cur.get(r) != u: errs.append(f"{l.strip()} : {r} holds {cur.get(r)}"); break
        d = tag_of(l, 'def')
        for r in i.w: cur[r] = d[0] if d else None
    return errs
```

```python
import sys, struct, re
from gen_common import *
import hazard, align
from sched import Stream, auto_wait, lds_check, frag_check

MF = "v_mfma_f32_16x16x32_bf16"
def f2u(x): return struct.unpack('<I', struct.pack('<f', x))[0]
QSCALE = f2u(1.4426950408889634 * 128 ** -0.5)
def vr(a, n=4): return f"v[{a}:{a+n-1}]"
def ar(a, n=4): return f"a[{a}:{a+n-1}]"

SX, SK, SV, SWQ, SWO, SWS, SOUT, SDBG = (f"s[{i}:{i+3}]" for i in (4, 8, 12, 16, 20, 24, 28, 32))
sHKV, sP, sB, sBR, sW, sW4K, sROT = "s36", "s37", "s38", "s39", "s40", "s41", "s42"
sKO, sVO, sT0, sT1, sT2, sJ0, sJ1, sGRP, sMEM = "s43", "s44", "s45", "s46", "s47", "s58", "s59", "s60", "s61"
sT3, sT4 = "s62", "s63"
sXO, sXI, sWOB, sPST = "s48", "s49", "s50", "s51"
sWC = 52
sCNT = "s56"
vKA, vVA, vKD, vVD = 4, 8, 16, 20
vL16, vI15, vG = 22, 23, 24
vFD, vFP, vFL, vFQ = 28, 29, 30, 31
vS, vP, vCI, vQ, vO = 32, 48, 56, 72, 128
vT = 104
vGC, vPOLL, vLP, vONE1, vWD, vSEL = 72, 73, 74, 76, 80, 84
vWA = [116, 117, 118, 119, 124, 125]; vOUT = 79; sPLD = 's50'
vXA, vGA, vQR, vQW, vGW = 90, 94, 96, 98, 100
sKH, sHH, sSC, sSC2, sLOOP = "s58", "s59", "s68", "s[68:69]", "s48"
vL, vSA, vSA0, vSI = 104, 120, 77, 78
vPF, vPF2 = 31, 75; aSEN = 228; sCLR = 's67'; vFB = 29
sMO, sOLD, sMK, sDONE, sGO, sGC, sOOB = 's92', 's93', 's94', 's95', 's64', 's65', 's66'
vPR = 99; aPR = 212; sMASK = "s57"
aQ, aKF, aVF, aL, aONE = 0, 64, 128, 192, 208
VBASE = 65536
FLAGB = 0x1000000
OOB = 0x40000000
SPIN = 0x40000

class Cfg:
    NT = 32
    polkv = ""; polx = ""; polw = ""; polout = ""
    diag = False; spin = -1; spin0 = 0; spinmul = 1
    pf = 2; pft = 2; wosp = 2; wo0 = 8
    xmap = 1; rotg = 4; x1first = 0
    w1early = 1; qD = 14; qG = 6; qkv = 'K0|V0,K1|V1'
    krot = (9, 3, 20)
    soft = 0; soft0 = 1; l0 = 4
    wl = 2; wx = 2; wn = 1; ops = '3,2,2'; pst = 4
    f0 = 2; mode = 'M'; nclr = 3; fb = 1; qm = 0; psp = 0; f0d = 64; tann = 1; n1 = 0; p2 = 1; pp = 2; f0p = -60
    padA = 0; padB = 0; padT = 4
    off = 6; fkv = 'K2'; fden = 8; b0 = 24; polp = 'sc1'; omax = 8
    expoff = 8; rdend = 9; gc = 100; roll = 1; mk = 5; dmaalone = 1; smf = 1; psw = 1; cvtd = 0
    def __init__(self, **kw):
        self.__dict__.update(kw)
        if self.smf and 'expoff' not in kw: self.expoff = 7
        self.gA, self.gB, self.gS = kunit(self.NT - 1), vunit(self.NT - 1), vunit(self.NT - 2)
        if isinstance(self.krot, str): self.krot = tuple(int(x) for x in self.krot.split(','))

def stamp_l(cfg, k):
    if k == 9: return []
    return [f"s_memrealtime s[{70+2*k}:{71+2*k}]", "s_memtime s[96:97]", "s_waitcnt lgkmcnt(0)", f"s_mov_b32 s{71+2*k}, s96"] if cfg.diag else []
def lstamp(idx, r=254):
    return ["s_memrealtime s[98:99]", "s_memtime s[96:97]", "s_waitcnt lgkmcnt(0)", f"v_writelane_b32 v{r}, s98, {idx}", f"v_writelane_b32 v{r+1}, s96, {idx}"]
def stamp(e, cfg, k):
    for l in stamp_l(cfg, k): e(l)
def srd(e, base, size):
    n = int(base[2:base.index(':')])
    e(f"s_mov_b32 s{n+2}, {size}"); e(f"s_mov_b32 s{n+3}, 0x20000")

def prologue(e, cfg):
    stamp(e, cfg, 0)
    e("s_cmp_ge_u32 s2, 256")
    e("s_cbranch_scc1 L_end")
    e(f"s_bfe_u32 {sBR}, s2, 0x10002" if cfg.xmap else f"s_lshr_b32 {sBR}, s2, 7")
    e(f"s_mul_i32 {sT0}, {sBR}, 40")
    e(f"s_add_u32 s62, s0, {sT0}")
    e("s_addc_u32 s63, s1, 0")
    e("s_load_dwordx8 s[48:55], s[62:63], 0")
    e("s_load_dwordx2 s[56:57], s[62:63], 32")
    e("s_load_dwordx4 s[64:67], s[0:1], 80")
    e("s_load_dwordx2 s[24:25], s[0:1], 96")
    if cfg.pf:
        e("s_getpc_b64 s[88:89]")
        e("L_pf:")
        e("s_mov_b32 s90, L_last-L_pf"); e("s_mov_b32 s91, 0x20000")
        e(f"s_lshr_b32 {sT0}, s2, 3"); e(f"s_lshl_b32 {sT0}, {sT0}, 10")
        e(f"v_lshl_add_u32 v2, v0, 7, {sT0}")
        e(f"v_mov_b32 v3, {OOB}")
        e("v_cmp_gt_u32 vcc, 8, v0")
        e(f"v_cndmask_b32 v{vPF}, v3, v2, vcc")
        e(f"buffer_load_dword v{vPF2}, v{vPF}, s[88:91], 0 offen")
    e(f"s_bfe_u32 {sP}, s2, 0x10003")
    if cfg.xmap:
        e(f"s_lshr_b32 {sB}, s2, 5")
        e(f"s_bfe_u32 {sT1}, s2, 0x20003")
        e(f"s_and_b32 {sMEM}, s2, 3"); e(f"s_lshl_b32 {sMEM}, {sMEM}, 2"); e(f"s_add_u32 {sMEM}, {sMEM}, {sT1}")
        e(f"s_lshr_b32 {sHKV}, {sMEM}, 1")
        e(f"s_lshl_b32 {sGRP}, {sBR}, 3"); e(f"s_add_u32 {sGRP}, {sGRP}, {sB}")
        if cfg.rotg == 8:
            e(f"s_lshl_b32 {sROT}, {sT1}, 1"); e(f"s_add_u32 {sROT}, {sROT}, {sB}")
        else:
            e(f"s_add_u32 {sROT}, {sT1}, {sB}"); e(f"s_lshl_b32 {sROT}, {sROT}, 1")
        e(f"s_and_b32 {sROT}, {sROT}, 7")
    else:
        e(f"s_and_b32 {sHKV}, s2, 7")
        e(f"s_bfe_u32 {sB}, s2, 0x30004")
        e(f"s_lshr_b32 {sGRP}, s2, 4")
        e(f"s_lshl_b32 {sMEM}, {sHKV}, 1")
        e(f"s_add_u32 {sMEM}, {sMEM}, {sP}")
        e(f"s_lshl_b32 {sROT}, {sP}, 2")
        e(f"s_add_u32 {sROT}, {sROT}, {sB}")
        e(f"s_and_b32 {sROT}, {sROT}, 7")
    e("v_lshrrev_b32 v1, 6, v0")
    e("v_and_b32 v27, 63, v0")
    e(f"v_readfirstlane_b32 {sW}, v1")
    e(f"v_and_b32 v{vI15}, 15, v0")
    e(f"v_lshrrev_b32 v{vG}, 4, v27")
    e(f"v_lshlrev_b32 v{vL16}, 4, v27")
    e(f"s_lshl_b32 {sW4K}, {sW}, 12")
    T = vT
    e(f"v_lshl_add_u32 v2, v1, 4, v{vG}")
    e(f"s_lshl_b32 {sT0}, {sROT}, 7")
    for n in range(4):
        e(f"v_add_u32 v3, {4*n}, v{vG}")
        e(f"v_xor_b32 v3, v3, v{vI15}")
        e(f"v_lshlrev_b32 v{vKD+n}, 4, v3")
        e(f"v_add_u32 v{T+n}, {sT0}, v{vKD+n}")
        e(f"v_add_u32 v3, {3*n}, v2")
        e(f"v_lshlrev_b32 v{T+4+n}, 10, v3")
    for n in range(2):
        e(f"v_add_u32 v3, {4*n}, v{vG}")
        e("v_lshlrev_b32 v3, 1, v3")
        e(f"v_xor_b32 v3, v3, v{vI15}")
        e(f"v_lshlrev_b32 v{vVD+n}, 4, v3")
    e("v_lshrrev_b32 v3, 1, v1")
    e(f"v_lshl_add_u32 v3, v3, 5, v{vG}")
    e("v_and_b32 v25, 1, v1")
    e("v_lshl_add_u32 v3, v25, 2, v3")
    e("v_lshlrev_b32 v3, 13, v3")
    for n in range(4):
        e(f"v_add_u32 v{T+8+n}, {n*(65536-1024)}, v3")
        e(f"v_add_u32 v{T+8+n}, v{T+8+n}, v{vVD+(n&1)}")
    srd(e, SX, 65536)
    e(f"s_lshl_b32 {sT1}, {sMEM}, 9")
    e(f"s_sub_u32 s18, 4194304, {sT1}"); e("s_mov_b32 s19, 0x20000")
    e(f"s_lshl_b32 {sT0}, {sB}, 16")
    e(f"s_movk_i32 {sT2}, 0x3ff")
    for l in x_off(0) + x_off(1): e(l)
    e("s_waitcnt lgkmcnt(0)")
    stamp(e, cfg, 8)
    e(f"s_add_u32 s4, s48, {sT0}"); e("s_addc_u32 s5, s49, 0")
    e(f"s_add_u32 s16, s54, {sT1}"); e("s_addc_u32 s17, s55, 0")

def flags_setup(e, cfg):
    srd(e, SWS, 268435456)
    if cfg.mode == 'S': return
    if cfg.mode == 'M':
        e(f"s_lshl_b32 {sT0}, {sGRP}, 13")
        e(f"s_add_u32 {sT0}, {sT0}, {FLAGB}")
        e(f"s_lshl_b32 {sT1}, {sMEM}, 9"); e(f"s_add_u32 {sT1}, {sT1}, {sT0}")
        e(f"s_lshl_b32 {sT3}, {sW}, 7"); e(f"s_add_u32 {sMO}, {sT3}, {sT1}")
        e(f"s_load_dword {sOLD}, s[24:25], {sMO} glc")
        e(f"s_lshl_b32 {sT3}, {sW}, 11"); e(f"s_add_u32 {sT3}, {sT3}, {sT0}")
        e(f"v_lshl_add_u32 v3, v27, 9, {sT3}")
        e(f"v_mov_b32 v26, {OOB}")
        e("v_cmp_gt_u32 vcc, 4, v27")
        e(f"v_cndmask_b32 v{vFD}, v26, v3, vcc")
        e(f"s_lshl_b32 {sT3}, {sW}, 2"); e(f"s_xor_b32 {sT3}, {sT3}, {sMEM}")
        e(f"v_xor_b32 v3, {sT3}, v27")
        e(f"v_lshlrev_b32 v{vFB}, v3, 1")
        return
    e(f"s_lshl_b32 {sT0}, {sGRP}, 17")
    e(f"s_add_u32 {sT0}, {sT0}, {FLAGB}")
    e(f"s_lshl_b32 {sT1}, {sMEM}, 13")
    e(f"s_add_u32 {sT1}, {sT1}, {sT0}")
    e(f"s_lshl_b32 {sT3}, {sW}, 7")
    e(f"s_add_u32 {sT3}, {sT3}, {sT1}")
    e(f"v_lshl_add_u32 v{vFL}, v{vI15}, 9, {sT3}")
    e(f"s_lshl_b32 {sT4}, {sMEM}, 9")
    e(f"s_add_u32 {sT4}, {sT4}, {sT0}")
    e(f"s_lshl_b32 {sT3}, {sW}, 15")
    e(f"s_add_u32 {sT4}, {sT4}, {sT3}")
    e("v_and_b32 v3, 3, v27")
    e(f"v_lshl_add_u32 v3, v3, 13, {sT4}")
    e(f"v_mov_b32 v26, {OOB}")
    e("v_cmp_gt_u32 vcc, 4, v27")
    e(f"v_cndmask_b32 v{vFD}, v26, v3, vcc")
    e("v_lshrrev_b32 v1, 2, v27")
    e("v_lshl_add_u32 v3, v1, 7, v3")
    e("v_cmp_gt_u32 vcc, 16, v27")
    e("v_cndmask_b32 v25, v26, v3, vcc")
    e("v_mov_b32 v3, 0")
    e(f"buffer_store_dword v3, v25, {SWS}, 0 offen sc1 ; tag=CLR")

def prologue2(e, cfg):
    e(f"s_lshl_b32 {sT0}, {sB}, 3")
    e(f"s_add_u32 {sT0}, {sT0}, {sHKV}")
    e(f"s_lshl_b32 {sT0}, {sT0}, 19")
    e(f"s_add_u32 s8, s50, {sT0}"); e("s_addc_u32 s9, s51, 0"); srd(e, SK, 524288)
    e(f"s_add_u32 s12, s52, {sT0}"); e("s_addc_u32 s13, s53, 0"); srd(e, SV, 524288)
    e(f"s_lshl_b32 {sT0}, {sMEM}, 18")
    e(f"s_add_u32 s20, s56, {sT0}"); e("s_addc_u32 s21, s57, 0"); srd(e, SWO, 262144)
    e("s_mov_b32 s28, s64"); e("s_mov_b32 s29, s65"); srd(e, SOUT, 1048576)
    e("s_mov_b32 s32, s66"); e("s_mov_b32 s33, s67"); srd(e, SDBG, 256)
    ch, cb, cr = cfg.krot
    e(f"s_mul_i32 {sKO}, {sHKV}, {ch}"); e(f"s_mul_i32 {sT0}, {sB}, {cb}"); e(f"s_add_u32 {sKO}, {sKO}, {sT0}")
    e(f"s_mul_i32 {sT0}, {sBR}, {cr}"); e(f"s_add_u32 {sKO}, {sKO}, {sT0}")
    e(f"s_mov_b32 {sMASK}, 0x67000")
    e(f"s_lshl_b32 {sT0}, {sKO}, 12"); e(f"s_and_b32 {sT0}, {sT0}, 0x7000")
    e(f"s_lshl_b32 {sKO}, {sKO}, 14"); e(f"s_and_b32 {sKO}, {sKO}, 0x60000")
    e(f"s_or_b32 {sKO}, {sKO}, {sT0}"); e(f"s_mov_b32 {sVO}, {sKO}")
    for c in range(4):
        e(f"s_add_u32 {sT0}, {sB}, {c}"); e(f"s_and_b32 {sT0}, {sT0}, 3"); e(f"s_lshl_b32 s{sWC+c}, {sT0}, 8")
    e(f"s_lshl_b32 {sT0}, {sW}, 15")
    e(f"v_lshl_add_u32 v3, v{vG}, 8, {sT0}")
    for n in range(4): e(f"v_add_u32 v{vKD+n}, v{vKD+n}, v3")
    for n in range(2): e(f"v_add_u32 v{vVD+n}, v{vVD+n}, v3")
    e(f"v_xor_b32 v3, v{vG}, v{vI15}")
    e(f"v_lshlrev_b32 v25, 8, v{vI15}")
    for s in range(4):
        e(f"v_xor_b32 v26, {4*s}, v3")
        e(f"v_lshl_add_u32 v{vKA+s}, v26, 4, v25")
    e(f"v_lshrrev_b32 v3, 2, v{vI15}")
    e(f"v_lshl_add_u32 v3, v{vG}, 2, v3")
    e("v_and_b32 v25, 7, v3")
    e("v_lshlrev_b32 v3, 8, v3")
    e(f"v_and_b32 v26, 3, v{vI15}")
    e("v_lshl_add_u32 v3, v26, 3, v3")
    e(f"v_add_u32 v3, {VBASE}, v3")
    for dt in range(8):
        e(f"v_xor_b32 v26, {dt}, v25")
        e(f"v_lshl_add_u32 v{vVA+dt}, v26, 5, v3")

def x_off(j):
    T = vT; L = []
    for n in range(4):
        L.append(f"v_add_u32 v{vS+4*j+n}, {256*j}, v{T+n}")
        L.append(f"v_and_or_b32 v{vS+4*j+n}, v{vS+4*j+n}, {sT2}, v{T+4+n}")
    return L
def x_dma(cfg, j):
    return [([f"s_add_u32 m0, {sW4K}, {j*16384}"] if n == 0 else [],
             f"buffer_load_dwordx4 v{vS+4*j+n}, {SX}, 0 offen offset:{1024*n} {cfg.polx} lds") for n in range(4)]

def wq_dma(cfg, i):
    T = vT; G = []
    for hh in range(2):
        for n in range(4):
            pre = []
            if n == 0:
                if hh == 0: pre += [f"s_add_u32 {sT0}, {sROT}, {i}", f"s_and_b32 {sT0}, {sT0}, 7", f"s_lshl_b32 {sT0}, {sT0}, 19"]
                else: pre += [f"s_add_u32 {sT0}, {sT0}, 256"]
                pre += [f"s_add_u32 m0, {sW4K}, {VBASE + hh*49152 + (i%3)*16384}"]
            G.append((pre, f"buffer_load_dwordx4 v{T+8+n}, {SWQ}, {sT0} offen offset:{1024*n} {cfg.polw} lds ; tag=W{i} loc=u{4 + hh*3 + i%3}"))
    return G

def kunit(t): return t & 3
def vunit(t): return 4 + ((t + 2) & 3)

def kv_dma(cfg, which, t):
    so = sKO if which == 'K' else sVO
    u = kunit(t) if which == 'K' else vunit(t)
    pol = cfg.polkv
    G = []
    for n in range(4):
        pre = []
        if n == 0:
            if t > 0:
                pre.append(f"s_sub_u32 {so}, {so}, {sMASK}")
                pre.append(f"s_and_b32 {so}, {so}, {sMASK}")
            pre.append(f"s_add_u32 m0, {sW4K}, {u*16384}")
        v = vKD + n if which == 'K' else vVD + (n & 1)
        G.append((pre, f"buffer_load_dwordx4 v{v}, {SK if which == 'K' else SV}, {so} offen offset:{1024*n} {pol} lds"))
    return G

def wo_dma(cfg, i, u):
    G = []
    for n in range(4):
        pre = []
        if n == 0:
            pre.append(f"s_xor_b32 {sT4}, s{sWC + (i >> 2)}, {(i & 3) * 65536}")
            pre.append(f"s_add_u32 m0, {sW4K}, {u*16384}")
        G.append((pre, f"buffer_load_dwordx4 v{vWD+n}, {SWO}, {sT4} offen offset:{1024*n} {cfg.polw} lds"))
    return G

def flat(G):
    L = []
    for pre, d in G:
        L += pre; L.append(d)
    return L

def place_dma(st, G, g0, g1, alone=0):
    empty = [g for g in range(g0 + len(G[0][0]), g1 + 1) if st.used[g] == 0]
    if alone and len(empty) >= len(G):
        ch = [empty[(i * len(empty)) // len(G)] for i in range(len(G))]
        for (_, d), g in zip(G, ch):
            st.force(g, d); st.used[g] = 2
    else:
        ch = st.spread([d for _, d in G], g0 + len(G[0][0]), g1)
    prev = g0 - 1
    for (pre, d), g in zip(G, ch):
        lo = max(prev + 1, g0)
        k = len(pre)
        assert not pre or g >= lo, (g, lo, pre)
        for idx, s in enumerate(pre):
            st.force(min(max(lo, g - k + idx), max(lo, g - 1)), s)
        prev = g
    return ch

def qproj(e, cfg):
    T = vT
    for l in flat(x_dma(cfg, 0) + wq_dma(cfg, 0)): e(l)
    flags_setup(e, cfg)
    prologue2(e, cfg)
    for l in x_off(2) + x_off(3): e(l)
    vX, vW = vXA, T + 16
    e(f"s_and_b32 {sKH}, {sW}, 1")
    e(f"s_lshr_b32 {sHH}, {sW}, 1")
    e(f"s_mul_i32 {sT1}, {sHH}, 49152"); e(f"s_lshl_b32 {sT0}, {sKH}, 7")
    for k in range(4):
        e(f"v_xor_b32 v{vW+k}, {sT0}, v{vVA+k}")
        e(f"v_add_u32 v{vW+k}, {sT1}, v{vW+k}")
    e(f"s_lshl_b32 {sT0}, {sKH}, 13")
    for s in range(4):
        e(f"v_mov_b32 v{vX+s}, v{vKA+s}")
        e(f"v_add_u32 v{vKA+s}, {sT0}, v{vKA+s}")
    e(f"s_lshl_b32 {sT3}, {sW}, 6")
    for k in range(2):
        e(f"v_xor_b32 v{vWA[2+k]}, {sT3}, v{vVA+k}")
        e(f"v_subrev_u32 v{vWA[k]}, {VBASE}, v{vWA[2+k]}")
        e(f"v_add_u32 v{vWA[4+k]}, {VBASE}, v{vWA[2+k]}")
    for dt in range(8): e(f"v_add_u32 v{vVA+dt}, {sT0}, v{vVA+dt}")
    e(f"s_lshl_b32 {sT1}, {sHH}, 14"); e(f"s_add_u32 {sT1}, {sT1}, {8*16384}")
    e(f"s_add_u32 {sT3}, {sT1}, {sT0}")
    e(f"v_add_u32 v{vQR}, {sT3}, v{vL16}")
    e(f"v_xor_b32 v{vQR+1}, 0x2000, v{vQR}")
    e(f"s_lshl_b32 {sT0}, {sKH}, 11"); e(f"s_add_u32 {sT1}, {sT1}, {sT0}")
    e(f"v_lshrrev_b32 v3, 1, v{vG}"); e(f"v_lshl_add_u32 v3, v3, 8, {sT1}")
    e(f"v_lshl_add_u32 v3, v{vI15}, 4, v3")
    e(f"v_and_b32 v25, 1, v{vG}"); e(f"v_lshl_add_u32 v{vQW}, v25, 3, v3")
    for n in range(4):
        e(f"v_and_b32 v3, 0xff, v{vVD+(n&1)}")
        e(f"v_add_u32 v{vWD+n}, v{vT+4+n}, v3")
    selector(e, vSEL, 2)
    gA, gB, gS = cfg.gA, cfg.gB, cfg.gS
    e(f"v_add_u32 v{vGA}, {gA*16384}, v{vL16}"); e(f"v_add_u32 v{vGA+1}, {gB*16384}, v{vL16}")
    e(f"s_mul_i32 {sT0}, {sHH}, {(gB - gA)*16384}"); e(f"s_lshl_b32 {sT1}, {sKH}, 11"); e(f"s_add_u32 {sT0}, {sT0}, {sT1}")
    e(f"v_add_u32 v{vGW}, {sT0}, v{vGA}"); e(f"v_xor_b32 v{vGW+1}, 0x800, v{vGW}")
    e(f"s_lshl_b32 {sT0}, {sW}, 10"); e(f"s_add_u32 {sT0}, {sT0}, {gS*16384}")
    e(f"v_add_u32 v{vGW+2}, {sT0}, v{vL16}"); e(f"v_xor_b32 v{vGW+3}, 0x400, v{vGW+2}")
    e(f"s_lshl_b32 {sPST}, {sGRP}, 20")
    e(f"s_lshl_b32 {sT0}, {sW}, 18"); e(f"s_add_u32 {sPLD}, {sPST}, {sT0}")
    e(f"s_lshl_b32 {sT0}, {sMEM}, 14"); e(f"s_add_u32 {sPLD}, {sPLD}, {sT0}")
    e(f"s_lshl_b32 {sT1}, {sW}, 16"); e(f"s_add_u32 {sPST}, {sPST}, {sT1}")
    e(f"s_lshl_b32 {sT1}, {sMEM}, 10"); e(f"s_add_u32 {sPST}, {sPST}, {sT1}")
    e(f"s_xor_b32 {sPST}, {sPST}, {sW4K}")
    e(f"s_lshl_b32 {sT3}, {sB}, 17")
    e(f"s_and_b32 {sT0}, {sMEM}, 3"); e(f"s_lshl_b32 {sT0}, {sT0}, 15"); e(f"s_add_u32 {sT3}, {sT3}, {sT0}")
    e(f"s_lshl_b32 {sT0}, {sBR}, 10"); e(f"s_add_u32 {sT3}, {sT3}, {sT0}")
    e(f"s_add_u32 {sT0}, {sW}, {sB}"); e(f"s_and_b32 {sT0}, {sT0}, 3"); e(f"s_lshl_b32 {sT0}, {sT0}, 8"); e(f"s_add_u32 {sT3}, {sT3}, {sT0}")
    e(f"s_lshr_b32 {sT0}, {sMEM}, 2"); e(f"s_lshl_b32 {sT0}, {sT0}, 6"); e(f"s_add_u32 {sT3}, {sT3}, {sT0}")
    e(f"v_lshl_add_u32 v3, v{vI15}, 11, {sT3}")
    e(f"v_lshl_add_u32 v{vOUT}, v{vG}, 4, v3")
    e(f"s_lshl_b32 {sT1}, {sGRP}, 4")
    e(f"v_mov_b32 v26, {OOB}"); e(f"v_mov_b32 v27, {sT1}")
    e("v_cmp_eq_u32 vcc, 0, v0")
    e("v_cndmask_b32 v26, v26, v27, vcc")
    if cfg.mode == 'S': e(f"v_mov_b32 v{vFD}, v27")
    e(f"v_mov_b32 v{vONE1}, 1")
    if cfg.mode == 'M':
        e(f"v_add_u32 v{vFL}, {sPLD}, v{vL16}")
        e(f"s_lshl_b32 {sGO}, {sGRP}, 4")
    if cfg.mode == 'S':
        for i in range(4): e(f"v_accvgpr_write_b32 a{aSEN+i}, -1")
        e(f"v_add_u32 v{vFL}, {sPLD}, v{vL16}")
        e(f"s_mov_b32 {sCLR}, 0")
    e("v_mov_b32 v3, 0x3f803f80")
    if cfg.smf:
        e(f"v_xor_b32 v25, v{vI15}, v{vG}"); e("v_and_b32 v25, 2, v25")
        e("v_cmp_eq_u32 vcc, 0, v25")
        e("v_cndmask_b32 v3, 0, v3, vcc")
        e(f"v_and_b32 v25, 1, v{vI15}"); e(f"v_mul_u32_u24 v25, 0xaaaa, v25"); e(f"v_add_u32 v{vSI}, 0x4444, v25")
    e(f"v_mov_b32 v{vSA0}, v3")
    e(f"s_mov_b32 {sSC}, {hex(QSCALE)}"); e(f"s_mov_b32 s69, {hex(QSCALE)}")
    e(f"v_and_b32 v3, 3, v{vI15}"); e(f"v_xor_b32 v25, v3, v{vG}")
    e("v_lshlrev_b32 v3, 8, v3"); e(f"v_lshl_add_u32 v{vPR}, v25, 4, v3")
    w1 = wq_dma(cfg, 1) if cfg.w1early else []
    for l in flat(x_dma(cfg, 1) + w1 if cfg.x1first else w1 + x_dma(cfg, 1)): e(l)
    if cfg.diag == 3:
        for l in lstamp(1): e(l)
    st = Stream()
    D = cfg.qD
    for _ in range(D): st.add(None)
    def xfrag(i, ks, q4): return (i & 1) * 32 + (ks * 4 + q4) * 4
    def wfrag(i, ks, k): return aKF + (i & 1) * 32 + (ks * 4 + k) * 4
    def acc(q4, k): return vO + (q4 * 4 + k) * 4
    done = {}
    for i in range(8):
        order = [(ks, k, q4) for ks in range(2) for k in range(4) for q4 in range(4)]
        if i == 7: order = order[:8] + [(ks, k, q4) for q4 in range(4) for k in range(4) for ks in range(2) if (ks, k, q4) not in order[:8]]
        for ks, k, q4 in order:
            a = vr(acc(q4, k))
            c = "0" if (i == 0 and ks == 0) else a
            done[q4] = st.add(f"{MF} {a}, {ar(wfrag(i, ks, k))}, {ar(xfrag(i, ks, q4))}, {c} ; use=w{i}_{ks}_{k},x{i}_{ks}_{q4}")
    for i in range(8):
        g0 = 32 * i
        need = f"W{i}" + (f",X{i>>1}" if i % 2 == 0 else "") + (",CLR" if i == 1 else "")
        st.force(g0, f"@vmwait {need} lgkm0")
        st.force(g0, "s_barrier")
        if cfg.diag == 3:
            for l in lstamp(i + 2): st.force(g0, l)
        if i == 1 and cfg.mode == 'F': st.force(g0, f"buffer_atomic_add v{vONE1}, v26, {SDBG}, 0 offen sc1")
        rd = []
        for ks in range(2):
            s = 2 * (i & 1) + ks
            xr = [f"ds_read_b128 {ar(xfrag(i, ks, q4))}, v{vX+s} offset:{(i>>1)*16384 + q4*4096}" for q4 in range(4)]
            wr = [f"ds_read_b64_tr_b16 {ar(wfrag(i, ks, k) + 2*u, 2)}, v{vW+k} offset:{(i%3)*16384 + ks*8192 + u*4096}" for k in range(4) for u in range(2)]
            rd += wr[:2] + xr + wr[2:]
        G = wq_dma(cfg, i + 2) if i + 2 < 8 else []
        if i == 0 and not cfg.w1early: G = wq_dma(cfg, 1) + G
        if i in (1, 3): G += x_dma(cfg, 2 + i // 2)
        for it in cfg.qkv.split('|')[i - 5].split(',') if i >= 5 else []:
            if it: G += kv_dma(cfg, it[0], int(it[1:]))
        if G: place_dma(st, G, g0 + 1, g0 + 28)
        st.spread(rd, g0, g0 + (31 - cfg.qG if i < 7 else D + 2))
    gb = 32 * 7 + D + 8
    st.force(gb, "@vmwait _ lgkm0"); st.force(gb + 1, "s_barrier")
    def fin(q4, k, pk):
        a = acc(q4, k)
        if pk: L = [f"v_pk_mul_f32 {vr(a+j, 2)}, {vr(a+j, 2)}, {sSC2}" for j in (0, 2)]
        else: L = [f"v_mul_f32 v{a+j}, {sSC}, v{a+j}" for j in range(4)]
        L += [f"v_cvt_pk_bf16_f32 v{a+j}, v{a+2*j}, v{a+2*j+1}" for j in range(2)]
        return L, f"ds_write_b64 v{vQW}, {vr(a, 2)} offset:{(q4*4 + (k>>1))*1024 + (k&1)*512}"
    tiles = [(q4, k) for q4 in range(4) for k in range(4)]
    g = max(done[0] + 3, gb + 2); nt = 0
    while True:
        q4, k = tiles[nt]
        g = max(g, done[q4] + 3)
        if g + 4 >= st.n(): break
        V, wr = fin(q4, k, False)
        for x in V: g = st.put(g, x)
        g = st.put(g + 1, wr)
        nt += 1
    for l in st.lines(): e(l)
    if cfg.diag == 3:
        for l in lstamp(10): e(l)
    G = []
    for it in cfg.fkv.split(','):
        if it: G += kv_dma(cfg, it[0], int(it[1:]))
    cfg.pre_issued = set(it for part in (cfg.qkv + '|' + cfg.fkv).split('|') for it in part.split(',') if it)
    rest = tiles[nt:]
    pend = None
    for idx, (q4, k) in enumerate(rest):
        V, wr = fin(q4, k, True)
        for x in V: e(x)
        if pend: e(pend)
        pend = wr
        while G and len(G) > (len(rest) - 1 - idx) * cfg.fden // 12:
            for x in flat(G[:1]): e(x)
            G = G[1:]
    e(pend)
    if cfg.diag == 3:
        for l in lstamp(11): e(l)

def Qreg(qt, s): return ar(aQ + (qt * 4 + s) * 4)
def k_reads(t):
    return [f"ds_read_b128 {ar(aKF + (t & 1)*32 + (kt*4+s)*4)}, v{vKA+s} offset:{kunit(t)*16384 + kt*4096}" for kt in range(2) for s in range(4)]
def v_reads(t):
    return [f"ds_read_b64_tr_b16 {ar(aVF + (t & 1)*32 + dt*4 + 2*u, 2)}, v{vVA+dt} offset:{vunit(t)*16384 - VBASE + u*4096}" for dt in range(8) for u in range(2)]

def afrag(j, kk, k): return (192, 224, 128, 160)[j & 3] + (kk * 2 + k) * 4
def a_reads(j, wo_unit):
    rd = []
    for kk in range(4):
        i = 2 * j + (kk >> 1); u = wo_unit[i]
        for k in range(2):
            for h in range(2):
                rd.append(f"ds_read_b64_tr_b16 {ar(afrag(j, kk, k) + 2*h, 2)}, v{vWA[2*(u>>2) + k]} offset:{(u&3)*16384 + (kk&1)*8192 + h*4096}")
    return rd

def selector(e, base, tmp):
    e(f"v_lshrrev_b32 v{tmp}, 2, v{vI15}")
    e(f"v_cmp_eq_u32 vcc, v{tmp}, v{vG}")
    e(f"v_and_b32 v{tmp}, 1, v{vI15}")
    e(f"v_lshlrev_b32 v{tmp}, 4, v{tmp}")
    e(f"v_mov_b32 v{tmp+1}, 0x3f80")
    e(f"v_lshlrev_b32 v{tmp}, v{tmp}, v{tmp+1}")
    e(f"v_cndmask_b32 v{tmp}, 0, v{tmp}, vcc")
    e(f"v_and_b32 v{tmp+1}, 2, v{vI15}")
    e(f"v_cmp_eq_u32 vcc, 0, v{tmp+1}")
    for i in (0, 1, 4, 5): e(f"v_mov_b32 v{base+i}, 0")
    e(f"v_cndmask_b32 v{base+2}, 0, v{tmp}, vcc")
    e(f"v_sub_u32 v{base+3}, v{tmp}, v{base+2}")

def retry_block(name, dst, voff, srdn, off, val):
    return [f"{name}:", f"s_mov_b32 {sCNT}, 0", f"{name}_l:",
            f"buffer_load_dword v{dst}, v{voff}, {srdn}, 0 offen offset:{off} sc1",
            f"s_add_u32 {sCNT}, {sCNT}, 1", "s_waitcnt vmcnt(0)",
            f"v_cmp_gt_u32 vcc, {val}, v{dst}",
            f"s_cmp_ge_u32 {sCNT}, {SPIN}", f"s_cbranch_scc1 {name}_b",
            f"s_cbranch_vccnz {name}_l", f"s_branch {name}_b"]

def check_in_stream(st, g, tag, name, dst, val):
    st.force(g, f"@vmwait {tag}")
    st.force(g, f"v_cmp_gt_u32 vcc, {val}, v{dst}")
    st.force(g + 1, f"s_cbranch_vccnz {name}")
    st.force(g + 1, f"@label {name}_b")
    return g + 1

def attention(e, cfg, ool):
    NT = cfg.NT
    mu = [(t, qt) for t in range(NT) for qt in (2, 3, 0, 1)]
    gA, gB, gS = cfg.gA, cfg.gB, cfg.gS
    e("@vmwait K0,V0 lgkm0")
    e("s_barrier")
    if cfg.diag == 3:
        for l in lstamp(12): e(l)
        for l in lstamp(13): e(l)
        e("v_mov_b32 v126, v254"); e("v_mov_b32 v127, v255")
    stamp(e, cfg, 9)
    if cfg.diag in (2, 4, 6): e('s_mov_b32 s49, 0')
    pr = [f"ds_read_b128 {ar(aPR + s*4)}, v{vPR} offset:{kunit(0)*16384 + 64*s}" for s in range(4)]
    qr = lambda qt: [f"ds_read_b128 {Qreg(qt, s)}, v{vQR + (qt >> 1)} offset:{(qt&1)*4096 + s*1024}" for s in range(4)]
    for x, y in zip(pr, qr(2)): e(x); e(y)
    for l in qr(3): e(l)
    for i in range(4): e(f"v_mov_b32 v{vSA+i}, v{vSA0}")
    if cfg.smf:
        for i in range(8): e(f"v_mov_b32 v{vL+i}, 0")
    def probe(qt):
        d = vr(vCI + 4 * qt)
        return [f"{MF} {d}, {ar(aPR + s*4)}, {Qreg(qt, s)}, {'0' if s == 0 else d} ; use=pr{s},q{qt}_{s}" for s in range(4)]
    def pfin(qt):
        a = vCI + 4 * qt
        return [f"v_min3_f32 v{a}, -v{a}, -v{a+1}, -v{a+2}"] + [f"v_min_f32_e64 v{a+j}, v{a}, -v{a+3}" for j in (1, 2)] + \
               [f"v_mov_b32 v{a}, v{a+1}", f"v_mov_b32 v{a+3}, v{a+1}"]
    st = Stream()
    qk0 = {}; pv0 = {}; pvend = {}
    addO = []
    for qt in range(2):
        for s in range(4):
            for T in range(2):
                o = vr(vO + (qt * 8 + 2 * s + T) * 4)
                addO.append(f"{MF} {o}, {vr(vSEL + 2 - 2*T)}, {ar(aQ + 32 + (qt*4+s)*4)}, {o} ; use=_,po{qt}_{s}")
    for x in probe(2) + probe(3): st.add(x)
    st.add(None)
    for i in range(-1, len(mu)):
        if i + 1 < len(mu):
            t, qt = mu[i + 1]
            qk0[i + 1] = st.n()
            for kt in range(2):
                d = vr(vS + ((i + 1) & 1) * 8 + kt * 4)
                for s in range(4):
                    st.add(f"{MF} {d}, {ar(aKF + (t & 1)*32 + (kt*4+s)*4)}, {Qreg(qt, s)}, {vr(vCI + 4*qt) if s == 0 else d} ; use=k{t}_{kt}_{s},q{qt}_{s}")
        else:
            for k in range(8): st.add(None)
        if i >= 0:
            t, qt = mu[i]
            pv0[i] = st.n()
            p = vr(vP + (i & 1) * 4)
            first = t == 0
            if cfg.smf and i & 1:
                st.add(f"v_smfmac_f32_16x16x64_bf16 {vr(vL + 4*(qt >> 1))}, {vr(vSA)}, {vr(vP, 8)}, v{vSI}")
                pv0[i] = st.n()
            for dt in range(8):
                o = vr(vO + (qt * 8 + dt) * 4)
                pvend[i] = st.add(f"{MF} {o}, {ar(aVF + (t & 1)*32 + dt*4)}, {p}, {'0' if first else o} ; use=v{t}_{dt},p{i}")
            if not cfg.smf:
                l = vr(vL + 4 * qt)
                pvend[i] = st.add(f"{MF} {l}, {vr(vSA)}, {p}, {'0' if first else l} ; use=_,p{i}")
        else:
            gp0 = st.n()
            for x in probe(0) + probe(1): st.add(x)
            st.add(None)
    gadd = st.n()
    for x in addO: st.add(x)
    for i in range(len(mu)):
        g = qk0[i] + cfg.expoff
        sb = vS + (i & 1) * 8; pb = vP + (i & 1) * 4
        for j in range(8):
            st.force(g + 2 * j, f"v_exp_f32 v{sb+j}, v{sb+j}")
            if j & 1: st.force(g + 2 * j + 1, f"v_cvt_pk_bf16_f32 v{pb + j//2}, v{sb+j-1}, v{sb+j} ; def=p{i}")
    G0 = lambda t: qk0[4 * t]
    for k, x in enumerate(k_reads(0) + qr(0) + qr(1)): st.force(k // 2, x)
    for x in pfin(2): st.force(8, x)
    for qt, g in ((3, G0(0) + 3), (0, gp0 + 8), (1, gp0 + 12)):
        for x in pfin(qt): g = st.put(g, x)
    st.spread(v_reads(0), G0(0), G0(0) + 14)
    if cfg.mode == 'F': st.put(G0(0) + 20, f"buffer_load_dword v{vGC}, v27, {SDBG}, 0 offen sc1 ; tag=GC")
    def nonexp(g):
        while st.used[g] >= 2: g += 1
        return g
    if cfg.mode == 'F': check_in_stream(st, nonexp(cfg.gc), "GC", "L_rG", vGC, 16)
    if cfg.mode == 'M':
        ool += ["L_rG:", f"s_mov_b32 {sCNT}, 0", "L_rG_l:", f"s_load_dword {sGC}, s[32:33], {sGO} glc", f"s_add_u32 {sCNT}, {sCNT}, 1", "s_waitcnt lgkmcnt(0)",
                f"s_cmp_ge_u32 {sCNT}, {SPIN}", "s_cbranch_scc1 L_rG_b", f"s_cmp_lt_u32 {sGC}, 16", "s_cbranch_scc1 L_rG_l", "s_branch L_rG_b"]
    else: ool += retry_block("L_rG", vGC, 27 if cfg.mode == 'F' else vFD, SDBG, 0, 16)
    wo_unit = {}; nwo = 0; free = [8, 9]
    if cfg.roll:
        for t in range(cfg.l0, NT - 3, 4):
            gm = G0(t) - cfg.mk
            while st.used[gm]: gm += 1
            assert gm < G0(t) - 1
            if t == cfg.l0: st.force(gm - 1, f"s_mov_b32 {sLOOP}, {hex((1 << 32) - (NT - 4 - cfg.l0) // 4)}")
            else:
                st.force(gm - 1, f"s_add_u32 {sLOOP}, {sLOOP}, 1")
                st.force(gm, "s_cbranch_scc0 L_att")
            st.force(gm, "@iter L_att")
            st.used[gm] = 2
    il = len(mu) - 4
    g = G0(NT - 1) + 3
    for h in range(2):
        g = max(g, pvend[il + h] + 1)
        for s in range(4):
            a = vO + ((2 + h) * 8 + 2 * s) * 4
            g = nonexp(g)
            for j in range(4): st.force(g, f"v_cvt_pk_bf16_f32 v{a+j}, v{a+2*j}, v{a+2*j+1}")
            g = nonexp(g + 1)
            st.force(g, f"ds_write_b128 v{vGW+1}, {vr(a)} offset:{(s*4+h)*1024}")
        if not cfg.smf: g = st.put(g + 1, f"ds_write_b32 v{vGW+3}, v{vL + 8 + 4*h} offset:{4*h} ; tag=LX loc=u{gS}") + 1
        elif h == 1: g = st.put(g + 1, f"ds_write_b128 v{vGW+3}, {vr(vL + 4)} ; tag=LX loc=u{gS}") + 1
    g += 3
    st.force(g, "@vmwait O2,O3 lgkm0"); st.force(g + 1, "s_barrier")
    gx = g + 1
    rd = [f"ds_read_b128 {ar(aQ + 32 + (h*4+s)*4)}, v{vGW} offset:{(s*4+h)*1024}" for h in range(2) for s in range(4)]
    rd.append(f"ds_read_b128 {vr(vL + 8)}, v{vGW+2} ; rd=LX" if cfg.smf else f"ds_read_b64 {vr(vLP, 2)}, v{vGW+2} ; rd=LX")
    if '-v' in sys.argv: print("exchange barrier at", g - gadd, "relative to add")
    assert g + 6 < gadd
    st.spread(rd, g + 1, min(g + 9, gadd - 1))
    seq = [(wh, t) for t in range(NT) for wh in 'KV' if f"{wh}{t}" not in cfg.pre_issued]
    for t in range(NT):
        g0 = G0(t); g1 = G0(t + 1) if t + 1 < NT else g0 + 66
        gb = g0 + (cfg.b0 if t == 0 else 0)
        st.force(gb, f"@vmwait K{t+1},V{t+1}{',O0,O1' if t == NT - 1 else ''} rd:K{t},V{t},QX")
        st.force(gb + 1, "s_barrier")
        if cfg.diag == 2 or (cfg.diag in (4, 6) and t % 2 == 0):
            st.force(gb + 1, "\n".join(["s_memrealtime s[98:99]", "s_memtime s[96:97]", "s_add_u32 s49, s49, 1", "s_mov_b32 s100, m0", "s_mov_b32 m0, s49", "s_waitcnt lgkmcnt(0)", "v_writelane_b32 v126, s98, m0", "v_writelane_b32 v127, s96, m0", "s_mov_b32 m0, s100"]))
        G = []; n = 0
        if t + 4 >= NT: free += [u for u in (kunit(t), vunit(t)) if u not in (gA, gB, gS)]
        while seq and 2 * seq[0][1] + (seq[0][0] == 'V') <= 2 * t + cfg.off + 1 and n < 3:
            wh, tt = seq.pop(0); G += kv_dma(cfg, wh, tt); n += 1
        while not seq and free and n < (cfg.wl if t == NT - 1 else 2):
            wo_unit[nwo] = free.pop(0); G += wo_dma(cfg, nwo, wo_unit[nwo]); nwo += 1; n += 1
        if cfg.pf == 2 and t % 4 == cfg.pft and t >= cfg.l0:
            G = G + [([], f"buffer_load_dword v{vPF2}, v{vPF}, s[88:91], 0 offen sc1")]
        if cfg.mode == 'M' and t == cfg.tann:
            G = [([], f"buffer_atomic_add v{vONE1}, v26, {SDBG}, 0 offen sc1")] + G
        if cfg.mode == 'S':
            if cfg.l0 <= t < NT - 4 and (t - cfg.l0) % 4 < cfg.nclr:
                G += [([f"s_add_u32 {sCLR}, {sCLR}, 0x400", f"s_bitset0_b32 {sCLR}, 14"], f"buffer_store_dwordx4 {ar(aSEN)}, v{vFL}, {SWS}, {sCLR} offen sc1 ; tag=CLR")]
            if t == NT - 3:
                st.fill[gb][-1] = st.fill[gb][-1].replace("@vmwait ", "@vmwait CLR,")
                G = [([], f"buffer_atomic_add v{vONE1}, v26, {SDBG}, 0 offen sc1")] + G
        gs = g0 + 2 if (t > 0 or cfg.off <= 6) else gb + 2
        if G: place_dma(st, G, gs, g1 - cfg.mk - 3 if t + 1 < NT else gx - 2, cfg.dmaalone if t + 1 < NT else 0)
        if t + 1 < NT:
            pl = pv0[4 * t - 1] if t > 0 else 0
            lo = [0] * 8 + [pl + d // 2 for d in range(16)]
            hi = [g1 - cfg.rdend] * 24
            st.spreadc(k_reads(t + 1) + v_reads(t + 1), gb + 1, g1 - cfg.rdend - 1, lo, hi)
    st.spread(a_reads(0, wo_unit), G0(NT - 1) + 2, G0(NT - 1) + 36)
    free += [wo_unit[0], wo_unit[1]]
    G = []
    for _ in range(cfg.wx):
        wo_unit[nwo] = free.pop(0); G += wo_dma(cfg, nwo, wo_unit[nwo]); nwo += 1
    if G: place_dma(st, G, gx + 1, st.n() - 1)
    st.spread(a_reads(1, wo_unit), gadd - 4, st.n() - 1)
    cfg.free_units = free
    if cfg.soft: st.late = set(range(G0(cfg.soft0), G0(cfg.soft) - cfg.mk - 1))
    for t in range(NT):
        n = cfg.padA if t < cfg.padT else cfg.padB
        for k in range(n):
            st.fill[G0(t) + 5 + (k * 60) // n].append("v_nop_pad")
    for l in st.lines(): e(l)
    if '-v' in sys.argv:
        over = sum(max(0, u - 2) for u, m in zip(st.used, st.mf) if m)
        print("attention gaps", st.n(), "overfull slots", over, "wo units", wo_unit)
    return wo_unit

def oproj(e, cfg, wo_unit):
    NT = cfg.NT
    gA, gB, gS = cfg.gA, cfg.gB, cfg.gS
    if cfg.smf:
        for j in (0, 2): e(f"v_pk_add_f32 {vr(vL+j, 2)}, {vr(vL+j, 2)}, {vr(vL+8+j, 2)}")
        for qt in range(2): e(f"v_add_f32 v{26+qt}, v{vL+2*qt}, v{vL+2*qt+1}")
    else:
        for qt in range(2): e(f"v_add_f32 v{26+qt}, v{vL+4*qt}, v{vLP+qt}")
    for qt in range(2): e(f"v_rcp_f32 v{26+qt}, v{26+qt}")
    nwo = len(wo_unit); free = cfg.free_units
    G = []
    if cfg.mode == 'S': e(f"buffer_load_dword v{vGC}, v{vFD}, {SDBG}, 0 offen sc1 ; tag=GC")
    if cfg.mode == 'M': e(f"s_load_dword {sGC}, s[32:33], {sGO}")
    for _ in range(min(cfg.wn, len(free))):
        wo_unit[nwo] = free.pop(0); G += wo_dma(cfg, nwo, wo_unit[nwo]); nwo += 1
    for qt in range(2):
        for s in range(4):
            a = vO + (qt * 8 + 2 * s) * 4
            for j in range(0, 8, 2): e(f"v_pk_mul_f32 {vr(a+j, 2)}, {vr(a+j, 2)}, v[26:27] op_sel:[0,{qt}] op_sel_hi:[1,{qt}]")
            for j in range(4): e(f"v_cvt_pk_bf16_f32 v{a+j}, v{a+2*j}, v{a+2*j+1}")
            e(f"ds_write_b128 v{vGW}, {vr(a)} offset:{(s*4+qt)*1024}")
            for x in flat(G[:1]): e(x)
            G = G[1:]
    st = Stream()
    NPRE = 4
    for _ in range(NPRE): st.add(None)
    def acc(c, q4, k): return vO + c * 32 + q4 * 8 + k * 4
    S0 = {}; qend = {}
    for c in range(4):
        S0[2 * c] = st.n(); S0[2 * c + 1] = st.n() + 32
        order = [(ks8, k, q4) for ks8 in range(8) for k in range(2) for q4 in range(4)]
        if c >= cfg.qm: order = [(ks8, k, q4) for q4 in range(4) for k in range(2) for ks8 in range(8)]
        for ks8, k, q4 in order:
            j, kk = 2 * c + (ks8 >> 2), ks8 & 3
            a = vr(acc(c, q4, k))
            qend[c, q4] = st.add(f"{MF} {a}, {ar(afrag(j, kk, k))}, {ar((ks8*4+q4)*4)}, {'0' if ks8 == 0 else a} ; use=a{j}_{kk}_{k},b{ks8}_{q4}")
    def b_reads(ks8):
        return [f"ds_read_b128 {ar((ks8*4+q4)*4)}, v{vGA + (ks8>>2)} offset:{((ks8&3)*4+q4)*1024}" for q4 in range(4)]
    bars = {0: ("O4,O5", None), 1: ("O6,O7,O8", "O4,O5"), 2: ("_", "G"), 3: ("O9,O10,O11", None), 5: ("O12,O13,O14,O15", None)}
    st.force(0, "@vmwait O4,O5 lgkm0"); st.force(0, "s_barrier")
    if cfg.mode == 'M':
        st.force(NPRE + 1, f"s_cmp_lt_u32 {sGC}, 16\ns_cbranch_scc1 L_rG\n@label L_rG_b")
    for l in stamp_l(cfg, 3): st.force(0, l)
    if cfg.diag == 6:
        for l in lstamp(17, 126): st.force(0, l)
        for j in (2, 4, 6):
            for l in lstamp(17 + j // 2, 126): st.force(S0[j] + 1, l)
    if cfg.diag == 5:
        for l in lstamp(1, 126): st.force(0, l)
        for j in range(8):
            for l in lstamp(2 + j, 126): st.force(S0[j] + 1, l)
    BR = [x for ks8 in range(8) for x in b_reads(ks8)]
    if cfg.qm == 0: BR = [b_reads(ks8)[q4] for q4 in range(4) for ks8 in range(8)]
    for k, l in enumerate(BR[:8]): st.force(k // 2, l)
    ops = [int(x) for x in cfg.ops.split(',')]
    rdst = {x: (x - 1 if (x >> 1) < cfg.qm or x % 2 == 0 else x - 2) for x in range(3, 8)}
    for j in range(8):
        g0 = S0[j]
        if j in bars and j > 0:
            vis, rel = bars[j]
            st.force(g0, f"@vmwait {vis}" + (f" rd:{rel}" if rel else "")); st.force(g0 + 1, "s_barrier")
        if j == 0: free += [wo_unit[2], wo_unit[3], gS]
        if j == 1: free += [wo_unit[4], wo_unit[5]]
        if j == 2: free += [gA, gB]
        G = []
        while free and nwo < 16 and j < len(ops) and len(G) < 4 * ops[j]:
            wo_unit[nwo] = free.pop(0); G += wo_dma(cfg, nwo, wo_unit[nwo]); nwo += 1
        if G: place_dma(st, G, g0 + (2 if j else 0), g0 + 31)
        if j == 0: st.spread(BR[8:16] + a_reads(2, wo_unit) + BR[16:20 if cfg.qm else 24], g0, g0 + 26)
        elif j == 1:
            st.spread(BR[20 if cfg.qm else 24:], g0 - 4, g0 + (12 if cfg.qm else 8))
            if rdst[3] == 1: st.spread(a_reads(3, wo_unit), g0 + 9, g0 + 26)
        else:
            todo = [x for x in range(3, 8) if rdst[x] == j]
            if todo: st.spread(sum((a_reads(x, wo_unit) for x in todo), []), g0 + 2, g0 + 25)
    assert nwo == 16
    if cfg.mode == 'S': check_in_stream(st, S0[2] + 2, "GC", "L_rG", vGC, 16)
    left = []; g = 0
    for c in range(4):
        for q4 in range(4):
            a = acc(c, q4, 0)
            g = max(g, max(qend[c, q4], qend[c, 3] if c < cfg.qm else 0) + 5 + (cfg.pst - 4 if c == 0 else 0))
            if g + 6 >= st.n(): left.append(q4); continue
            st.put(g, f"s_xor_b32 {sT3}, {sPST}, {c*262144 + q4*17408}")
            for k in range(4): g = st.put(g, f"v_cvt_pk_bf16_f32 v{a+k}, v{a+2*k}, v{a+2*k+1}")
            g = st.put(g + 2, f"buffer_store_dwordx4 {vr(a)}, v{vL16}, {SWS}, {sT3} offen sc1 ; tag=PS{c}") + 1 + cfg.psp
    if cfg.mode == 'M':
        if cfg.n1: st.force(S0[7] + cfg.pp, f"@vmwait _ lgkm0\ns_load_dword {sMK}, s[24:25], {sMO} glc")
        g = S0[7] + 4
        for l in [f"s_movk_i32 s{sWC+k}, {hex(4096*k)}" for k in range(1, 4)] + ["s_mov_b32 s4, s24", "s_mov_b32 s5, s25", f"s_mov_b32 {sCNT}, 0"]: g = st.put(g, l) + 1
        for c in range(cfg.f0):
            gg = S0[7] + cfg.f0p + c * cfg.f0d
            st.force(gg, f"@vmwait PS{c}")
            st.put(gg, f"buffer_atomic_xor v{vFB}, v{vFD}, {SWS}, 0 offen offset:{128*c} sc1")
    if cfg.f0 and cfg.mode == 'F':
        st.force(S0[7], "@vmwait PS0")
        st.put(S0[7], f"buffer_store_dword v{vONE1}, v{vFD}, {SWS}, 0 offen sc1")
    for l in st.lines(): e(l)
    stamp(e, cfg, 4)
    if cfg.diag in (5, 6):
        for l in lstamp(10 if cfg.diag == 5 else 21, 126): e(l)
    c = 3
    for q4 in left:
        a = acc(c, q4, 0)
        e(f"s_xor_b32 {sT3}, {sPST}, {c*262144 + q4*17408}")
        for k in range(4): e(f"v_cvt_pk_bf16_f32 v{a+k}, v{a+2*k}, v{a+2*k+1}")
        e(f"buffer_store_dwordx4 {vr(a)}, v{vL16}, {SWS}, {sT3} offen sc1 ; tag=PS{c}")
    if cfg.mode == 'F':
        for c in range(1 if cfg.f0 else 0, 4):
            e(f"@vmwait PS{c}")
            e(f"buffer_store_dword v{vONE1}, v{vFD}, {SWS}, 0 offen offset:{128*c} sc1")
            if cfg.diag == 5:
                for l in lstamp(10 + c, 126): e(l)
        stamp(e, cfg, 5)
        if cfg.diag == 6:
            for l in lstamp(22, 126): e(l)
        e(f"s_mov_b32 {sCNT}, 0")
        e("L_pF:")
        e(f"buffer_load_dword v{vPOLL}, v{vFL}, {SWS}, 0 offen {cfg.polp}")
        e(f"s_add_u32 {sCNT}, {sCNT}, 1")
        e("s_waitcnt vmcnt(0)")
        e(f"v_cmp_gt_u32 vcc, 1, v{vPOLL}")
        e(f"s_cmp_ge_u32 {sCNT}, {SPIN}")
        e("s_cbranch_scc1 L_pF_x")
        e("s_cbranch_vccnz L_pF")
        e("L_pF_x:")
        stamp(e, cfg, 6)
        if cfg.diag in (5, 6):
            for l in lstamp(14 if cfg.diag == 5 else 23, 126): e(l)
        for j in range(16):
            if j and j % 4 == 0: e(f"s_add_u32 {sPLD}, {sPLD}, 4096")
            e(f"buffer_load_dwordx4 {vr(vO+4*j)}, v{vL16}, {SWS}, {sPLD} offen offset:{1024*(j&3)} sc1")
        for j in range(16):
            e(f"{MF} v[16:19], {vr(vSEL+2)}, {vr(vO+4*j)}, {'0' if j == 0 else 'v[16:19]'}")
            e(f"{MF} v[4:7], {vr(vSEL)}, {vr(vO+4*j)}, {'0' if j == 0 else 'v[4:7]'}")
    elif cfg.mode == 'M':
        flag = lambda c: [f"@vmwait PS{c}", f"buffer_atomic_xor v{vFB}, v{vFD}, {SWS}, 0 offen offset:{128*c} sc1"]
        ls = lambda k: lstamp(k, 126) if cfg.diag == 5 else []
        for c in range(cfg.f0, 2):
            for l in flag(c): e(l)
        if cfg.n1:
            e("s_waitcnt lgkmcnt(0)")
            e(f"s_xor_b32 {sDONE}, {sMK}, {sOLD}")
            e(f"s_and_b32 {sDONE}, {sDONE}, {hex((1 << cfg.n1) - 1)}")
        else: e(f"s_mov_b32 {sDONE}, 0")
        if cfg.p2: e(f"s_load_dword {sMK}, s[24:25], {sMO} glc")
        for l in ls(11): e(l)
        for j in range(cfg.n1):
            e(f"s_bitcmp1_b32 {sDONE}, {j}")
            e("s_cselect_b32 s6, s26, 0")
            e(f"buffer_load_dwordx4 {vr(vO+4*j)}, v{vFL}, {SX}, {'s%d' % (sWC + (j >> 2)) if j >= 4 else 0} offen offset:{1024*(j&3)} sc1")
        for l in ls(12): e(l)
        for l in flag(2) + flag(3): e(l)
        if cfg.fb: e("s_barrier")
        stamp(e, cfg, 5)
        for l in ls(13): e(l)
        e("s_waitcnt lgkmcnt(0)")
        e("s_branch L_pF_e")
        e("L_pF:")
        e(f"s_load_dword {sMK}, s[24:25], {sMO} glc")
        e(f"s_add_u32 {sCNT}, {sCNT}, 1")
        e(f"s_cmp_ge_u32 {sCNT}, {SPIN}")
        e("s_waitcnt lgkmcnt(0)")
        e("s_cbranch_scc1 L_pF_x")
        e("L_pF_e:")
        e(f"s_xor_b32 {sMK}, {sMK}, {sOLD}")
        e(f"s_andn2_b32 {sT0}, {sMK}, {sDONE}")
        e("s_cbranch_scc0 L_pq3")
        e(f"s_mov_b32 {sDONE}, {sMK}")
        e("@noauto")
        for q in range(4):
            e(f"s_and_b32 {sT1}, {sT0}, {hex(15 << (4*q))}")
            e(f"s_cbranch_scc0 L_pq{q}")
            for j in range(4 * q, 4 * q + 4):
                e(f"s_bitcmp1_b32 {sT0}, {j}")
                e(f"s_cbranch_scc0 L_pj{j}")
                e(f"buffer_load_dwordx4 {vr(vO+4*j)}, v{vFL}, {SWS}, {'s%d' % (sWC + q) if q else 0} offen offset:{1024*(j&3)} sc1")
                e(f"L_pj{j}:")
            e(f"L_pq{q}:")
        e("@auto")
        e(f"s_cmp_eq_u32 {sDONE}, 0xffff")
        e("s_cbranch_scc0 L_pF")
        e("L_pF_x:")
        stamp(e, cfg, 6)
        for l in ls(14): e(l)
        e("s_waitcnt vmcnt(0)")
        for j in range(16):
            e(f"{MF} v[16:19], {vr(vSEL+2)}, {vr(vO+4*j)}, {'0' if j == 0 else 'v[16:19]'}")
            e(f"{MF} v[4:7], {vr(vSEL)}, {vr(vO+4*j)}, {'0' if j == 0 else 'v[4:7]'}")
    else:
        stamp(e, cfg, 5)
        if cfg.diag == 5:
            for k in (11, 12, 13):
                for l in lstamp(k, 126): e(l)
        e(f"s_mov_b32 {sCNT}, 0")
        for k in range(1, 4): e(f"s_movk_i32 s{63+k}, {hex(4096*k)}")
        e("L_pF:")
        for j in range(16):
            e(f"buffer_load_dwordx4 {vr(vO+4*j)}, v{vFL}, {SWS}, {'s%d' % (63 + (j >> 2)) if j >= 4 else 0} offen offset:{1024*(j&3)} sc1")
        e(f"s_add_u32 {sCNT}, {sCNT}, 1")
        for j in range(16):
            a = vO + 4 * j
            e(f"{MF} v[16:19], {vr(vSEL+2)}, {vr(a)}, {'0' if j == 0 else 'v[16:19]'}")
            e(f"v_max3_u32 v2, v{a}, v{a+1}, {'v%d' % (a+1) if j == 0 else 'v2'}")
            e(f"{MF} v[4:7], {vr(vSEL)}, {vr(a)}, {'0' if j == 0 else 'v[4:7]'}")
            e(f"v_max3_u32 v2, v{a+2}, v{a+3}, v2")
        e("v_cmp_eq_u32 vcc, -1, v2")
        e(f"s_cmp_ge_u32 {sCNT}, {SPIN}")
        e("s_cbranch_scc1 L_pF_x")
        e("s_cbranch_vccnz L_pF")
        e("L_pF_x:")
        stamp(e, cfg, 6)
        if cfg.diag == 5:
            for l in lstamp(14, 126): e(l)
    if cfg.diag in (5, 6):
        for l in lstamp(15 if cfg.diag == 5 else 24, 126): e(l)
    e("v_cvt_pk_bf16_f32 v16, v16, v17"); e("v_cvt_pk_bf16_f32 v17, v18, v19")
    e("v_cvt_pk_bf16_f32 v18, v4, v5"); e("v_cvt_pk_bf16_f32 v19, v6, v7")
    for op in ("v_permlane32_swap_b32", "v_permlane16_swap_b32"):
        e(f"{op} v16, v18"); e(f"{op} v17, v19")
    e(f"buffer_store_dwordx4 v[16:19], v{vOUT}, {SOUT}, 0 offen {cfg.polout}")

def diag_dump(e, cfg):
    if not cfg.diag: return
    e("s_waitcnt vmcnt(0)")
    stamp(e, cfg, 7)
    if cfg.spin >= 0:
        e(f"s_sub_u32 s3, s{70+2*cfg.spin}, s{70+2*cfg.spin0}")
        e(f"s_mul_i32 s3, s3, {cfg.spinmul}")
        e("s_min_u32 s3, s3, 20000")
        e("L_spin:")
        e("s_memrealtime s[62:63]")
        e("s_waitcnt lgkmcnt(0)")
        e("s_sub_u32 s62, s62, s84")
        e("s_cmp_lt_u32 s62, s3")
        e("s_cbranch_scc1 L_spin")
        return
    e("s_lshl_b32 s3, s2, 2"); e(f"s_add_u32 s3, s3, {sW}"); e("s_lshl_b32 s3, s3, 7")
    e("s_add_u32 s3, s3, 0x8000000")
    e("v_mov_b32 v3, s3")
    if cfg.diag >= 2:
        e("s_lshl_b32 s62, s2, 2"); e(f"s_add_u32 s62, s62, {sW}"); e("s_lshl_b32 s62, s62, 9"); e("s_add_u32 s62, s62, 0x9000000")
        e(f"v_lshrrev_b32 v4, 2, v{vL16}")
        e(f"buffer_store_dword v126, v4, {SWS}, s62 offen")
        e(f"buffer_store_dword v127, v4, {SWS}, s62 offen offset:256")
    for k in range(11):
        e(f"v_mov_b32 v4, s{70+2*k}")
        e(f"buffer_store_dword v4, v3, {SWS}, 0 offen offset:{4*k}")
        e(f"v_mov_b32 v5, s{71+2*k}")
        e(f"buffer_store_dword v5, v3, {SWS}, 0 offen offset:{64+4*k}")

def roll(L):
    idx = [i for i, x in enumerate(L) if x.startswith('.iter')]
    if not idx: return L
    name = L[idx[0]].split()[1]
    strip = lambda X: [x.split(' ; ')[0].rstrip() for x in X]
    body = strip(L[idx[0] + 1: idx[1]])
    for a, b in zip(idx[1:-1], idx[2:]):
        other = strip(L[a + 1:b])
        assert len(other) == len(body)
        for k, (x, y) in enumerate(zip(body, other)):
            if x == y: continue
            assert x.startswith('s_waitcnt') and re.sub(r'\d+', '', x) == re.sub(r'\d+', '', y), (x, y)
            m = iter(min(int(p), int(q)) for p, q in zip(re.findall(r'\d+', x), re.findall(r'\d+', y)))
            body[k] = re.sub(r'\d+', lambda _: str(next(m)), x)
    assert sum(align.size(x) for x in body) % 8 == 0
    return L[:idx[0]] + [name + ":"] + body + L[idx[-1] + 1:]

def finish(L):
    L = [(x.split()[1] + ":") if x.startswith('@label') else x.replace('@iter', '.iter').replace('v_nop_pad', 's_nop 3') for x in L]
    keep = {}; on = True; M = []
    for x in L:
        if x == '@noauto': on = False
        elif x == '@auto': on = True
        elif not on and x.startswith('buffer_load'):
            keep[f"buffer_wbl2 K{len(keep)}"] = x; M.append(f"buffer_wbl2 K{len(keep)-1}")
        else: M.append(x)
    L = M
    errs = frag_check(L)
    assert not errs, errs[:5]
    L = auto_wait(L)
    L, nn = hazard.fix(L)
    L, bad = align.align8(L)
    if '-v' in sys.argv: print("auto nops", nn, "misaligned", bad)
    errs = hazard.check(L, verbose=('-v' in sys.argv))
    assert not errs, errs[:5]
    errs = lds_check(L)
    assert not errs, errs[:5]
    return roll([keep.get(x, x) for x in L])

def gen(cfg):
    L = []; e = L.append
    ool = []
    prologue(e, cfg)
    qproj(e, cfg)
    stamp(e, cfg, 1)
    wo_unit = attention(e, cfg, ool)
    stamp(e, cfg, 2)
    oproj(e, cfg, wo_unit)
    diag_dump(e, cfg)
    e("L_end:")
    e("s_endpgm")
    L = finish(L)
    L += ool + ["L_last:", "s_endpgm"]
    size = sum(align.size(x) for x in L)
    if '-v' in sys.argv: print("code bytes", size)
    assert size < 32768 or cfg.diag or not cfg.roll
    fmt = lambda X: "\n".join((x if x.endswith(':') else "  " + x.split(' ; ')[0].rstrip()) for x in X) + "\n"
    s = header(["@launch grid=(256,1,1) block=(256,1,1) lds=163840"])
    s += kernel_begin(KNAME) + fmt(L)
    s += rodata([descriptor(KNAME)])
    return s

if __name__ == "__main__":
    out = sys.argv[1]
    kw = {}
    for a in sys.argv[2:]:
        if '=' in a:
            k, v = a.split('=', 1)
            kw[k] = int(v) if v.lstrip('-').isdigit() else v.replace('+', ' ')
    open(out, "w").write(gen(Cfg(**kw)))
```

```python
import re
VOP12 = ('v_exp_f32', 'v_add_f32', 'v_mul_f32', 'v_sub_f32', 'v_mov_b32', 'v_max_f32', 'v_rcp_f32', 'v_add_u32', 'v_and_b32',
         'v_lshlrev_b32', 'v_lshrrev_b32', 'v_xor_b32', 'v_or_b32', 'v_subrev_f32', 'v_fmac_f32', 'v_min_f32', 'v_sub_u32', 'v_subrev_u32', 'v_max_u32', 'v_mul_u32_u24')
INL = re.compile(r'^-?(\d+|0\.5|1\.0|2\.0|4\.0)$')
def has_literal(ops):
    for o in ops:
        o = o.strip()
        if re.match(r'^-?0x[0-9a-fA-F]+$', o) or re.match(r'^-?\d+$', o):
            v = int(o, 0)
            if v >= 0xfffffff0: v -= 1 << 32
            if v in (0x3f000000, 0x3f800000, 0x40000000, 0x40800000, 0xbf000000, 0xbf800000, 0xc0000000, 0xc0800000): continue
            if not (-16 <= v <= 64): return True
        if o.startswith('L_'): return True
    return False
def size(line):
    t = line.split(';')[0].strip()
    if not t or t.endswith(':') or t.startswith('.'): return 0
    p = t.split(None, 1); op = p[0]
    ops = p[1].split(',') if len(p) > 1 else []
    if op in VOP12 and len(ops) == 3 and not ops[2].strip().startswith('v'): return 8
    if op in VOP12 or op.endswith('_e32') or op in ('v_readfirstlane_b32', 'v_permlane32_swap_b32', 'v_permlane16_swap_b32', 'v_nop', 'v_accvgpr_mov_b32', 'v_dot2c_f32_bf16'):
        return 8 if has_literal(ops) else 4
    if op.startswith('v_cmp'):
        return (8 if has_literal(ops) else 4) if ops[0].strip() == 'vcc' else 8
    if op.startswith('v_cndmask'):
        return 4 if ops[-1].strip() == 'vcc' else 8
    if op.startswith('v_') or op.startswith('ds_') or op.startswith('buffer_') or op.startswith('global_') or op.startswith('s_load') or op.startswith('s_mem'):
        return 8
    if op in ('s_waitcnt', 's_barrier', 's_nop', 's_endpgm', 's_branch', 's_setprio', 's_sleep') or op.startswith('s_cbranch') or op.startswith('s_movk') or op.startswith('s_addk') or op.startswith('s_cmpk') or op.startswith('s_getreg'):
        return 4
    if op.startswith('s_'):
        return 8 if has_literal(ops) else 4
    raise ValueError(line)
def promotable(line):
    t = line.split(';')[0].strip(); op = t.split(None, 1)[0]
    return op in VOP12 and size(line) == 4
def align8(lines, pad=False, promote=True, step=0, nchain=1):
    out = list(lines); pos = 0; run = []
    bad = 0
    res = []
    base = None; nxt = None; pads = []
    for li, l in enumerate(lines):
        if l.startswith('.p2align 12'):
            res.append(l); pos = 0; run = []; base = 0; nxt = step; continue
        if step and base is not None and pos >= nxt + 8 and (res[-1].startswith('v_mfma') or pos >= nxt + 40) and not l.startswith('.iter') and not res[-1].startswith('s_branch'):
            pads.append(len(res)); res.append(f"L_w{len(pads)-1}:"); res.append("s_cbranch_execz @"); run.append(len(res) - 1); pos += 4; nxt += step
        s = size(l)
        force = l.startswith('.iter')
        if (s == 8 or force) and pos % 8 == 4:
            fixed = False
            for j in reversed(run):
                if j is not None and promote and promotable(res[j]):
                    t = res[j].strip(); op, rest = t.split(None, 1)
                    k = run.index(j)
                    if k % 2 == 0:
                        res[j] = f"{op}_e64 {rest}"; pos += 4; fixed = True; break
            if not fixed:
                if force:
                    k = len(res) - 1 if res[-1].startswith('s_cbranch') else len(res)
                    res.insert(k, "s_nop 0"); pos += 4
                elif pad:
                    res.append("s_nop 0"); pos += 4
                else:
                    bad += 1
        if s == 8 or force: run = [] if pos % 8 == 0 else [None]
        res.append(l)
        if s == 4: run.append(len(res) - 1)
        pos += s
        run = [r for r in run]
        if None in run[1:]: raise Exception
    for k, i in enumerate(pads):
        res[i + 1] = f"s_cbranch_execz " + (f"L_w{k+nchain}" if k + nchain < len(pads) else "L_wdone")
    align8.npads = len(pads)
    return res, bad
```

```python
import re
from hazard import I

def rank(x):
    if x.startswith('s_') or x.startswith('@'): return 0
    if x.startswith('ds_') or x.startswith('buffer'): return 1
    return 2
def cost(x):
    r = rank(x)
    if r == 0: return 0
    if x.startswith('v_exp') or x.startswith('v_rcp') or x.startswith('v_permlane'): return 2
    return 1

class Stream:
    def __init__(self, cap=2):
        self.mf = []; self.fill = []; self.used = []; self.cap = cap; self.late = set(); self.block = set(); self.wsh = 0
    def add(self, m):
        self.mf.append(m); self.fill.append([]); self.used.append(0); return len(self.mf) - 1
    def n(self): return len(self.mf)
    def force(self, g, x):
        if x.startswith('ds_write_b128'): self.block.update(range(g, g + self.wsh))
        self.fill[g].append(x); self.used[g] += cost(x); return g
    def room(self, g, x, strict):
        c = cost(x); r = rank(x)
        if r == 0: return not any(rank(y) == 0 for y in self.fill[g])
        if r == 1 and g in self.block: return False
        if self.used[g] + c > self.cap: return False
        if strict and r == 1 and any(rank(y) == 1 for y in self.fill[g]): return False
        return True
    def put(self, g, x, maxg=None):
        n = self.n()
        if maxg is None or maxg > n - 1: maxg = n - 1
        g = min(max(g, 0), maxg)
        for strict in (True, False):
            for gg in range(g, maxg + 1):
                if self.room(gg, x, strict): return self.force(gg, x)
        gg = min(range(g, maxg + 1), key=lambda t: (self.used[t], t))
        return self.force(gg, x)
    def spread(self, items, g0, g1):
        g1 = min(g1, self.n() - 1)
        free = []
        for g in range(g0, g1 + 1):
            k = self.cap - self.used[g] if g not in self.block else 0
            hasmem = any(rank(y) == 1 for y in self.fill[g])
            for j in range(k): free.append((g, j + (1 if hasmem else 0)))
        first = [g for g, j in free if j == 0]
        second = [g for g, j in free if j > 0]
        m = len(items)
        if m <= len(first):
            ch = [first[(i * len(first)) // m] for i in range(m)]
        else:
            need = m - len(first)
            if need <= len(second):
                ex = [second[(i * len(second)) // need] for i in range(need)]
            else:
                ex = list(second)
                rest = need - len(second)
                cand = first if first else list(range(g0, g1 + 1))
                ex += [cand[((2 * i + 1) * len(cand)) // (2 * rest)] for i in range(rest)]
            ch = sorted(first + ex)
        for g, x in zip(ch, items): self.force(g, x)
        return ch
    def spreadc(self, items, g0, g1, lo=None, hi=None, win=4):
        m = len(items); prev = g0; ch = []
        n = self.n()
        for i, x in enumerate(items):
            t = g0 + (i * (g1 - g0 + 1)) // m
            a = max(prev, lo[i] if lo else 0, t - 1, g0)
            b = min(max(a, t) + win, n - 1)
            if hi: b = max(a, min(b, hi[i]))
            g = None
            for strict in (True, False):
                for gg in range(a, (min(b, a + 2) if strict else b) + 1):
                    if self.room(gg, x, strict): g = gg; break
                if g is not None: break
            if g is None:
                isexp = lambda t: any(cost(y) == 2 for y in self.fill[t])
                g = min(range(a, b + 1), key=lambda t: (self.used[t] + (1 if isexp(t) else 0) + (9 if t in self.block else 0), t))
            self.force(g, x); ch.append(g); prev = g
        return ch
    def lines(self):
        out = []
        for g, (m, f) in enumerate(zip(self.mf, self.fill)):
            if m: out.append(m)
            key = rank if g not in self.late else (lambda x: 3 if x.startswith('ds_read') else rank(x))
            for x in sorted(f, key=key): out += x.split('\n')
        return out

def tag_of(line, key):
    m = re.search(key + r'=([\w,]+)', line.split(';', 1)[1]) if ';' in line else None
    return m.group(1).split(',') if m else []

def auto_wait(lines, age=9):
    out = []
    lgq = []; vmq = []
    last_mfma = -1
    nmf = 0
    def setwait(kind, n, pos):
        txt = f"s_waitcnt {kind}({n})"
        if pos < len(out) and out[pos].startswith('s_waitcnt') and kind not in out[pos] and 'auto' in out[pos]:
            out[pos] = out[pos].split(';')[0].strip() + f" {kind}({n}) ; auto"
            return False
        if pos < len(out) and out[pos].startswith('s_waitcnt') and kind in out[pos] and 'auto' in out[pos]:
            old = int(re.search(kind + r'\((\d+)\)', out[pos]).group(1))
            out[pos] = re.sub(kind + r'\(\d+\)', f"{kind}({min(old, n)})", out[pos])
            return False
        out.insert(pos, txt + " ; auto")
        return True
    for l in lines:
        t = l.split(';')[0].strip()
        if t.startswith('@vmwait'):
            p = t.split()
            tags = set(p[1].split(','))
            idx = max([k for k, e in enumerate(vmq) if e[1] & tags], default=-1)
            s = ""
            if idx >= 0:
                n = len(vmq) - 1 - idx
                assert n <= 63
                s += f" vmcnt({n})"; del vmq[:idx + 1]
            if len(p) > 2 and p[2] == 'lgkm0':
                s += " lgkmcnt(0)"; lgq.clear()
            elif len(p) > 2 and p[2].startswith('rd:'):
                rt = set(p[2][3:].split(','))
                idx = max([k for k, e in enumerate(lgq) if e[1] & rt], default=-1)
                if idx >= 0:
                    n = min(len(lgq) - 1 - idx, 15)
                    if any(e[2] for e in lgq): n = 0
                    s += f" lgkmcnt({n})"; del lgq[:len(lgq) - n]
            if s: out.append("s_waitcnt" + s + f" ; for {p[1]}")
            continue
        if not t or t.endswith(':') or t.startswith('.'):
            out.append(l); continue
        i = I(l)
        touched = set(i.r) | set(i.w)
        for q, kind, mx in ((lgq, 'lgkmcnt', 15), (vmq, 'vmcnt', 63)):
            idx = max([k for k, e in enumerate(q) if e[0] & touched], default=-1)
            if idx < 0: continue
            if kind == 'lgkmcnt' and any(e[2] for e in q):
                setwait(kind, 0, len(out)); q.clear(); continue
            if kind == 'lgkmcnt':
                while idx + 1 < len(q) and nmf - q[idx + 1][4] >= age: idx += 1
            pos = len(out); n = len(q) - 1 - idx
            if i.kind == 'mfma' and last_mfma >= 0 and q[idx][3] < last_mfma:
                later = sum(1 for e in q if e[3] > last_mfma)
                pos = last_mfma + 1; n = n - later
            n = min(n, mx)
            ins = setwait(kind, n, pos)
            if ins:
                for e in lgq + vmq:
                    if e[3] >= pos: e[3] += 1
            before = [e for e in q if e[3] < pos]
            keep = before[len(before) - n:] if n > 0 else []
            q[:] = keep + [e for e in q if e[3] > pos]
        if i.kind == 'wait':
            if i.lg is not None and not (i.lg > 0 and any(e[2] for e in lgq)):
                while len(lgq) > i.lg: lgq.pop(0)
            if i.vm is not None:
                while len(vmq) > i.vm: vmq.pop(0)
        out.append(l)
        if i.kind in ('ds', 'smem'): lgq.append([set(i.w), set(tag_of(l, 'rd')), i.kind == 'smem', len(out) - 1, nmf])
        if i.kind == 'vmem': vmq.append([set(i.w), set(tag_of(l, 'tag')), False, len(out) - 1, nmf])
        if i.kind == 'mfma': last_mfma = len(out) - 1; nmf += 1
    return out

def lds_check(lines):
    errs = []
    lgq = []; vmq = []
    content = {}
    wr_state = {}
    rd_state = {}
    dead = set()
    def upd():
        fl = {t for q in (vmq, lgq) for k, t in q if k == 'w'}
        for c in wr_state:
            if wr_state[c] == 'flight' and c not in fl: wr_state[c] = 'landed'
        fl = {t for k, t in lgq if k == 'r'}
        for c in rd_state:
            if rd_state[c] == 'flight' and c not in fl: rd_state[c] = 'done'
    for l in lines:
        t = l.split(';')[0].strip()
        if not t or t.endswith(':') or t.startswith('.'): continue
        i = I(l)
        priv = ' priv' in l
        tag = tag_of(l, 'tag'); loc = tag_of(l, 'loc'); rd = tag_of(l, 'rd')
        if i.kind == 'wait':
            if i.lg is not None:
                while len(lgq) > i.lg: lgq.pop(0)
            if i.vm is not None:
                while len(vmq) > i.vm: vmq.pop(0)
            upd()
        elif i.op == 's_barrier':
            for c in wr_state:
                if wr_state[c] == 'landed': wr_state[c] = 'visible'
            for c in rd_state:
                if rd_state[c] == 'done': rd_state[c] = 'released'
        if loc:
            c = tag[0]
            for L in loc:
                old = content.get(L)
                if old is not None and old != c:
                    s = rd_state.get(old)
                    ok = s == 'released' or (s == 'done' and (old.startswith('p') or ' own' in l)) or s is None
                    if not ok: errs.append(f"WAR {old} ({s}) overwritten by {l.strip()}")
                    dead.add(old)
                content[L] = c
            wr_state[c] = 'flight'
        if rd:
            c = rd[0]
            s = wr_state.get(c)
            if c in dead: errs.append(f"read of overwritten {c}: {l.strip()}")
            if not (s == 'visible' or (c.startswith('p') and s == 'landed')): errs.append(f"RAW {c} ({s}) read by {l.strip()}")
            rd_state[c] = 'flight'
        if i.kind in ('ds', 'smem'): lgq.append(('r', rd[0]) if rd else ('w', tag[0]) if loc else ('x', None))
        if i.kind == 'vmem': vmq.append(('w', tag[0]) if loc else ('x', None))
    return errs

def frag_check(lines):
    from hazard import regs
    cur = {}; errs = []
    for l in lines:
        t = l.split(';')[0].strip()
        if not t or t.endswith(':') or t.startswith('.') or t.startswith('@'): continue
        i = I(l)
        use = tag_of(l, 'use')
        for k, u in enumerate(use):
            if u == '_': continue
            for r in regs(i.ops[1 + k]):
                if cur.get(r) != u: errs.append(f"{l.strip()} : {r} holds {cur.get(r)}"); break
        d = tag_of(l, 'def')
        for r in i.w: cur[r] = d[0] if d else None
    return errs
```

```python
import sys, struct, re
from gen_common import *
import hazard, align
from sched import Stream, auto_wait, lds_check, frag_check

MF = "v_mfma_f32_16x16x32_bf16"
def f2u(x): return struct.unpack('<I', struct.pack('<f', x))[0]
QSCALE = f2u(1.4426950408889634 * 128 ** -0.5)
def vr(a, n=4): return f"v[{a}:{a+n-1}]"
def ar(a, n=4): return f"a[{a}:{a+n-1}]"

SX, SK, SV, SWQ, SWO, SWS, SOUT, SDBG = (f"s[{i}:{i+3}]" for i in (4, 8, 12, 16, 20, 24, 28, 32))
sHKV, sP, sB, sBR, sW, sW4K, sROT = "s36", "s37", "s38", "s39", "s40", "s41", "s42"
sKO, sVO, sT0, sT1, sT2, sJ0, sJ1, sGRP, sMEM = "s43", "s44", "s45", "s46", "s47", "s58", "s59", "s60", "s61"
sT3, sT4 = "s62", "s63"
sXO, sXI, sWOB, sPST = "s48", "s49", "s50", "s51"
sWC = 52
sCNT = "s56"
vKA, vVA, vKD, vVD = 4, 8, 16, 20
vL16, vI15, vG = 22, 23, 24
vFD, vFP, vFL, vFQ = 28, 29, 30, 31
vS, vP, vCI, vQ, vO = 32, 48, 56, 72, 128
vT = 104
vGC, vPOLL, vLP, vONE1, vWD, vSEL = 72, 73, 74, 76, 80, 84
vWA = [116, 117, 118, 119, 124, 125]; vOUT = 79; sPLD = 's50'
vXA, vGA, vQR, vQW, vGW = 90, 94, 96, 98, 100
sKH, sHH, sSC, sSC2, sLOOP = "s58", "s59", "s68", "s[68:69]", "s48"
vL, vSA, vSA0, vSI = 104, 120, 77, 78
vPF, vPF2 = 31, 75; vL1 = 90; vWT = 27; sWT = 's66'; vCK = 72; sMODE = 's101'; aSEN = 228; sCLR = 's67'; vFB = 29
sMO, sOLD, sMK, sDONE, sGO, sGC, sOOB = 's92', 's93', 's94', 's95', 's64', 's65', 's66'
vPR = 99; aPR = 212; sMASK = "s57"
aQ, aKF, aVF, aL, aONE = 0, 64, 128, 192, 208
VBASE = 65536
FLAGB = 0x1000000
OOB = 0x40000000
SPIN = 0x40000

class Cfg:
    NT = 32
    polkv = ""; polx = ""; polw = ""; polout = ""
    diag = False; spin = -1; spin0 = 0; spinmul = 1
    pf = 2; pft = 2; wosp = 2; wo0 = 8
    xmap = 1; rotg = 4; x1first = 0
    w1early = 1; qD = 14; qG = 6; qkv = 'K0|V0,K1|V1'
    krot = (9, 3, 20)
    soft = 0; soft0 = 1; l0 = 4
    wl = '2,2,2'; wx = 3; wt = 0; wtt = 0; wsh = 2; wn = 1; ops = '2,3,2'; T = 30; pst = 0
    f0 = 2; mode = 'M'; nclr = 3; qi = 'x0,w0'; qj = 'w1,x1'; qx = '1:x2,3:x3'; qA = 4; q7 = 0; q7r = 18; fin = 0; wstep = 4096; wch = 4; wpos = 0; bg = -1; bd = 1; xc = 3; xw = 4; xb = 4; nc = 3; nb = 4; nbd = 0; g1 = 22; g2 = 52; w2o = 44; w3 = 64; gy = 128; wa = 52; bo = 8; om = 'QQHH'; thr = 2; cu = 0; n2 = 0; w2 = 60; ps = 4; tch = 5; fb = 0; qm = 0; psp = 4; f0d = 64; tann = 1; n1 = 0; p2 = 1; pp = 2; f0p = -60
    padA = 0; padB = 0; padT = 4
    off = 6; fkv = 'K2,V2'; fden = 8; b0 = 24; polp = 'sc1'; omax = 8
    expoff = 8; rdend = 7; gc = 100; roll = 1; mk = 5; dmaalone = 1; smf = 1; psw = 1; cvtd = 0
    def __init__(self, **kw):
        self.__dict__.update(kw)
        if self.smf and 'expoff' not in kw: self.expoff = 7
        self.gA, self.gB, self.gS = kunit(self.NT - 1), vunit(self.NT - 1), vunit(self.NT - 2)
        self.wl = self.wl.split(',')
        if isinstance(self.krot, str): self.krot = tuple(int(x) for x in self.krot.split(','))

def stamp_l(cfg, k):
    if k == 9: return []
    return [f"s_memrealtime s[{70+2*k}:{71+2*k}]", "s_memtime s[96:97]", "s_waitcnt lgkmcnt(0)", f"s_mov_b32 s{71+2*k}, s96"] if cfg.diag else []
def lstamp(idx, r=254):
    return ["s_memrealtime s[98:99]", "s_memtime s[96:97]", "s_waitcnt lgkmcnt(0)", f"v_writelane_b32 v{r}, s98, {idx}", f"v_writelane_b32 v{r+1}, s96, {idx}"]
def stamp(e, cfg, k):
    for l in stamp_l(cfg, k): e(l)
def srd(e, base, size):
    n = int(base[2:base.index(':')])
    e(f"s_mov_b32 s{n+2}, {size}"); e(f"s_mov_b32 s{n+3}, 0x20000")

def prologue(e, cfg):
    stamp(e, cfg, 0)
    e("s_cmp_ge_u32 s2, 256")
    e("s_cbranch_scc1 L_end")
    e(f"s_mov_b32 {sMODE}, 0")
    e("L_top:")
    e(f"s_bfe_u32 {sBR}, s2, 0x10002" if cfg.xmap else f"s_lshr_b32 {sBR}, s2, 7")
    e(f"s_mul_i32 {sT0}, {sBR}, 40")
    e(f"s_add_u32 s62, s0, {sT0}")
    e("s_addc_u32 s63, s1, 0")
    e("s_load_dwordx8 s[48:55], s[62:63], 0")
    e("s_load_dwordx2 s[56:57], s[62:63], 32")
    e("s_load_dwordx4 s[64:67], s[0:1], 80")
    e("s_load_dwordx2 s[24:25], s[0:1], 96")
    if cfg.pf:
        e("s_getpc_b64 s[88:89]")
        e("L_pf:")
        e("s_mov_b32 s90, L_last-L_pf"); e("s_mov_b32 s91, 0x20000")
        e(f"s_lshr_b32 {sT0}, s2, 3"); e(f"s_mul_i32 {sT0}, {sT0}, 1280")
        e(f"v_lshl_add_u32 v2, v0, 7, {sT0}")
        e(f"v_mov_b32 v3, {OOB}")
        e("v_cmp_gt_u32 vcc, 10, v0")
        e(f"v_cndmask_b32 v{vPF}, v3, v2, vcc")
        e(f"buffer_load_dword v{vPF2}, v{vPF}, s[88:91], 0 offen")
    e(f"s_bfe_u32 {sP}, s2, 0x10003")
    if cfg.xmap:
        e(f"s_lshr_b32 {sB}, s2, 5")
        e(f"s_bfe_u32 {sT1}, s2, 0x20003")
        e(f"s_and_b32 {sMEM}, s2, 3"); e(f"s_lshl_b32 {sMEM}, {sMEM}, 2"); e(f"s_add_u32 {sMEM}, {sMEM}, {sT1}")
        e(f"s_lshr_b32 {sHKV}, {sMEM}, 1")
        e(f"s_lshl_b32 {sGRP}, {sBR}, 3"); e(f"s_add_u32 {sGRP}, {sGRP}, {sB}")
        if cfg.rotg == 8:
            e(f"s_lshl_b32 {sROT}, {sT1}, 1"); e(f"s_add_u32 {sROT}, {sROT}, {sB}")
        else:
            e(f"s_add_u32 {sROT}, {sT1}, {sB}"); e(f"s_lshl_b32 {sROT}, {sROT}, 1")
        e(f"s_and_b32 {sROT}, {sROT}, 7")
    else:
        e(f"s_and_b32 {sHKV}, s2, 7")
        e(f"s_bfe_u32 {sB}, s2, 0x30004")
        e(f"s_lshr_b32 {sGRP}, s2, 4")
        e(f"s_lshl_b32 {sMEM}, {sHKV}, 1")
        e(f"s_add_u32 {sMEM}, {sMEM}, {sP}")
        e(f"s_lshl_b32 {sROT}, {sP}, 2")
        e(f"s_add_u32 {sROT}, {sROT}, {sB}")
        e(f"s_and_b32 {sROT}, {sROT}, 7")
    e("v_lshrrev_b32 v1, 6, v0")
    e("v_and_b32 v27, 63, v0")
    e(f"v_readfirstlane_b32 {sW}, v1")
    e(f"v_and_b32 v{vI15}, 15, v0")
    e(f"v_lshrrev_b32 v{vG}, 4, v27")
    e(f"v_lshlrev_b32 v{vL16}, 4, v27")
    e(f"s_lshl_b32 {sW4K}, {sW}, 12")
    T = vT
    e(f"v_lshl_add_u32 v2, v1, 4, v{vG}")
    e(f"s_lshl_b32 {sT0}, {sROT}, 7")
    for n in range(4):
        e(f"v_add_u32 v3, {4*n}, v{vG}")
        e(f"v_xor_b32 v3, v3, v{vI15}")
        e(f"v_lshlrev_b32 v{vKD+n}, 4, v3")
        e(f"v_add_u32 v{T+n}, {sT0}, v{vKD+n}")
        e(f"v_add_u32 v3, {3*n}, v2")
        e(f"v_lshlrev_b32 v{T+4+n}, 10, v3")
    for n in range(2):
        e(f"v_add_u32 v3, {4*n}, v{vG}")
        e("v_lshlrev_b32 v3, 1, v3")
        e(f"v_xor_b32 v3, v3, v{vI15}")
        e(f"v_lshlrev_b32 v{vVD+n}, 4, v3")
    e("v_lshrrev_b32 v3, 1, v1")
    e(f"v_lshl_add_u32 v3, v3, 5, v{vG}")
    e("v_and_b32 v25, 1, v1")
    e("v_lshl_add_u32 v3, v25, 2, v3")
    e("v_lshlrev_b32 v3, 13, v3")
    for n in range(4):
        e(f"v_add_u32 v{T+8+n}, {n*(65536-1024)}, v3")
        e(f"v_add_u32 v{T+8+n}, v{T+8+n}, v{vVD+(n&1)}")
    srd(e, SX, 65536)
    e(f"s_lshl_b32 {sT1}, {sMEM}, 9")
    e(f"s_sub_u32 s18, 4194304, {sT1}"); e("s_mov_b32 s19, 0x20000")
    e(f"s_lshl_b32 {sT0}, {sB}, 16")
    e(f"s_movk_i32 {sT2}, 0x3ff")
    for j in range(4):
        if f"x{j}" in cfg.qi:
            for l in x_off(j): e(l)
    e("s_waitcnt lgkmcnt(0)")
    stamp(e, cfg, 8)
    e(f"s_add_u32 s4, s48, {sT0}"); e("s_addc_u32 s5, s49, 0")
    e(f"s_add_u32 s16, s54, {sT1}"); e("s_addc_u32 s17, s55, 0")

def flags_setup(e, cfg):
    srd(e, SWS, 268435456)
    if cfg.mode == 'S': return
    if cfg.mode == 'M':
        e(f"s_lshl_b32 {sT0}, {sGRP}, 13")
        e(f"s_add_u32 {sT0}, {sT0}, {FLAGB}")
        e(f"s_lshl_b32 {sT1}, {sMEM}, 9"); e(f"s_add_u32 {sT1}, {sT1}, {sT0}")
        e(f"s_lshl_b32 {sT3}, {sW}, 7"); e(f"s_add_u32 {sMO}, {sT3}, {sT1}")
        e(f"s_cmp_eq_u32 {sMODE}, 0")
        e("s_cbranch_scc0 L_old")
        e(f"s_load_dword {sOLD}, s[24:25], {sMO} glc")
        e("L_old:")
        e(f"s_lshl_b32 {sT3}, {sW}, 11"); e(f"s_add_u32 {sT3}, {sT3}, {sT0}")
        e(f"v_lshl_add_u32 v3, v27, 9, {sT3}")
        e(f"v_mov_b32 v26, {OOB}")
        e("v_cmp_gt_u32 vcc, 4, v27")
        e(f"v_cndmask_b32 v{vFD}, v26, v3, vcc")
        e(f"s_lshl_b32 {sT3}, {sW}, 2"); e(f"s_xor_b32 {sT3}, {sT3}, {sMEM}")
        e(f"v_xor_b32 v3, {sT3}, v27")
        e(f"v_lshlrev_b32 v{vFB}, v3, 1")
        return
    e(f"s_lshl_b32 {sT0}, {sGRP}, 17")
    e(f"s_add_u32 {sT0}, {sT0}, {FLAGB}")
    e(f"s_lshl_b32 {sT1}, {sMEM}, 13")
    e(f"s_add_u32 {sT1}, {sT1}, {sT0}")
    e(f"s_lshl_b32 {sT3}, {sW}, 7")
    e(f"s_add_u32 {sT3}, {sT3}, {sT1}")
    e(f"v_lshl_add_u32 v{vFL}, v{vI15}, 9, {sT3}")
    e(f"s_lshl_b32 {sT4}, {sMEM}, 9")
    e(f"s_add_u32 {sT4}, {sT4}, {sT0}")
    e(f"s_lshl_b32 {sT3}, {sW}, 15")
    e(f"s_add_u32 {sT4}, {sT4}, {sT3}")
    e("v_and_b32 v3, 3, v27")
    e(f"v_lshl_add_u32 v3, v3, 13, {sT4}")
    e(f"v_mov_b32 v26, {OOB}")
    e("v_cmp_gt_u32 vcc, 4, v27")
    e(f"v_cndmask_b32 v{vFD}, v26, v3, vcc")
    e("v_lshrrev_b32 v1, 2, v27")
    e("v_lshl_add_u32 v3, v1, 7, v3")
    e("v_cmp_gt_u32 vcc, 16, v27")
    e("v_cndmask_b32 v25, v26, v3, vcc")
    e("v_mov_b32 v3, 0")
    e(f"buffer_store_dword v3, v25, {SWS}, 0 offen sc1 ; tag=CLR")

def prologue2(e, cfg):
    e(f"s_lshl_b32 {sT0}, {sB}, 3")
    e(f"s_add_u32 {sT0}, {sT0}, {sHKV}")
    e(f"s_lshl_b32 {sT0}, {sT0}, 19")
    e(f"s_add_u32 s8, s50, {sT0}"); e("s_addc_u32 s9, s51, 0"); srd(e, SK, 524288)
    e(f"s_add_u32 s12, s52, {sT0}"); e("s_addc_u32 s13, s53, 0"); srd(e, SV, 524288)
    e(f"s_lshl_b32 {sT0}, {sMEM}, 18")
    e(f"s_add_u32 s20, s56, {sT0}"); e("s_addc_u32 s21, s57, 0"); srd(e, SWO, 262144)
    e("s_mov_b32 s28, s64"); e("s_mov_b32 s29, s65"); srd(e, SOUT, 1048576)
    e("s_mov_b32 s32, s66"); e("s_mov_b32 s33, s67"); srd(e, SDBG, 256)
    if cfg.tch:
        e(f"s_lshl_b32 {sT0}, {sGRP}, 20")
        for k, (sr, so) in enumerate(((SK, 0), (SV, 0), (SWO, 0), (SOUT, 0), (SWS, sT0))[:cfg.tch]):
            e(f"buffer_load_dword v{vP+k}, off, {sr}, {so}")
    ch, cb, cr = cfg.krot
    e(f"s_mul_i32 {sKO}, {sHKV}, {ch}"); e(f"s_mul_i32 {sT0}, {sB}, {cb}"); e(f"s_add_u32 {sKO}, {sKO}, {sT0}")
    e(f"s_mul_i32 {sT0}, {sBR}, {cr}"); e(f"s_add_u32 {sKO}, {sKO}, {sT0}")
    e(f"s_mov_b32 {sMASK}, 0x67000")
    e(f"s_lshl_b32 {sT0}, {sKO}, 12"); e(f"s_and_b32 {sT0}, {sT0}, 0x7000")
    e(f"s_lshl_b32 {sKO}, {sKO}, 14"); e(f"s_and_b32 {sKO}, {sKO}, 0x60000")
    e(f"s_or_b32 {sKO}, {sKO}, {sT0}"); e(f"s_mov_b32 {sVO}, {sKO}")
    for c in range(4):
        e(f"s_add_u32 {sT0}, {sB}, {c}"); e(f"s_and_b32 {sT0}, {sT0}, 3"); e(f"s_lshl_b32 s{sWC+c}, {sT0}, 8")
    e(f"s_lshl_b32 {sT0}, {sW}, 15")
    e(f"v_lshl_add_u32 v3, v{vG}, 8, {sT0}")
    for n in range(4): e(f"v_add_u32 v{vKD+n}, v{vKD+n}, v3")
    for n in range(2): e(f"v_add_u32 v{vVD+n}, v{vVD+n}, v3")
    e(f"v_xor_b32 v3, v{vG}, v{vI15}")
    e(f"v_lshlrev_b32 v25, 8, v{vI15}")
    for s in range(4):
        e(f"v_xor_b32 v26, {4*s}, v3")
        e(f"v_lshl_add_u32 v{vKA+s}, v26, 4, v25")
    e(f"v_lshrrev_b32 v3, 2, v{vI15}")
    e(f"v_lshl_add_u32 v3, v{vG}, 2, v3")
    e("v_and_b32 v25, 7, v3")
    e("v_lshlrev_b32 v3, 8, v3")
    e(f"v_and_b32 v26, 3, v{vI15}")
    e("v_lshl_add_u32 v3, v26, 3, v3")
    e(f"v_add_u32 v3, {VBASE}, v3")
    for dt in range(8):
        e(f"v_xor_b32 v26, {dt}, v25")
        e(f"v_lshl_add_u32 v{vVA+dt}, v26, 5, v3")

def x_off(j):
    T = vT; L = []
    for n in range(4):
        L.append(f"v_add_u32 v{vS+4*j+n}, {256*j}, v{T+n}")
        L.append(f"v_and_or_b32 v{vS+4*j+n}, v{vS+4*j+n}, {sT2}, v{T+4+n}")
    return L
def x_dma(cfg, j):
    return [([f"s_add_u32 m0, {sW4K}, {j*16384}"] if n == 0 else [],
             f"buffer_load_dwordx4 v{vS+4*j+n}, {SX}, 0 offen offset:{1024*n} {cfg.polx} lds") for n in range(4)]

def wq_dma(cfg, i):
    T = vT; G = []
    for hh in range(2):
        for n in range(4):
            pre = []
            if n == 0:
                if hh == 0: pre += [f"s_add_u32 {sT0}, {sROT}, {i}", f"s_and_b32 {sT0}, {sT0}, 7", f"s_lshl_b32 {sT0}, {sT0}, 19"]
                else: pre += [f"s_add_u32 {sT0}, {sT0}, 256"]
                pre += [f"s_add_u32 m0, {sW4K}, {VBASE + hh*49152 + (i%3)*16384}"]
            G.append((pre, f"buffer_load_dwordx4 v{T+8+n}, {SWQ}, {sT0} offen offset:{1024*n} {cfg.polw} lds ; tag=W{i} loc=u{4 + hh*3 + i%3}"))
    return G

def kunit(t): return t & 3
def vunit(t): return 4 + ((t + 2) & 3)

def kv_dma(cfg, which, t):
    joint = cfg.off == 6 and t >= 4
    so = sKO if which == 'K' or joint else sVO
    u = kunit(t) if which == 'K' else vunit(t)
    pol = cfg.polkv
    G = []
    for n in range(4):
        pre = []
        if n == 0:
            if t > 0 and not (joint and which == 'V'):
                pre.append(f"s_sub_u32 {so}, {so}, {sMASK}")
                pre.append(f"s_and_b32 {so}, {so}, {sMASK}")
            pre.append(f"s_add_u32 m0, {sW4K}, {u*16384}" if u else f"s_and_b32 m0, {sW4K}, 0xffff")
        v = vKD + n if which == 'K' else vVD + (n & 1)
        G.append((pre, f"buffer_load_dwordx4 v{v}, {SK if which == 'K' else SV}, {so} offen offset:{1024*n} {pol} lds"))
    return G

def wo_dma(cfg, i, u):
    G = []
    for n in range(4):
        pre = []
        if n == 0:
            pre.append(f"s_xor_b32 {sT4}, s{sWC + (i >> 2)}, {(i & 3) * 65536}")
            pre.append(f"s_add_u32 m0, {sW4K}, {u*16384}")
        G.append((pre, f"buffer_load_dwordx4 v{vWD+n}, {SWO}, {sT4} offen offset:{1024*n} {cfg.polw} lds ; tag=O{i} loc=u{u}" + (",g0,g1" if u == cfg.gA else ",ck" if u == cfg.gS else "")))
    return G

def flat(G):
    L = []
    for pre, d in G:
        L += pre; L.append(d)
    return L

def place_dma(st, G, g0, g1, alone=0):
    empty = [g for g in range(g0 + len(G[0][0]), g1 + 1) if st.used[g] == 0]
    if alone == 1 and len(empty) >= len(G):
        ch = [empty[(i * len(empty)) // len(G)] for i in range(len(G))]
        for (_, d), g in zip(G, ch):
            st.force(g, d); st.used[g] = 2
    elif alone == 2:
        a0 = g0 + len(G[0][0]); ch = []; m = len(G)
        for i, (_, d) in enumerate(G):
            lo = max(a0 + (i * (g1 - a0 + 1)) // m, ch[-1] + 1 if ch else 0); hi = max(lo, a0 + ((i + 1) * (g1 - a0 + 1)) // m - 1)
            gg = min(range(lo, hi + 1), key=lambda t: (st.used[t] + 2 * any(y.startswith('v_exp') for y in st.fill[t]) + 9 * (t in st.block), t))
            st.force(gg, d); ch.append(gg)
    else:
        ch = st.spread([d for _, d in G], g0 + len(G[0][0]), g1)
    prev = g0 - 1
    isexp = lambda t: any(y.startswith('v_exp') for y in st.fill[t])
    nos = lambda t: not any(y.startswith('s_') or y.startswith('@') for y in st.fill[t])
    for (pre, d), g in zip(G, ch):
        lo = max(prev + 1, g0)
        k = len(pre)
        assert not pre or g >= lo, (g, lo, pre)
        hi = max(lo, g - 1); pos = []
        for idx in range(k - 1, -1, -1):
            cand = [t for t in range(hi, lo + idx - 1, -1) if nos(t) and (align.size(pre[idx]) == 8 or isexp(t))]
            t = cand[0] if cand else min(max(lo, g - k + idx), hi)
            pos.append(t); hi = max(lo, t - 1)
        for s, t in zip(pre, reversed(pos)): st.force(t, s)
        prev = g
    return ch

def warm(e, cfg):
    e("s_mov_b64 exec, 0")
    for k in range(1, cfg.wch):
        e(f"s_cmp_eq_u32 {sW}, {k}")
        e(f"s_cbranch_scc1 L_w{k}")
    e("s_branch L_w0")
    e(".p2align 12")
    e("L_wdone:")
    e("s_mov_b64 exec, -1")

def qproj(e, cfg):
    T = vT
    xw = lambda S: sum(((x_dma if it[0] == 'x' else wq_dma)(cfg, int(it[1])) for it in S.split(',') if it), [])
    for l in flat(xw(cfg.qi)): e(l)
    flags_setup(e, cfg)
    prologue2(e, cfg)
    for j in range(4):
        if f"x{j}" not in cfg.qi:
            for l in x_off(j): e(l)
    vX, vW = vXA, T + 16
    e(f"s_and_b32 {sKH}, {sW}, 1")
    e(f"s_lshr_b32 {sHH}, {sW}, 1")
    e(f"s_mul_i32 {sT1}, {sHH}, 49152"); e(f"s_lshl_b32 {sT0}, {sKH}, 7")
    for k in range(4):
        e(f"v_xor_b32 v{vW+k}, {sT0}, v{vVA+k}")
        e(f"v_add_u32 v{vW+k}, {sT1}, v{vW+k}")
    e(f"s_lshl_b32 {sT0}, {sKH}, 13")
    for s in range(4):
        e(f"v_mov_b32 v{vX+s}, v{vKA+s}")
        e(f"v_add_u32 v{vKA+s}, {sT0}, v{vKA+s}")
    e(f"s_lshl_b32 {sT3}, {sW}, 6")
    for k in range(2):
        e(f"v_xor_b32 v{vWA[2+k]}, {sT3}, v{vVA+k}")
        e(f"v_subrev_u32 v{vWA[k]}, {VBASE}, v{vWA[2+k]}")
        e(f"v_add_u32 v{vWA[4+k]}, {VBASE}, v{vWA[2+k]}")
    for dt in range(8): e(f"v_add_u32 v{vVA+dt}, {sT0}, v{vVA+dt}")
    e(f"s_lshl_b32 {sT1}, {sHH}, 14"); e(f"s_add_u32 {sT1}, {sT1}, {8*16384}")
    e(f"s_add_u32 {sT3}, {sT1}, {sT0}")
    e(f"v_add_u32 v{vQR}, {sT3}, v{vL16}")
    e(f"v_xor_b32 v{vQR+1}, 0x2000, v{vQR}")
    e(f"s_lshl_b32 {sT0}, {sKH}, 11"); e(f"s_add_u32 {sT1}, {sT1}, {sT0}")
    e(f"v_lshrrev_b32 v3, 1, v{vG}"); e(f"v_lshl_add_u32 v3, v3, 8, {sT1}")
    e(f"v_lshl_add_u32 v3, v{vI15}, 4, v3")
    e(f"v_and_b32 v25, 1, v{vG}"); e(f"v_lshl_add_u32 v{vQW}, v25, 3, v3")
    for n in range(4):
        e(f"v_and_b32 v3, 0xff, v{vVD+(n&1)}")
        e(f"v_add_u32 v{vWD+n}, v{vT+4+n}, v3")
    selector(e, vSEL, 2)
    gA, gB, gS = cfg.gA, cfg.gB, cfg.gS
    e(f"v_add_u32 v{vGA}, {gA*16384}, v{vL16}"); e(f"v_add_u32 v{vGA+1}, {gB*16384}, v{vL16}")
    e(f"s_mul_i32 {sT0}, {sHH}, {(gB - gA)*16384}"); e(f"s_lshl_b32 {sT1}, {sKH}, 11"); e(f"s_add_u32 {sT0}, {sT0}, {sT1}")
    e(f"v_add_u32 v{vGW}, {sT0}, v{vGA}"); e(f"v_xor_b32 v{vGW+1}, 0x800, v{vGW}")
    e(f"s_lshl_b32 {sT0}, {sW}, 10"); e(f"s_add_u32 {sT0}, {sT0}, {gS*16384}")
    e(f"v_add_u32 v{vGW+2}, {sT0}, v{vL16}"); e(f"v_xor_b32 v{vGW+3}, 0x400, v{vGW+2}")
    e(f"v_add_u32 v{vCK+1}, {gS*16384}, v{vL16}"); e(f"v_lshl_add_u32 v{vCK}, {sW}, 2, v{vCK+1}")
    e(f"s_lshl_b32 {sPST}, {sGRP}, 20")
    e(f"s_lshl_b32 {sT0}, {sW}, 18"); e(f"s_add_u32 {sPLD}, {sPST}, {sT0}")
    e(f"s_lshl_b32 {sT0}, {sMEM}, 14"); e(f"s_add_u32 {sPLD}, {sPLD}, {sT0}")
    e(f"s_lshl_b32 {sT1}, {sW}, 16"); e(f"s_add_u32 {sPST}, {sPST}, {sT1}")
    e(f"s_lshl_b32 {sT1}, {sMEM}, 10"); e(f"s_add_u32 {sPST}, {sPST}, {sT1}")
    e(f"s_xor_b32 {sPST}, {sPST}, {sW4K}")
    e(f"s_lshl_b32 {sT3}, {sB}, 17")
    e(f"s_and_b32 {sT0}, {sMEM}, 3"); e(f"s_lshl_b32 {sT0}, {sT0}, 15"); e(f"s_add_u32 {sT3}, {sT3}, {sT0}")
    e(f"s_lshl_b32 {sT0}, {sBR}, 10"); e(f"s_add_u32 {sT3}, {sT3}, {sT0}")
    e(f"s_add_u32 {sT0}, {sW}, {sB}"); e(f"s_and_b32 {sT0}, {sT0}, 3"); e(f"s_lshl_b32 {sT0}, {sT0}, 8"); e(f"s_add_u32 {sT3}, {sT3}, {sT0}")
    e(f"s_lshr_b32 {sT0}, {sMEM}, 2"); e(f"s_lshl_b32 {sT0}, {sT0}, 6"); e(f"s_add_u32 {sT3}, {sT3}, {sT0}")
    e(f"v_lshl_add_u32 v3, v{vI15}, 11, {sT3}")
    e(f"v_lshl_add_u32 v{vOUT}, v{vG}, 4, v3")
    e(f"s_lshl_b32 {sT1}, {sGRP}, 4")
    e(f"v_mov_b32 v26, {OOB}"); e(f"v_mov_b32 v27, {sT1}")
    e("v_cmp_eq_u32 vcc, 0, v0")
    e("v_cndmask_b32 v26, v26, v27, vcc")
    e(f"s_lshl_b32 {sT0}, {sB}, 15"); e(f"s_lshl_b32 {sT1}, {sW}, 11"); e(f"s_add_u32 {sT0}, {sT0}, {sT1}")
    e(f"v_lshl_add_u32 v{vWT}, v{vI15}, 7, {sT0}"); e(f"s_mov_b32 {sWT}, 0")
    if cfg.mode == 'S': e(f"v_mov_b32 v{vFD}, v27")
    e(f"v_mov_b32 v{vONE1}, 1")
    if cfg.mode == 'M':
        e(f"v_add_u32 v{vFL}, {sPLD}, v{vL16}")
        e(f"s_lshl_b32 {sGO}, {sGRP}, 4")
    if cfg.mode == 'S':
        for i in range(4): e(f"v_accvgpr_write_b32 a{aSEN+i}, -1")
        e(f"v_add_u32 v{vFL}, {sPLD}, v{vL16}")
        e(f"s_mov_b32 {sCLR}, 0")
    e("v_mov_b32 v3, 0x3f803f80")
    if cfg.smf:
        e(f"v_xor_b32 v25, v{vI15}, v{vG}"); e("v_and_b32 v25, 2, v25")
        e("v_cmp_eq_u32 vcc, 0, v25")
        e("v_cndmask_b32 v3, 0, v3, vcc")
        e(f"v_and_b32 v25, 1, v{vI15}"); e(f"v_mul_u32_u24 v25, 0xaaaa, v25"); e(f"v_add_u32 v{vSI}, 0x4444, v25")
    e(f"v_mov_b32 v{vSA0}, v3")
    e(f"s_mov_b32 {sSC}, {hex(QSCALE)}"); e(f"s_mov_b32 s69, {hex(QSCALE)}")
    e(f"v_and_b32 v3, 3, v{vI15}"); e(f"v_xor_b32 v25, v3, v{vG}")
    e("v_lshlrev_b32 v3, 8, v3"); e(f"v_lshl_add_u32 v{vPR}, v25, 4, v3")
    if cfg.wstep and cfg.wpos == 0: warm(e, cfg)
    for l in flat(xw(cfg.qj)): e(l)
    if cfg.wstep and cfg.wpos == 1: warm(e, cfg)
    if cfg.diag == 3:
        for l in lstamp(1): e(l)
    st = Stream()
    D = cfg.qD
    for _ in range(D): st.add(None)
    def xfrag(i, ks, q4): return (96, 192, 64)[i % 3] + (ks * 4 + q4) * 4
    def wfrag(i, ks, k): return (160, 224, 128)[i % 3] + (ks * 4 + k) * 4
    def acc(q4, k): return vO + (q4 * 4 + k) * 4
    done = {}
    order = [(i, ks, k, q4) for i in range(6) for ks in range(2) for k in range(4) for q4 in range(4)]
    nA = cfg.qA
    order += [(6, ks, k, q4) for ks in range(2) for k in range(4) for q4 in range(nA)]
    n7 = len(order)
    order += [(i, ks, k, q4) for q4 in range(4) for k in range(4) for i in ((7,) if q4 < nA else (6, 7)) for ks in range(2)]
    for i, ks, k, q4 in order:
        a = vr(acc(q4, k))
        c = "0" if (i == 0 and ks == 0) else a
        done[q4, k] = st.add(f"{MF} {a}, {ar(wfrag(i, ks, k))}, {ar(xfrag(i, ks, q4))}, {c} ; use=w{i}_{ks}_{k},x{i}_{ks}_{q4}")
    xs = dict(it.split(':') for it in cfg.qx.split(',') if it)
    latex = []
    for i in range(8):
        g0 = 32 * i if i < 7 else n7 - cfg.q7
        g1 = g0 + 32 if i != 6 else n7 - cfg.q7
        need = f"W{i}" + (f",X{i>>1}" if i % 2 == 0 else "")
        st.force(g0, f"@vmwait {need} lgkm0")
        st.force(g0, "s_barrier")
        if cfg.diag == 3:
            for l in lstamp(i + 2): st.force(g0, l)
        xr = lambda ks, q4: f"ds_read_b128 {ar(xfrag(i, ks, q4))}, v{vX + 2*(i&1) + ks} offset:{(i>>1)*16384 + q4*4096}"
        wr = lambda ks, k: [f"ds_read_b64_tr_b16 {ar(wfrag(i, ks, k) + 2*u, 2)}, v{vW+k} offset:{(i%3)*16384 + ks*8192 + u*4096}" for u in range(2)]
        rd = []
        if i < 7:
            for ks in range(2):
                rd += wr(ks, 0) + [xr(ks, q4) for q4 in range(4 if i < 6 else nA)] + wr(ks, 1) + wr(ks, 2) + wr(ks, 3)
            if i == 6: latex = [xr(ks, q4) for q4 in range(nA, 4) for ks in range(2)]
        else:
            rd = [xr(0, 0), xr(1, 0)] + sum((wr(ks, k) for k in range(4) for ks in range(2)), []) + [xr(ks, q4) for q4 in range(1, 4) for ks in range(2)] + latex
        G = wq_dma(cfg, i + 2) if i + 2 < 8 else []
        G += xw(xs.get(str(i), ''))
        qk = cfg.qkv.split('|')
        for it in qk[i - 8 + len(qk)].split(',') if i >= 8 - len(qk) else []:
            if it: G += kv_dma(cfg, it[0], int(it[1:]))
        if G: place_dma(st, G, g0 + 1, g1 - 4 if i != 6 else g1 - 1)
        ch = st.spread(rd, g0, g1 - 1 - cfg.qG if i < 7 else g0 + cfg.q7r)
    gb = ch[-1] + 6
    st.force(gb, "@vmwait _ lgkm0"); st.force(gb + 1, "s_barrier")
    def fin(q4, k, pk):
        a = acc(q4, k)
        if pk: L = [f"v_pk_mul_f32 {vr(a+j, 2)}, {vr(a+j, 2)}, {sSC2}" for j in (0, 2)]
        else: L = [f"v_mul_f32 v{a+j}, {sSC}, v{a+j}" for j in range(4)]
        L += [f"v_cvt_pk_bf16_f32 v{a+j}, v{a+2*j}, v{a+2*j+1}" for j in range(2)]
        return L, f"ds_write_b64 v{vQW}, {vr(a, 2)} offset:{(q4*4 + (k>>1))*1024 + (k&1)*512}"
    tiles = [(q4, k) for q4 in range(4) for k in range(4)]
    G = []
    for it in cfg.fkv.split(','):
        if it: G += kv_dma(cfg, it[0], int(it[1:]))
    if cfg.fin and G:
        place_dma(st, G, max(gb + 2, 32 * 7 + 28 - 32 + cfg.qA * 8), st.n() - 1); G = []
    g = 0; gw = gb + 1; nt = 0
    while True:
        q4, k = tiles[nt]
        g = max(g, done[q4, k] + 4)
        if max(g, gw) + 4 >= st.n(): break
        V, wr = fin(q4, k, False)
        for x in V: g = st.put(g, x)
        gw = st.put(max(g, gw) + 1, wr)
        nt += 1
    if '-v' in sys.argv: print("Q tiles finalised in stream:", nt)
    for l in st.lines(): e(l)
    if cfg.diag == 3:
        for l in lstamp(10): e(l)
    cfg.pre_issued = set(it for part in (cfg.qkv + '|' + cfg.fkv).split('|') for it in part.split(',') if it)
    rest = tiles[nt:]
    pend = None
    for idx, (q4, k) in enumerate(rest):
        V, wr = fin(q4, k, True)
        for x in V: e(x)
        if pend: e(pend)
        pend = wr
        while G and len(G) > (len(rest) - 1 - idx) * cfg.fden // 12:
            for x in flat(G[:1]): e(x)
            G = G[1:]
    e(pend)
    if cfg.diag == 3:
        for l in lstamp(11): e(l)

def Qreg(qt, s): return ar(aQ + (qt * 4 + s) * 4)
def k_reads(t):
    return [f"ds_read_b128 {ar(aKF + (t & 1)*32 + (kt*4+s)*4)}, v{vKA+s} offset:{kunit(t)*16384 + kt*4096}" for kt in range(2) for s in range(4)]
def v_reads(t):
    return [f"ds_read_b64_tr_b16 {ar(aVF + (t & 1)*32 + dt*4 + 2*u, 2)}, v{vVA+dt} offset:{vunit(t)*16384 - VBASE + u*4096}" for dt in range(8) for u in range(2)]

def afrag(j, kk, k): return (192, 224, 128, 160)[j & 3] + (kk * 2 + k) * 4
def a_reads(j, wo_unit):
    rd = []
    for kk in range(4):
        i = 2 * j + (kk >> 1); u = wo_unit[i]
        for k in range(2):
            for h in range(2):
                rd.append(f"ds_read_b64_tr_b16 {ar(afrag(j, kk, k) + 2*h, 2)}, v{vWA[2*(u>>2) + k]} offset:{(u&3)*16384 + (kk&1)*8192 + h*4096}")
    return rd

def selector(e, base, tmp):
    e(f"v_lshrrev_b32 v{tmp}, 2, v{vI15}")
    e(f"v_cmp_eq_u32 vcc, v{tmp}, v{vG}")
    e(f"v_and_b32 v{tmp}, 1, v{vI15}")
    e(f"v_lshlrev_b32 v{tmp}, 4, v{tmp}")
    e(f"v_mov_b32 v{tmp+1}, 0x3f80")
    e(f"v_lshlrev_b32 v{tmp}, v{tmp}, v{tmp+1}")
    e(f"v_cndmask_b32 v{tmp}, 0, v{tmp}, vcc")
    e(f"v_and_b32 v{tmp+1}, 2, v{vI15}")
    e(f"v_cmp_eq_u32 vcc, 0, v{tmp+1}")
    for i in (0, 1, 4, 5): e(f"v_mov_b32 v{base+i}, 0")
    e(f"v_cndmask_b32 v{base+2}, 0, v{tmp}, vcc")
    e(f"v_sub_u32 v{base+3}, v{tmp}, v{base+2}")

def retry_block(name, dst, voff, srdn, off, val):
    return [f"{name}:", f"s_mov_b32 {sCNT}, 0", f"{name}_l:",
            f"buffer_load_dword v{dst}, v{voff}, {srdn}, 0 offen offset:{off} sc1",
            f"s_add_u32 {sCNT}, {sCNT}, 1", "s_waitcnt vmcnt(0)",
            f"v_cmp_gt_u32 vcc, {val}, v{dst}",
            f"s_cmp_ge_u32 {sCNT}, {SPIN}", f"s_cbranch_scc1 {name}_b",
            f"s_cbranch_vccnz {name}_l", f"s_branch {name}_b"]

def check_in_stream(st, g, tag, name, dst, val):
    st.force(g, f"@vmwait {tag}")
    st.force(g, f"v_cmp_gt_u32 vcc, {val}, v{dst}")
    st.force(g + 1, f"s_cbranch_vccnz {name}")
    st.force(g + 1, f"@label {name}_b")
    return g + 1

def norm_head(qt):
    A = vL if qt == 0 else vL1
    return [f"v_add_f32 v{A}, v{A}, v{A+1}", f"v_add_f32 v{A+2}, v{A+2}, v{A+3}", f"v_add_f32 v{A}, v{A}, v{vL+8+qt}",
            f"v_add_f32 v{1+qt}, v{A}, v{A+2}", f"v_rcp_f32 v{26+qt}, v{1+qt}"]
def norm_frag(cfg, qt, s, pk):
    a = vO + (qt * 8 + 2 * s) * 4
    if pk: L = [f"v_pk_mul_f32 {vr(a+j, 2)}, {vr(a+j, 2)}, v[26:27] op_sel:[0,{qt}] op_sel_hi:[1,{qt}]" for j in range(0, 8, 2)]
    else: L = [f"v_mul_f32 v{a+j}, v{26+qt}, v{a+j}" for j in range(8)]
    L += [f"v_cvt_pk_bf16_f32 v{a+j}, v{a+2*j}, v{a+2*j+1}" for j in range(4)]
    return L, f"ds_write_b128 v{vGW}, {vr(a)} offset:{(s*4+qt)*1024}"

def attention(e, cfg, ool):
    NT = cfg.NT
    ta, tb = NT - 2, NT - 1
    mu = [(t, qt) for t in range(NT - 2) for qt in (2, 3, 0, 1)]
    mu += [(ta, 2), (ta, 3), (tb, 2), (tb, 3), (ta, 0), (tb, 0), (ta, 1), (tb, 1)]
    n = len(mu)
    gA, gB, gS = cfg.gA, cfg.gB, cfg.gS
    e(f"s_cmp_eq_u32 {sMODE}, 0")
    e("@vmwait K0,V0 lgkm0")
    e("s_barrier")
    e("s_cbranch_scc0 L_slow")
    if cfg.diag == 3:
        for l in lstamp(12): e(l)
        for l in lstamp(13): e(l)
        e("v_mov_b32 v126, v254"); e("v_mov_b32 v127, v255")
    if cfg.diag in (2, 4, 6): e('s_mov_b32 s49, 0')
    pr = [f"ds_read_b128 {ar(aPR + s*4)}, v{vPR} offset:{kunit(0)*16384 + 64*s}" for s in range(4)]
    qr = lambda qt: [f"ds_read_b128 {Qreg(qt, s)}, v{vQR + (qt >> 1)} offset:{(qt&1)*4096 + s*1024}" for s in range(4)]
    for x, y in zip(pr, qr(2)): e(x); e(y)
    for l in qr(3): e(l)
    for i in range(4): e(f"v_mov_b32 v{vSA+i}, v{vSA0}")
    for i in range(8): e(f"v_mov_b32 v{vL+i}, 0")
    for i in (2, 3): e(f"v_mov_b32 v{vL1+i}, 0")
    def probe(qt):
        d = vr(vCI + 4 * qt)
        return [f"{MF} {d}, {ar(aPR + s*4)}, {Qreg(qt, s)}, {'0' if s == 0 else d} ; use=pr{s},q{qt}_{s}" for s in range(4)]
    def pfin(qt):
        a = vCI + 4 * qt
        return [f"v_min3_f32 v{a}, -v{a}, -v{a+1}, -v{a+2}"] + [f"v_min_f32_e64 v{a+j}, v{a}, -v{a+3}" for j in (1, 2)] + \
               [f"v_mov_b32 v{a}, v{a+1}", f"v_mov_b32 v{a+3}, v{a+1}"]
    def addO(qt):
        L = []
        for s in range(4):
            for T in range(2):
                o = vr(vO + (qt * 8 + 2 * s + T) * 4)
                L.append(f"{MF} {o}, {vr(vSEL + 2 - 2*T)}, {ar(aQ + 32 + (qt*4+s)*4)}, {o} ; use=_,po{qt}_{s}")
        return L
    st = Stream()
    st.wsh = cfg.wsh
    qk0 = {}; pv0 = {}; pvend = {}; smf = {}
    for x in probe(2) + probe(3): st.add(x)
    st.add(None)
    for i in range(-1, n):
        if i + 1 < n:
            t, qt = mu[i + 1]
            qk0[i + 1] = st.n()
            for kt in range(2):
                d = vr(vS + ((i + 1) & 1) * 8 + kt * 4)
                for s in range(4):
                    st.add(f"{MF} {d}, {ar(aKF + (t & 1)*32 + (kt*4+s)*4)}, {Qreg(qt, s)}, {vr(vCI + 4*qt) if s == 0 else d} ; use=k{t}_{kt}_{s},q{qt}_{s}")
        else:
            for x in addO(1): st.add(x)
        if i >= 0:
            t, qt = mu[i]
            p = vr(vP + (i & 1) * 4)
            if i & 1:
                smf[i] = st.add(f"v_smfmac_f32_16x16x64_bf16 {vr(vL1 if i == n - 1 else vL + 4*(qt >> 1))}, {vr(vSA)}, {vr(vP, 8)}, v{vSI}")
            pv0[i] = st.n()
            for dt in range(8):
                o = vr(vO + (qt * 8 + dt) * 4)
                pvend[i] = st.add(f"{MF} {o}, {ar(aVF + (t & 1)*32 + dt*4)}, {p}, {'0' if t == 0 else o} ; use=v{t}_{dt},p{i}")
            if i == n - 3:
                gadd = st.n()
                for x in addO(0): st.add(x)
        else:
            gp0 = st.n()
            for x in probe(0) + probe(1): st.add(x)
            st.add(None)
    for i in range(n):
        g = qk0[i] + cfg.expoff
        sb = vS + (i & 1) * 8; pb = vP + (i & 1) * 4
        for j in range(8):
            st.force(g + 2 * j, f"v_exp_f32 v{sb+j}, v{sb+j}")
            if j & 1: st.force(g + 2 * j + 1, f"v_cvt_pk_bf16_f32 v{pb + j//2}, v{sb+j-1}, v{sb+j} ; def=p{i}")
    G0 = lambda t: qk0[4 * t]
    for k, x in enumerate(k_reads(0) + qr(0) + qr(1)): st.force(k // 2, x)
    for x in pfin(2): st.force(8, x)
    for qt, g in ((3, G0(0) + 3), (0, gp0 + 8), (1, gp0 + 12)):
        for x in pfin(qt): g = st.put(g, x)
    st.spread(v_reads(0), G0(0), G0(0) + 14)
    isexp = lambda t: any(y.startswith('v_exp') for y in st.fill[t])
    def seq_put(L, g, cap):
        for x in L:
            while g < st.n() - 1 and (isexp(g) or st.used[g] >= cap): g += 1
            st.force(g, x)
        return g
    ool += ["L_rG:", f"s_mov_b32 {sCNT}, 0", "L_rG_l:", f"s_load_dword {sGC}, s[32:33], {sGO} glc", f"s_add_u32 {sCNT}, {sCNT}, 1", "s_waitcnt lgkmcnt(0)",
            f"s_cmp_ge_u32 {sCNT}, {SPIN}", "s_cbranch_scc1 L_rG_b", f"s_cmp_lt_u32 {sGC}, 16", "s_cbranch_scc1 L_rG_l", "s_branch L_rG_b"]
    wo_unit = {}; free = [8, 9]
    def wo_next(k):
        G = []
        while k and free and len(wo_unit) < 16:
            i = len(wo_unit); wo_unit[i] = free.pop(0); G += wo_dma(cfg, i, wo_unit[i]); k -= 1
        return G
    if cfg.roll:
        for t in range(cfg.l0, NT - 3, 4):
            gm = G0(t) - cfg.mk
            while st.used[gm]: gm += 1
            assert gm < G0(t) - 1
            if t == cfg.l0: st.force(gm - 1, f"s_mov_b32 {sLOOP}, {-((NT - 4 - cfg.l0) // 4)}")
            else:
                st.force(gm - 1, f"s_add_u32 {sLOOP}, {sLOOP}, 1")
                st.force(gm, "s_cbranch_scc0 L_att")
            st.force(gm, "@iter L_att")
            st.used[gm] = 2
    seq_put([f"v_mov_b32 v{vL1}, v{vL+2}", f"v_mov_b32 v{vL1+1}, v{vL+3}", f"v_mov_b32 v{vL+2}, 0", f"v_mov_b32 v{vL+3}, 0"], G0(tb) - 10, 2)
    g = G0(tb) + 2; gw = g
    for h in range(2):
        g = max(g, pvend[n - 6 + h] - 2)
        for s in range(4):
            a = vO + ((2 + h) * 8 + 2 * s) * 4
            g = seq_put([f"v_cvt_pk_bf16_f32 v{a+j}, v{a+2*j}, v{a+2*j+1}" for j in range(4)], max(g, pv0[n - 6 + h] + 2 * s + 6), cfg.xc)
            gw = max(g + 1, gw + cfg.xw)
            while isexp(gw): gw += 1
            st.force(gw, f"ds_write_b128 v{vGW+1}, {vr(a)} offset:{(s*4+h)*1024} ; tag=OX{h} loc=" + (f"u{gA},u{gB},g0" if h == 0 else "g1"))
        if h == 0:
            g = seq_put([f"v_add_f32 v{vL+4}, v{vL+4}, v{vL+5}", f"v_add_f32 v{vL+5}, v{vL+6}, v{vL+7}"], max(g, smf[n - 5] + 5), cfg.xc)
            gw = max(g + 1, gw + cfg.xw)
            while isexp(gw): gw += 1
            st.force(gw, f"ds_write_b64 v{vGW+3}, {vr(vL + 4, 2)}")
    gx = gw + cfg.xb
    st.force(gx - 1, "@vmwait _ lgkm0"); st.force(gx, "s_barrier")
    gy = G0(ta) + cfg.gy
    while isexp(gy): gy += 1
    if cfg.wt: st.fill[gx - 1] = [x.replace("@vmwait _", "@vmwait O2,O3") for x in st.fill[gx - 1]]; gy = gx + 12
    else: st.force(gy - 1, "@vmwait O2,O3"); st.force(gy, "s_barrier")
    rd = [f"ds_read_b128 {ar(aQ + 32 + (h*4+s)*4)}, v{vGW} offset:{(s*4+h)*1024}" for h in range(2) for s in range(4)]
    rd.insert(4, f"ds_read_b64 {vr(vL + 8, 2)}, v{vGW+2} ; rd=LX")
    if '-v' in sys.argv: print("exchange barrier at", gx - G0(ta), "first add at", gadd - G0(ta), "end", st.n() - G0(ta))
    assert gx + 4 < gadd
    st.spread(rd[:5], gx, gx + 4); st.spread(rd[5:], gx + 5, gx + 12)
    g = seq_put(norm_head(0), gadd + 1, 3); gw = g
    for s in range(4):
        V, wr = norm_frag(cfg, 0, s, False)
        g = seq_put(V, max(g + (s == 0), gadd + 2 * s + 6), cfg.nc)
        gw = min(max(g + 1, gw + cfg.xw), st.n() - 1)
        while isexp(gw): gw += 1
        assert gw > g
        st.force(gw, wr)
    if '-v' in sys.argv: print("first gather write done at", gw - G0(ta))
    if cfg.diag == 7:
        for k, gg in ((1, G0(4)), (2, G0(NT - 4)), (3, G0(NT - 3)), (4, G0(NT - 2)), (5, G0(NT - 1)), (6, gx)):
            st.force(gg - (8 if k == 1 else 0), "\n".join(lstamp(k, 126)))
    seq = [(wh, t) for t in range(NT) for wh in 'KV' if f"{wh}{t}" not in cfg.pre_issued]
    for t in range(NT):
        g0 = G0(t); g1 = G0(t + 1) if t + 1 < NT else g0 + 66
        gb = g0 + (cfg.b0 if t == 0 else cfg.bg)
        st.force(gb, f"@vmwait K{t+1},V{t+1}{',O0,O1' if t == tb else ''} rd:K{t},V{t},QX")
        st.force(gb + cfg.bd, "s_barrier")
        if cfg.diag == 2 or (cfg.diag in (4, 6) and t % 2 == 0):
            st.force(gb + cfg.bd, "\n".join(["s_memrealtime s[98:99]", "s_memtime s[96:97]", "s_add_u32 s49, s49, 1", "s_mov_b32 s100, m0", "s_mov_b32 m0, s49", "s_waitcnt lgkmcnt(0)", "v_writelane_b32 v126, s98, m0", "v_writelane_b32 v127, s96, m0", "s_mov_b32 m0, s100"]))
        if t == NT - 4: st.force(g0 + 1, f"s_load_dword {sGC}, s[32:33], {sGO}")
        if t == NT - 3: st.force(g0 + 1, f"s_cmp_lt_u32 {sGC}, 16\ns_cbranch_scc1 L_rG\n@label L_rG_b")
        G = []; k = 0
        if t + 4 >= NT: free += [u for u in (kunit(t), vunit(t)) if u not in (gA, gB, gS)]
        while seq and 2 * seq[0][1] + (seq[0][0] == 'V') <= 2 * t + cfg.off + 1 and k < 3:
            wh, tt = seq.pop(0); G += kv_dma(cfg, wh, tt); k += 1
        if not seq and not k: G += wo_next(int(cfg.wl[t - NT]))
        if cfg.wt and t % 4 == cfg.wtt and cfg.l0 <= t < NT - 4:
            G = G + [([f"s_add_u32 {sWT}, {sWT}, 0x2000", f"s_bitset0_b32 {sWT}, 15"], f"buffer_load_dword v{vPF2-1}, v{vWT}, {SWO}, {sWT} offen")]
        if cfg.pf == 2 and t % 4 == cfg.pft and t >= cfg.l0:
            G = G + [([], f"buffer_load_dword v{vPF2}, v{vPF}, s[88:91], 0 offen sc1")]
        if t == cfg.tann:
            G = [([], f"buffer_atomic_add v{vONE1}, v26, {SDBG}, 0 offen sc1")] + G
        if G: gl = place_dma(st, G, g0 + 2, g1 - cfg.mk - 3 if t < ta else g0 + cfg.wa if t == ta else g0 + 17 * int(cfg.wl[-1]), 1 if t < tb and len(G) < 11 else 2)[-1]
        if t < tb:
            pl = pv0[4 * t - 1] if t > 0 else 0
            lo = [0] * 8 + [pl + d // 2 for d in range(16)]
            hi = [g1 - cfg.rdend] * 24; ge = g1 - cfg.rdend - 1
            if t == ta:
                hi = [qk0[n - 6] - 7] * 8 + [pv0[n - 6] - 8 + d // 2 for d in range(16)]; ge = pv0[n - 6] - 4
            st.spreadc(k_reads(t + 1) + v_reads(t + 1), gb + cfg.bd, ge, lo, hi)
    st.spreadc(a_reads(0, wo_unit), G0(tb) + 1, gx - 6, None, [gx - 5] * 16)
    free += [wo_unit[0], wo_unit[1]]
    place_dma(st, wo_next(cfg.wx), max(gx, gl) + 1, st.n() - 2, 2)
    st.spreadc(a_reads(1, wo_unit), gy, st.n() - 6, None, [st.n() - 4] * 16)
    for l in st.lines(): e(l)
    if '-v' in sys.argv:
        over = sum(max(0, u - 2) for u, m in zip(st.used, st.mf) if m)
        print("attention gaps", st.n(), "overfull slots", over, "in last two periods", sum(max(0, u - 2) for u in st.used[G0(ta):]), "wo units", wo_unit)
    cfg.wo_pre = dict(wo_unit)
    return wo_unit, free, wo_next

def oproj(e, cfg, wo_unit, free, wo_next):
    gA, gB, gS = cfg.gA, cfg.gB, cfg.gS
    ls = lambda k: lstamp(k, 126) if cfg.diag == 7 else []
    def b_reads(q4):
        return [f"ds_read_b128 {ar((ks8*4+q4)*4)}, v{vGA + (ks8>>2)} offset:{((ks8&3)*4+q4)*1024}" for ks8 in range(8)]
    e("L_norm:")
    for l in ls(7): e(l)
    for l in norm_head(1): e(l)
    e("@vmwait O4,O5 lgkm0"); e("s_barrier")
    stamp(e, cfg, 3)
    for l in b_reads(0): e(l)
    e("v_add_f32 v25, v1, v2")
    wrs = [f"ds_write_b32 v{vCK}, v25 offset:4096"]
    free += [wo_unit[2], wo_unit[3]]
    Gb = wo_next(2)
    for s in range(cfg.nb):
        V, wr = norm_frag(cfg, 1, s, True)
        if s < cfg.nbd:
            for l in flat(Gb[:1]): e(l)
            Gb = Gb[1:]
        for l in V: e(l)
        if s < cfg.nb - 1: e(wr)
        else: wrs.append(wr)
    for l in ls(8): e(l)
    st = Stream()
    st.wsh = cfg.wsh
    def acc(c, q4, k): return vO + c * 32 + q4 * 8 + k * 4
    S0 = lambda j: 32 * j
    qend = {}
    for c in range(4):
        qs = (0, 2, 1, 3) if c == 0 else range(4)
        if cfg.om[c] == 'Q': order = [(ks8, k, q4) for q4 in qs for k in range(2) for ks8 in range(8)]
        else: order = [(4 * hf + kk, k, q4) for hf in range(2) for q4 in qs for k in range(2) for kk in range(4)]
        for ks8, k, q4 in order:
            j, kk = 2 * c + (ks8 >> 2), ks8 & 3
            a = vr(acc(c, q4, k))
            qend[c, q4] = st.add(f"{MF} {a}, {ar(afrag(j, kk, k))}, {ar((ks8*4+q4)*4)}, {'0' if ks8 == 0 else a} ; use=a{j}_{kk}_{k},b{ks8}_{q4}")
    if cfg.diag == 7:
        for j in (2, 4, 6): st.force(S0(j) + 2, "\n".join(lstamp(8 + j // 2, 126)))
        st.force(st.n() - 1, "\n".join(lstamp(12, 126)))
    for k, l in enumerate(b_reads(2)): st.force(k, l)
    gw = -1
    for l in wrs: gw = st.force(gw + 2, l)
    g = 0
    for s in range(cfg.nb, 4):
        V, wr = norm_frag(cfg, 1, s, False)
        for x in V: g = st.put(g, x)
        gw = st.force(max(g + 1, gw + 3), wr)
    g1 = max(cfg.g1, gw + 5)
    if '-v' in sys.argv: print("second gather barrier at", g1)
    place_dma(st, Gb, 0, g1 - 2, 2)
    st.spread(a_reads(2, wo_unit), 4, g1 - 6)
    st.force(g1 - 1, "@vmwait O6,O7,O8 lgkm0"); st.force(g1, "s_barrier")
    rd = b_reads(1); rd.insert(4, f"ds_read_b128 {vr(vS)}, v{vCK+1} offset:4096 ; rd=CK")
    for k, l in enumerate(rd): st.force(g1 + k // 2, l)
    g = g1 + 10
    for l in [f"v_add_f32 v{vS}, v{vS}, v{vS+1}", f"v_add_f32 v{vS+2}, v{vS+2}, v{vS+3}", f"v_add_f32 v{vS}, v{vS}, v{vS+2}", f"v_cmp_nge_f32 vcc, {hex(f2u(2.0**cfg.T))}, v{vS}"]:
        g = st.put(g, l) + 1
    st.force(g, "s_cbranch_vccnz L_fail\n@label L_fail_b")
    gck = g
    free += [wo_unit[4], wo_unit[5]]
    g2 = cfg.g2
    gl = place_dma(st, wo_next(2), g1 + 1, g1 + cfg.w2o, 2)[-1]
    st.spread(b_reads(3), g1 + 5, g1 + 14)
    rdst = {x: (x - 2 if cfg.om[x >> 1] == 'Q' and x & 1 else x - 1) for x in range(3, 8)}
    if rdst[3] == 1: st.spread(a_reads(3, wo_unit), g1 + 15, 57)
    st.force(g2 - 1, "@vmwait _ rd:G0,G1,CK"); st.force(g2, "s_barrier")
    free += [gS, gA, gB]
    place_dma(st, wo_next(3), max(g2, gl) + 1, max(g2, gl) + cfg.w3, 2)
    assert len(wo_unit) == 16
    seen = set(range(9))
    for j in range(2, 7):
        todo = [x for x in range(3, 8) if rdst[x] == j]
        need = [i for x in todo for i in (2 * x, 2 * x + 1) if i not in seen]
        if need:
            st.force(S0(j) + cfg.bo - 1, "@vmwait " + ",".join(f"O{i}" for i in need)); st.force(S0(j) + cfg.bo, "s_barrier")
            seen.update(range(max(need) + 1))
        if todo: st.spread(sum((a_reads(x, wo_unit) for x in todo), []), S0(j) + cfg.bo, S0(j) + 25)
    left = []; g = 0
    for c in range(4):
        for q4 in ((0, 2, 1, 3) if c == 0 else range(4)):
            a = acc(c, q4, 0)
            g = max(g, qend[c, q4] + 5, cfg.pst)
            if g + 6 >= st.n(): left.append(q4); continue
            st.put(g, f"s_xor_b32 {sT3}, {sPST}, {c*262144 + q4*17408}")
            for k in range(4): g = st.put(g, f"v_cvt_pk_bf16_f32 v{a+k}, v{a+2*k}, v{a+2*k+1}")
            g = st.put(g + 2, f"buffer_store_dwordx4 {vr(a)}, v{vL16}, {SWS}, {sT3} offen sc1 ; tag=PS{c}") + 1 + (cfg.psp if c < 3 else 0)
    g = S0(5) + 4
    for l in [f"s_movk_i32 s{sWC+k}, {hex(4096*k)}" for k in range(1, 4)] + [f"s_mov_b32 {sCNT}, 0", f"s_mov_b32 {sDONE}, 0"]: g = st.put(g, l) + 1
    flag = lambda c: [f"@vmwait PS{c}", f"buffer_atomic_xor v{vFB}, v{vFD}, {SWS}, 0 offen offset:{128*c} sc1"]
    for c in range(cfg.f0):
        gg = S0(7) + cfg.f0p + c * cfg.f0d
        assert gg > gck
        st.force(gg, flag(c)[0]); st.put(gg, flag(c)[1])
    for l in st.lines(): e(l)
    if '-v' in sys.argv: print("oproj overfull", sum(max(0, u - 2) for u in st.used))
    stamp(e, cfg, 4)
    for q4 in left:
        a = acc(3, q4, 0)
        e(f"s_xor_b32 {sT3}, {sPST}, {3*262144 + q4*17408}")
        for k in range(4): e(f"v_cvt_pk_bf16_f32 v{a+k}, v{a+2*k}, v{a+2*k+1}")
        e(f"buffer_store_dwordx4 {vr(a)}, v{vL16}, {SWS}, {sT3} offen sc1 ; tag=PS3")
    e(f"s_load_dword {sMK}, s[24:25], {sMO} glc")
    for c in range(cfg.f0, 4):
        for l in flag(c): e(l)
    stamp(e, cfg, 5)
    e("s_waitcnt lgkmcnt(0)")
    e("s_branch L_pF_e")
    e("L_pF:")
    e(f"s_load_dword {sMK}, s[24:25], {sMO} glc")
    e(f"s_add_u32 {sCNT}, {sCNT}, 1")
    e(f"s_cmp_ge_u32 {sCNT}, {SPIN}")
    e("s_waitcnt lgkmcnt(0)")
    e("s_cbranch_scc1 L_pF_x")
    e("L_pF_e:")
    e(f"s_xor_b32 {sMK}, {sMK}, {sOLD}")
    e(f"s_andn2_b32 {sT0}, {sMK}, {sDONE}")
    e("s_cbranch_scc0 L_pF")
    if cfg.thr:
        e(f"s_cmp_eq_u32 {sMK}, 0xffff")
        e(f"s_cselect_b32 {sT1}, 0, {sT0}")
        for k in range(cfg.thr):
            e(f"s_sub_u32 {sT2}, {sT1}, 1"); e(f"s_and_b32 {sT1}, {sT1}, {sT2}")
        e(f"s_xor_b32 {sT0}, {sT0}, {sT1}")
    e(f"s_or_b32 {sDONE}, {sDONE}, {sT0}")
    for q in range(4):
        e(f"s_and_b32 {sT1}, {sT0}, {hex(15 << (4*q))}")
        e(f"s_cbranch_scc0 L_pq{q}")
        for j in range(4 * q, 4 * q + 4):
            e(f"s_bitcmp1_b32 {sT0}, {j}")
            e(f"s_cbranch_scc0 L_pj{j}")
            e(f"buffer_load_dwordx4 {vr(vO+4*j)}, v{vFL}, {SWS}, {'s%d' % (sWC + q) if q else 0} offen offset:{1024*(j&3)} sc1")
            e(f"L_pj{j}:")
        e(f"L_pq{q}:")
    e(f"s_cmp_eq_u32 {sDONE}, 0xffff")
    e("s_cbranch_scc0 L_pF")
    e("L_pF_x:")
    stamp(e, cfg, 6)
    e("s_waitcnt vmcnt(0)")
    for j in range(16):
        e(f"{MF} v[16:19], {vr(vSEL+2)}, {vr(vO+4*j)}, {'0' if j == 0 else 'v[16:19]'}")
        e(f"{MF} v[4:7], {vr(vSEL)}, {vr(vO+4*j)}, {'0' if j == 0 else 'v[4:7]'}")
    e("v_cvt_pk_bf16_f32 v16, v16, v17"); e("v_cvt_pk_bf16_f32 v17, v18, v19")
    e("v_cvt_pk_bf16_f32 v18, v4, v5"); e("v_cvt_pk_bf16_f32 v19, v6, v7")
    for op in ("v_permlane32_swap_b32", "v_permlane16_swap_b32"):
        e(f"{op} v16, v18"); e(f"{op} v17, v19")
    e(f"buffer_store_dwordx4 v[16:19], v{vOUT}, {SOUT}, 0 offen {cfg.polout}")

def slow_path(cfg):
    L = []; e = L.append
    vM, vLs, vA, vX = vCI, vCI + 2, vCI + 4, vCI + 6
    e("L_slow:")
    e("s_waitcnt vmcnt(0)")
    for qt in range(2):
        for s in range(4): e(f"ds_read_b128 {Qreg(qt, s)}, v{vQR} offset:{qt*4096 + s*1024}")
    for i in range(64): e(f"v_mov_b32 v{vO+i}, 0")
    for qt in range(2):
        e(f"v_mov_b32 v{vM+qt}, 0xff7fffff"); e(f"v_mov_b32 v{vLs+qt}, 0")
    e(f"s_mov_b32 {sKO}, 0"); e(f"s_mov_b32 {sLOOP}, 0")
    e("L_sl:")
    e("s_waitcnt lgkmcnt(0)")
    e(f"s_bitcmp1_b32 {sLOOP}, 0")
    e("s_cbranch_scc1 L_sl2")
    e("s_barrier")
    for srdn, base, regs in ((SK, 0, [vKD + n for n in range(4)]), (SV, VBASE, [vVD + (n & 1) for n in range(4)])):
        e(f"s_add_u32 m0, {sW4K}, {base}")
        for n in range(4): e(f"buffer_load_dwordx4 v{regs[n]}, {srdn}, {sKO} offen offset:{1024*n} lds")
    e(f"s_sub_u32 {sKO}, {sKO}, {sMASK}"); e(f"s_and_b32 {sKO}, {sKO}, {sMASK}")
    e("s_waitcnt vmcnt(0)")
    e("s_barrier")
    e("L_sl2:")
    for kt in range(2):
        for s in range(4): e(f"ds_read_b128 {ar(aKF + (kt*4+s)*4)}, v{vKA+s} offset:{kt*4096}")
    for dt in range(8):
        for u in range(2): e(f"ds_read_b64_tr_b16 {ar(aVF + dt*4 + 2*u, 2)}, v{vVA+dt} offset:{u*4096}")
    for r in range(vKA, vKA + 12): e(f"v_xor_b32 v{r}, 0x2000, v{r}")
    for qt in range(2):
        for kt in range(2):
            d = vr(vS + kt * 4)
            for s in range(4): e(f"{MF} {d}, {ar(aKF + (kt*4+s)*4)}, {Qreg(qt, s)}, {'0' if s == 0 else d}")
        e(f"v_max3_f32 v{vX}, v{vS}, v{vS+1}, v{vM+qt}")
        for j in (2, 4, 6): e(f"v_max3_f32 v{vX}, v{vS+j}, v{vS+j+1}, v{vX}")
        for op in ("v_permlane32_swap_b32", "v_permlane16_swap_b32"):
            e(f"v_mov_b32 v{vX+1}, v{vX}"); e(f"{op} v{vX}, v{vX+1}"); e(f"v_max_f32 v{vX}, v{vX}, v{vX+1}")
        e(f"v_sub_f32 v{vA}, v{vM+qt}, v{vX}"); e(f"v_exp_f32 v{vA}, v{vA}"); e(f"v_mov_b32 v{vM+qt}, v{vX}")
        e(f"v_mul_f32 v{vLs+qt}, v{vA}, v{vLs+qt}")
        for j in range(8): e(f"v_sub_f32 v{vS+j}, v{vS+j}, v{vX}")
        for j in range(8): e(f"v_exp_f32 v{vS+j}, v{vS+j}")
        for j in range(8): e(f"v_add_f32 v{vLs+qt}, v{vLs+qt}, v{vS+j}")
        for j in range(4): e(f"v_cvt_pk_bf16_f32 v{vP+j}, v{vS+2*j}, v{vS+2*j+1}")
        for i in range(32): e(f"v_mul_f32 v{vO+32*qt+i}, v{vA}, v{vO+32*qt+i}")
        for dt in range(8):
            o = vr(vO + (qt * 8 + dt) * 4)
            e(f"{MF} {o}, {ar(aVF + dt*4)}, {vr(vP)}, {o}")
    e(f"s_add_u32 {sLOOP}, {sLOOP}, 1")
    e(f"s_cmp_lt_u32 {sLOOP}, 64")
    e("s_nop 7")
    e("s_cbranch_scc1 L_sl")
    for qt in range(2):
        for op in ("v_permlane32_swap_b32", "v_permlane16_swap_b32"):
            e(f"v_mov_b32 v{vX+1}, v{vLs+qt}"); e(f"{op} v{vLs+qt}, v{vX+1}"); e(f"v_add_f32 v{vLs+qt}, v{vLs+qt}, v{vX+1}")
    for r in list(range(vL, vL + 10)) + list(range(vL1, vL1 + 4)): e(f"v_mov_b32 v{r}, 0")
    e(f"v_mov_b32 v{vL}, v{vLs}"); e(f"v_mov_b32 v{vL1}, v{vLs+1}")
    for l in norm_head(0): e(l)
    for s in range(4):
        V, wr = norm_frag(cfg, 0, s, True)
        for l in V + [wr.split(' ; ')[0]]: e(l)
    W = cfg.wo_pre
    strip = lambda X: [x.split(' ; ')[0] for x in X]
    e("s_barrier")
    for i in range(4):
        for l in strip(flat(wo_dma(cfg, i, W[i]))): e(l)
    e("s_waitcnt vmcnt(0)"); e("s_barrier")
    for l in strip(a_reads(0, W) + a_reads(1, W)): e(l)
    e("s_waitcnt lgkmcnt(0)"); e("s_barrier")
    for i in range(4, len(W)):
        for l in strip(flat(wo_dma(cfg, i, W[i]))): e(l)
    e("s_waitcnt vmcnt(0)")
    e("s_nop 7")
    e("s_branch L_norm")
    L = finish(L)
    return ["L_fail:", f"s_cmp_eq_u32 {sMODE}, 0", "s_cbranch_scc0 L_fail_b", f"s_mov_b32 {sMODE}, 1",
            "s_waitcnt vmcnt(0) lgkmcnt(0)", "s_barrier", "s_nop 7", "s_branch L_top"] + L

def diag_dump(e, cfg):
    if not cfg.diag: return
    e("s_waitcnt vmcnt(0)")
    stamp(e, cfg, 7)
    if cfg.spin >= 0:
        e(f"s_sub_u32 s3, s{70+2*cfg.spin}, s{70+2*cfg.spin0}")
        e(f"s_mul_i32 s3, s3, {cfg.spinmul}")
        e("s_min_u32 s3, s3, 20000")
        e("L_spin:")
        e("s_memrealtime s[62:63]")
        e("s_waitcnt lgkmcnt(0)")
        e("s_sub_u32 s62, s62, s84")
        e("s_cmp_lt_u32 s62, s3")
        e("s_cbranch_scc1 L_spin")
        return
    e("s_lshl_b32 s3, s2, 2"); e(f"s_add_u32 s3, s3, {sW}"); e("s_lshl_b32 s3, s3, 7")
    e("s_add_u32 s3, s3, 0x8000000")
    e("v_mov_b32 v3, s3")
    if cfg.diag >= 2:
        e("s_lshl_b32 s62, s2, 2"); e(f"s_add_u32 s62, s62, {sW}"); e("s_lshl_b32 s62, s62, 9"); e("s_add_u32 s62, s62, 0x9000000")
        e(f"v_lshrrev_b32 v4, 2, v{vL16}")
        e(f"buffer_store_dword v126, v4, {SWS}, s62 offen")
        e(f"buffer_store_dword v127, v4, {SWS}, s62 offen offset:256")
    for k in range(11):
        e(f"v_mov_b32 v4, s{70+2*k}")
        e(f"buffer_store_dword v4, v3, {SWS}, 0 offen offset:{4*k}")
        e(f"v_mov_b32 v5, s{71+2*k}")
        e(f"buffer_store_dword v5, v3, {SWS}, 0 offen offset:{64+4*k}")

def roll(L):
    idx = [i for i, x in enumerate(L) if x.startswith('.iter')]
    if not idx: return L
    name = L[idx[0]].split()[1]
    strip = lambda X: [x.split(' ; ')[0].rstrip() for x in X]
    body = strip(L[idx[0] + 1: idx[1]])
    for a, b in zip(idx[1:-1], idx[2:]):
        other = strip(L[a + 1:b])
        assert len(other) == len(body)
        for k, (x, y) in enumerate(zip(body, other)):
            if x == y: continue
            assert x.startswith('s_waitcnt') and re.sub(r'\d+', '', x) == re.sub(r'\d+', '', y), (x, y)
            m = iter(min(int(p), int(q)) for p, q in zip(re.findall(r'\d+', x), re.findall(r'\d+', y)))
            body[k] = re.sub(r'\d+', lambda _: str(next(m)), x)
    return L[:idx[0]] + [".iter", name + ":"] + body + L[idx[-1] + 1:]

def finish(L, step=0, nchain=1):
    L = [(x.split()[1] + ":") if x.startswith('@label') else x.replace('@iter', '.iter').replace('v_nop_pad', 's_nop 3') for x in L]
    keep = {}; on = True; M = []
    for x in L:
        if x == '@noauto': on = False
        elif x == '@auto': on = True
        elif not on and x.startswith('buffer_load'):
            keep[f"buffer_wbl2 K{len(keep)}"] = x; M.append(f"buffer_wbl2 K{len(keep)-1}")
        else: M.append(x)
    L = M
    errs = frag_check(L)
    assert not errs, errs[:5]
    L = auto_wait(L)
    L, nn = hazard.fix(L)
    errs = hazard.check(L, verbose=('-v' in sys.argv))
    assert not errs, errs[:5]
    errs = lds_check(L)
    assert not errs, errs[:5]
    L = roll([keep.get(x, x) for x in L])
    L, bad = align.align8(L, promote=('noal' not in sys.argv), step=step, nchain=nchain)
    if '-v' in sys.argv: print("auto nops", nn, "misaligned", bad, "pads", align.align8.npads)
    return [x for x in L if x != '.iter']

def gen(cfg):
    L = []; e = L.append
    ool = []
    prologue(e, cfg)
    qproj(e, cfg)
    stamp(e, cfg, 1)
    wo = attention(e, cfg, ool)
    stamp(e, cfg, 2)
    oproj(e, cfg, *wo)
    diag_dump(e, cfg)
    e("L_end:")
    e("s_endpgm")
    L = finish(L, cfg.wstep, cfg.wch)
    L += ["L_last:"]
    size = sum(align.size(x) for x in L)
    L += ool + slow_path(cfg)
    if '-v' in sys.argv: print("code bytes", size)
    assert size < 32768 or cfg.diag or not cfg.roll
    fmt = lambda X: "\n".join((x if x.endswith(':') else "  " + x.split(' ; ')[0].rstrip()) for x in X) + "\n"
    s = header(["@launch grid=(256,1,1) block=(256,1,1) lds=163840"])
    s += kernel_begin(KNAME) + fmt(L)
    s += rodata([descriptor(KNAME)])
    return s

if __name__ == "__main__":
    out = sys.argv[1]
    kw = {}
    for a in sys.argv[2:]:
        if '=' in a:
            k, v = a.split('=', 1)
            kw[k] = int(v) if v.lstrip('-').isdigit() else v.replace('+', ' ')
    open(out, "w").write(gen(Cfg(**kw)))
```

```python
import re

REG = re.compile(r'^(-?)(?:abs\()?([vas])(?:(\d+)|\[(\d+):(\d+)\])\)?$')

def regs(tok):
    tok = tok.strip()
    m = REG.match(tok)
    if m:
        k = m.group(2)
        if m.group(3) is not None:
            return [(k, int(m.group(3)))]
        return [(k, i) for i in range(int(m.group(4)), int(m.group(5)) + 1)]
    if tok == 'vcc':
        return [('s', 'vcc')]
    if tok == 'm0':
        return [('s', 'm0')]
    if tok == 'exec':
        return [('s', 'exec')]
    return []

TRANS = ('v_exp_f32', 'v_log_f32', 'v_rcp_f32', 'v_rsq_f32', 'v_sqrt_f32')

class I:
    def __init__(self, text):
        self.text = text
        t = text.split(';')[0].strip()
        self.label = t.endswith(':')
        parts = t.split(None, 1)
        self.op = parts[0] if parts else ''
        rest = parts[1] if len(parts) > 1 else ''
        rest = re.sub(r'op_sel(_hi)?:\[[^\]]*\]', '', rest)
        ops = [o.strip() for o in rest.split(',')] if rest else []
        self.mods = ''
        if ops:
            sp = ops[-1].split(None, 1)
            ops[-1] = sp[0]
            self.mods = sp[1] if len(sp) > 1 else ''
        self.ops = ops
        op = self.op
        self.kind = 'other'
        self.w = []; self.r = []
        self.srcc = []; self.ab = []
        R = lambda i: regs(ops[i]) if i < len(ops) else []
        if op.startswith('v_mfma'):
            self.kind = 'mfma'
            self.w = R(0); self.ab = R(1) + R(2); self.srcc = R(3); self.r = self.ab + self.srcc
            self.passes = 8 if '32x32x16' in op else 4
        elif op.startswith('v_smfmac'):
            self.kind = 'mfma'
            self.w = R(0); self.ab = R(1) + R(2) + R(3); self.srcc = R(0); self.r = self.ab + self.srcc
            self.passes = 4
        elif op.startswith('v_'):
            self.kind = 'valu'
            if op.startswith('v_permlane32_swap') or op.startswith('v_permlane16_swap') or op.startswith('v_swap'):
                self.w = R(0) + R(1); self.r = R(0) + R(1)
            elif op.startswith('v_cmp'):
                self.w = R(0); self.r = R(1) + R(2)
            elif op.startswith('v_add_co') or op.startswith('v_addc_co'):
                self.w = R(0) + R(1); self.r = sum((R(i) for i in range(2, len(ops))), [])
            elif op == 'v_nop':
                pass
            else:
                self.w = R(0); self.r = sum((R(i) for i in range(1, len(ops))), [])
                if op.startswith('v_fmac') or op.startswith('v_dot2c') or 'UNUSED_PRESERVE' in self.mods or op.startswith('v_writelane'):
                    self.r += R(0)
        elif op.startswith('ds_read') or op.startswith('ds_bpermute'):
            self.kind = 'ds'; self.w = R(0); self.r = sum((R(i) for i in range(1, len(ops))), [])
        elif op.startswith('ds_write') or op.startswith('ds_add') or op.startswith('ds_or') or op.startswith('ds_max'):
            self.kind = 'ds'; self.r = sum((R(i) for i in range(len(ops))), [])
        elif op.startswith('buffer_load'):
            self.kind = 'vmem'
            if 'lds' in self.mods.split():
                self.r = sum((R(i) for i in range(len(ops))), []) + [('s', 'm0')]
                self.dma = True
            else:
                self.w = R(0); self.r = sum((R(i) for i in range(1, len(ops))), [])
        elif op.startswith('buffer_store'):
            self.kind = 'vmem'; self.r = sum((R(i) for i in range(len(ops))), [])
            self.sdata = R(0)
        elif op.startswith('buffer_atomic'):
            self.kind = 'vmem'; self.r = sum((R(i) for i in range(len(ops))), [])
            if 'sc0' in self.mods.split(): self.w = R(0)
        elif op in ('buffer_wbl2', 'buffer_inv'):
            self.kind = 'vmem'
        elif op.startswith('s_load') or op.startswith('s_memtime') or op.startswith('s_memrealtime'):
            self.kind = 'smem'; self.w = R(0); self.r = sum((R(i) for i in range(1, len(ops))), [])
        elif op == 's_waitcnt':
            self.kind = 'wait'
            self.vm = self.lg = None
            m = re.search(r'vmcnt\((\d+)\)', t)
            if m: self.vm = int(m.group(1))
            m = re.search(r'lgkmcnt\((\d+)\)', t)
            if m: self.lg = int(m.group(1))
        elif op == 's_nop':
            self.kind = 'nop'
        elif op.startswith('s_cmp') or op.startswith('s_bitcmp') or op.startswith('s_cbranch') or op in ('s_branch', 's_barrier', 's_endpgm', 's_setprio', 's_sleep'):
            self.kind = 'salu'; self.r = sum((R(i) for i in range(len(ops))), [])
            if 'vcc' in op: self.r.append(('s', 'vcc'))
        elif op.startswith('s_'):
            self.kind = 'salu'; self.w = R(0); self.r = sum((R(i) for i in range(1, len(ops))), [])
            if op.startswith('s_bitset'): self.r += R(0)
            if 'saveexec' in op:
                self.w += [('s', 'exec')]
        self.states = (int(ops[0], 0) + 1) if op == 's_nop' else 1

def fix(lines):
    lines = list(lines); total = 0
    while True:
        fx = {}
        check(lines, verbose=False, fixes=fx)
        if not fx: return lines, total
        done = []
        for li in sorted(fx):
            if done and li - done[-1] < 16: continue
            done.append(li)
        for li in reversed(done):
            lines.insert(li, f"s_nop {fx[li]-1} ; autonop"); total += 1

def check(lines, verbose=True, fixes=None):
    ins = []
    for li, l in enumerate(lines):
        t = l.split(';')[0].strip()
        if t and not t.startswith('.') and not t.endswith(':'):
            x = I(l); x.li = li; ins.append(x)
    errs = []
    pos = 0
    P = []
    for i in ins:
        P.append(pos); pos += i.states
    last = {}
    lgq = []; vmq = []
    def dist(a, b):
        return P[b] - P[a] - ins[a].states
    def need(cls, reg, n, idx, why):
        a = last.get((cls, reg))
        if a is not None and dist(a, idx) < n:
            if fixes is not None: fixes[ins[idx].li] = max(fixes.get(ins[idx].li, 0), n - dist(a, idx))
            errs.append(f"[{why}] need {n} got {dist(a, idx)}: '{ins[a].text.strip()}' -> '{ins[idx].text.strip()}' (#{idx})")
    for idx, i in enumerate(ins):
        touched = set(i.r) | set(i.w)
        for q, nm in ((lgq, 'lgkm'), (vmq, 'vm')):
            for (a, ws) in q:
                if ws & touched:
                    errs.append(f"[{nm}cnt] unwaited '{ins[a].text.strip()}' -> '{i.text.strip()}' (#{idx})")
        if i.kind == 'wait':
            if i.lg is not None:
                sm = [x for x in lgq if ins[x[0]].kind == 'smem'] if i.lg else []
                ds = [x for x in lgq if ins[x[0]].kind != 'smem']
                lgq[:] = sm + (ds[len(ds) - i.lg:] if 0 < i.lg < len(ds) else ds if i.lg else [])
            if i.vm is not None:
                while len(vmq) > i.vm: vmq.pop(0)
        if i.kind in ('ds', 'smem'):
            lgq.append((idx, set(i.w)))
            if len(lgq) > 15 and False:
                errs.append(f"[lgkm overflow] at #{idx} {i.text.strip()}")
        if i.kind == 'vmem':
            vmq.append((idx, set(i.w)))
            if len(vmq) > 63:
                errs.append(f"[vm overflow] at #{idx} {i.text.strip()}")
        if i.kind == 'mfma':
            for r in i.r: need('valu_w', r, 2, idx, 'valu->mfma')
            for r in i.ab:
                a = last.get(('mfma_w', r))
                if a is not None: need('mfma_w', r, 12 if ins[a].passes == 8 else 8, idx, 'mfma D->AB')
            for r in i.srcc:
                a = last.get(('mfma_w', r))
                if a is not None and not (ins[a].w == i.srcc and ins[a].passes == i.passes):
                    need('mfma_w', r, 10 if ins[a].passes == 8 else 6, idx, 'mfma D->C overlap')
            if i.srcc != i.w:
                for r in i.w:
                    a = last.get(('mfma_w', r))
                    if a is not None: need('mfma_w', r, 10 if ins[a].passes == 8 else 6, idx, 'mfma WAW')
        if i.kind in ('valu', 'ds', 'vmem'):
            for r in set(i.r) | set(i.w):
                a = last.get(('mfma_w', r))
                if a is not None: need('mfma_w', r, 12 if ins[a].passes == 8 else 8, idx, 'mfma D->use')
            for r in i.w:
                a = last.get(('mfma_c', r))
                if a is not None: need('mfma_c', r, 7 if ins[a].passes == 8 else 3, idx, 'mfma C WAR')
                need('store_d', r, 2, idx, 'store data WAR')
        if i.kind == 'valu':
            if i.op.split('_e')[0] not in TRANS and not any(i.op.startswith(t) for t in TRANS):
                for r in i.r: need('trans_w', r, 1, idx, 'trans->valu')
            if i.op.startswith('v_permlane') or 'dpp' in i.op or 'row_' in i.mods or 'quad_perm' in i.mods:
                for r in i.r: need('valu_w', r, 2, idx, 'valu->permlane/dpp')
            if i.op.startswith('v_readfirstlane') or i.op.startswith('v_readlane'):
                for r in i.r: need('valu_w', r, 1, idx, 'valu->readlane')
            for r in i.r:
                if r[0] == 's': need('valu_w', r, 2, idx, 'valu sgpr->valu')
            for r in i.r: need('sdwa_w', r, 1, idx, 'sdwa/opsel->valu')
        if i.kind in ('ds', 'vmem'):
            for r in i.r: need('trans_w', r, 1, idx, 'trans->mem')
        if i.kind == 'vmem':
            for r in i.r:
                if r[0] == 's': need('valu_w', r, 5, idx, 'valu sgpr->vmem')
            if getattr(i, 'dma', False): need('salu_w', ('s', 'm0'), 1, idx, 'm0->dma')
        if i.kind in ('salu', 'smem'):
            for r in i.r:
                if r[0] == 's': need('valu_w', r, 1, idx, 'valu sgpr->salu(paranoid)')
        if i.kind == 'mfma':
            for r in i.w: last[('mfma_w', r)] = idx; last.pop(('valu_w', r), None)
            for r in i.srcc: last[('mfma_c', r)] = idx
        elif i.kind == 'valu':
            for r in i.w:
                last[('valu_w', r)] = idx
                last.pop(('trans_w', r), None)
                if any(i.op.startswith(t) for t in TRANS): last[('trans_w', r)] = idx
                if 'dst_sel:WORD' in i.mods or 'dst_sel:BYTE' in i.mods: last[('sdwa_w', r)] = idx
        elif i.kind == 'salu':
            for r in i.w: last[('salu_w', r)] = idx; last.pop(('valu_w', r), None)
        if i.kind == 'vmem' and hasattr(i, 'sdata') and len(i.sdata) >= 3:
            for r in i.sdata: last[('store_d', r)] = idx
    if verbose:
        for e in errs[:8]: print("HAZARD", e)
        print(f"hazard check: {len(ins)} instrs, {len(errs)} problems")
    return errs
```

```python
import re
from hazard import I

def rank(x):
    if x.startswith('s_') or x.startswith('@'): return 0
    if x.startswith('ds_') or x.startswith('buffer'): return 1
    return 2
def cost(x):
    r = rank(x)
    if r == 0: return 0
    if x.startswith('v_exp') or x.startswith('v_rcp') or x.startswith('v_permlane'): return 2
    return 1

class Stream:
    def __init__(self, cap=2):
        self.mf = []; self.fill = []; self.used = []; self.cap = cap; self.late = set(); self.block = set(); self.wsh = 0
    def add(self, m):
        self.mf.append(m); self.fill.append([]); self.used.append(0); return len(self.mf) - 1
    def n(self): return len(self.mf)
    def force(self, g, x):
        if x.startswith('ds_write_b128'): self.block.update(range(g, g + self.wsh))
        self.fill[g].append(x); self.used[g] += cost(x); return g
    def room(self, g, x, strict):
        c = cost(x); r = rank(x)
        if r == 0: return not any(rank(y) == 0 for y in self.fill[g])
        if r == 1 and g in self.block: return False
        if self.used[g] + c > self.cap: return False
        if strict and r == 1 and any(rank(y) == 1 for y in self.fill[g]): return False
        return True
    def put(self, g, x, maxg=None):
        n = self.n()
        if maxg is None or maxg > n - 1: maxg = n - 1
        g = min(max(g, 0), maxg)
        for strict in (True, False):
            for gg in range(g, maxg + 1):
                if self.room(gg, x, strict): return self.force(gg, x)
        gg = min(range(g, maxg + 1), key=lambda t: (self.used[t], t))
        return self.force(gg, x)
    def spread(self, items, g0, g1):
        g1 = min(g1, self.n() - 1)
        free = []
        for g in range(g0, g1 + 1):
            k = self.cap - self.used[g] if g not in self.block else 0
            hasmem = any(rank(y) == 1 for y in self.fill[g])
            for j in range(k): free.append((g, j + (1 if hasmem else 0)))
        first = [g for g, j in free if j == 0]
        second = [g for g, j in free if j > 0]
        m = len(items)
        if m <= len(first):
            ch = [first[(i * len(first)) // m] for i in range(m)]
        else:
            need = m - len(first)
            if need <= len(second):
                ex = [second[(i * len(second)) // need] for i in range(need)]
            else:
                ex = list(second)
                rest = need - len(second)
                cand = first if first else list(range(g0, g1 + 1))
                ex += [cand[((2 * i + 1) * len(cand)) // (2 * rest)] for i in range(rest)]
            ch = sorted(first + ex)
        for g, x in zip(ch, items): self.force(g, x)
        return ch
    def spreadc(self, items, g0, g1, lo=None, hi=None, win=4):
        m = len(items); prev = g0; ch = []
        n = self.n()
        for i, x in enumerate(items):
            t = g0 + (i * (g1 - g0 + 1)) // m
            a = max(prev, lo[i] if lo else 0, t - 1, g0)
            b = min(max(a, t) + win, n - 1)
            if hi: b = max(a, min(b, hi[i]))
            g = None
            for strict in (True, False):
                for gg in range(a, (min(b, a + 2) if strict else b) + 1):
                    if self.room(gg, x, strict): g = gg; break
                if g is not None: break
            if g is None:
                isexp = lambda t: any(cost(y) == 2 for y in self.fill[t])
                g = min(range(a, b + 1), key=lambda t: (self.used[t] + (1 if isexp(t) else 0) + (9 if t in self.block else 0), t))
            self.force(g, x); ch.append(g); prev = g
        return ch
    def lines(self):
        out = []
        for g, (m, f) in enumerate(zip(self.mf, self.fill)):
            if m: out.append(m)
            key = rank if g not in self.late else (lambda x: 3 if x.startswith('ds_read') else rank(x))
            for x in sorted(f, key=key): out += x.split('\n')
        return out

def tag_of(line, key):
    m = re.search(key + r'=([\w,]+)', line.split(';', 1)[1]) if ';' in line else None
    return m.group(1).split(',') if m else []

def auto_wait(lines, age=9):
    out = []
    lgq = []; vmq = []; smq = []
    last_mfma = -1
    nmf = 0
    def setwait(kind, n, pos):
        txt = f"s_waitcnt {kind}({n})"
        if pos < len(out) and out[pos].startswith('s_waitcnt') and kind not in out[pos] and 'auto' in out[pos]:
            out[pos] = out[pos].split(';')[0].strip() + f" {kind}({n}) ; auto"
            return False
        if pos < len(out) and out[pos].startswith('s_waitcnt') and kind in out[pos] and 'auto' in out[pos]:
            old = int(re.search(kind + r'\((\d+)\)', out[pos]).group(1))
            out[pos] = re.sub(kind + r'\(\d+\)', f"{kind}({min(old, n)})", out[pos])
            return False
        out.insert(pos, txt + " ; auto")
        return True
    for l in lines:
        t = l.split(';')[0].strip()
        if t.startswith('@vmwait'):
            p = t.split()
            tags = set(p[1].split(','))
            idx = max([k for k, e in enumerate(vmq) if e[1] & tags], default=-1)
            s = ""
            if idx >= 0:
                n = len(vmq) - 1 - idx
                assert n <= 63
                s += f" vmcnt({n})"; del vmq[:idx + 1]
            if len(p) > 2 and p[2] == 'lgkm0':
                s += " lgkmcnt(0)"; lgq.clear(); smq.clear()
            elif len(p) > 2 and p[2].startswith('rd:'):
                rt = set(p[2][3:].split(','))
                idx = max([k for k, e in enumerate(lgq) if e[1] & rt], default=-1)
                if idx >= 0:
                    n = min(len(lgq) - 1 - idx, 15)
                    s += f" lgkmcnt({n})"; del lgq[:len(lgq) - n]
                    if n == 0: smq.clear()
            if s: out.append("s_waitcnt" + s + f" ; for {p[1]}")
            continue
        if not t or t.endswith(':') or t.startswith('.'):
            out.append(l); continue
        i = I(l)
        touched = set(i.r) | set(i.w)
        if any(e[0] & touched for e in smq):
            setwait('lgkmcnt', 0, len(out)); lgq.clear(); smq.clear()
        for q, kind, mx in ((lgq, 'lgkmcnt', 15), (vmq, 'vmcnt', 63)):
            idx = max([k for k, e in enumerate(q) if e[0] & touched], default=-1)
            if idx < 0: continue
            if kind == 'lgkmcnt':
                while idx + 1 < len(q) and nmf - q[idx + 1][4] >= age: idx += 1
            pos = len(out); n = len(q) - 1 - idx
            if i.kind == 'mfma' and last_mfma >= 0 and q[idx][3] < last_mfma:
                later = sum(1 for e in q if e[3] > last_mfma)
                pos = last_mfma + 1; n = n - later
            n = min(n, mx)
            ins = setwait(kind, n, pos)
            if ins:
                for e in lgq + vmq:
                    if e[3] >= pos: e[3] += 1
            before = [e for e in q if e[3] < pos]
            keep = before[len(before) - n:] if n > 0 else []
            q[:] = keep + [e for e in q if e[3] > pos]
        if i.kind == 'wait':
            if i.lg is not None:
                while len(lgq) > i.lg: lgq.pop(0)
                if i.lg == 0: smq.clear()
            if i.vm is not None:
                while len(vmq) > i.vm: vmq.pop(0)
        out.append(l)
        if i.kind == 'ds': lgq.append([set(i.w), set(tag_of(l, 'rd')), False, len(out) - 1, nmf])
        if i.kind == 'smem': smq.append([set(i.w)])
        if i.kind == 'vmem': vmq.append([set(i.w), set(tag_of(l, 'tag')), False, len(out) - 1, nmf])
        if i.kind == 'mfma': last_mfma = len(out) - 1; nmf += 1
    return out

def lds_check(lines):
    errs = []
    lgq = []; vmq = []
    content = {}
    wr_state = {}
    rd_state = {}
    dead = set()
    def upd():
        fl = {t for q in (vmq, lgq) for k, t in q if k == 'w'}
        for c in wr_state:
            if wr_state[c] == 'flight' and c not in fl: wr_state[c] = 'landed'
        fl = {t for k, t in lgq if k == 'r'}
        for c in rd_state:
            if rd_state[c] == 'flight' and c not in fl: rd_state[c] = 'done'
    for l in lines:
        t = l.split(';')[0].strip()
        if not t or t.endswith(':') or t.startswith('.'): continue
        i = I(l)
        priv = ' priv' in l
        tag = tag_of(l, 'tag'); loc = tag_of(l, 'loc'); rd = tag_of(l, 'rd')
        if i.kind == 'wait':
            if i.lg is not None:
                while len(lgq) > i.lg: lgq.pop(0)
            if i.vm is not None:
                while len(vmq) > i.vm: vmq.pop(0)
            upd()
        elif i.op == 's_barrier':
            for c in wr_state:
                if wr_state[c] == 'landed': wr_state[c] = 'visible'
            for c in rd_state:
                if rd_state[c] == 'done': rd_state[c] = 'released'
        if loc:
            c = tag[0]
            for L in loc:
                old = content.get(L)
                if old is not None and old != c:
                    s = rd_state.get(old)
                    ok = s == 'released' or (s == 'done' and (old.startswith('p') or ' own' in l)) or s is None
                    if not ok: errs.append(f"WAR {old} ({s}) overwritten by {l.strip()}")
                    dead.add(old)
                content[L] = c
            wr_state[c] = 'flight'
        if rd:
            c = rd[0]
            s = wr_state.get(c)
            if c in dead: errs.append(f"read of overwritten {c}: {l.strip()}")
            if not (s == 'visible' or (c.startswith('p') and s == 'landed')): errs.append(f"RAW {c} ({s}) read by {l.strip()}")
            rd_state[c] = 'flight'
        if i.kind == 'ds': lgq.append(('r', rd[0]) if rd else ('w', tag[0]) if loc else ('x', None))
        if i.kind == 'vmem': vmq.append(('w', tag[0]) if loc else ('x', None))
    return errs

def frag_check(lines):
    from hazard import regs
    cur = {}; errs = []
    for l in lines:
        t = l.split(';')[0].strip()
        if not t or t.endswith(':') or t.startswith('.') or t.startswith('@'): continue
        i = I(l)
        use = tag_of(l, 'use')
        for k, u in enumerate(use):
            if u == '_': continue
            for r in regs(i.ops[1 + k]):
                if cur.get(r) != u: errs.append(f"{l.strip()} : {r} holds {cur.get(r)}"); break
        d = tag_of(l, 'def')
        for r in i.w: cur[r] = d[0] if d else None
    return errs
```

```python
import sys, struct, re
from gen_common import *
import hazard, align
from sched import Stream, auto_wait, lds_check, frag_check

MF = "v_mfma_f32_16x16x32_bf16"
def f2u(x): return struct.unpack('<I', struct.pack('<f', x))[0]
QSCALE = f2u(1.4426950408889634 * 128 ** -0.5)
def vr(a, n=4): return f"v[{a}:{a+n-1}]"
def ar(a, n=4): return f"a[{a}:{a+n-1}]"

SX, SK, SV, SWQ, SWO, SWS, SOUT, SDBG = (f"s[{i}:{i+3}]" for i in (4, 8, 12, 16, 20, 24, 28, 32))
sHKV, sP, sB, sBR, sW, sW4K, sROT = "s36", "s37", "s38", "s39", "s40", "s41", "s42"
sKO, sVO, sT0, sT1, sT2, sJ0, sJ1, sGRP, sMEM = "s43", "s44", "s45", "s46", "s47", "s58", "s59", "s60", "s61"
sT3, sT4 = "s62", "s63"
sXO, sXI, sWOB, sPST = "s48", "s49", "s50", "s51"
sWC = 52
sCNT = "s56"
vKA, vVA, vKD, vVD = 4, 8, 16, 20
vL16, vI15, vG = 22, 23, 24
vFD, vFP, vFL, vFQ = 28, 29, 30, 31
vS, vP, vCI, vQ, vO = 32, 48, 56, 72, 128
vT = 104
vGC, vPOLL, vLP, vONE1, vWD, vSEL = 72, 73, 74, 76, 80, 84
vWA = [116, 117, 118, 119, 124, 125]; vOUT = 79; sPLD = 's50'
vXA, vGA, vQR, vQW, vGW = 90, 94, 96, 98, 100
sKH, sHH, sSC, sSC2, sLOOP = "s58", "s59", "s68", "s[68:69]", "s48"
vL, vSA, vSA0, vSI = 104, 120, 77, 78
vPF, vPF2 = 31, 75; vL1 = 90; sSEL = 's37'; vOT = 74; vWT = 27; sWT = 's66'; vCK = 72; sMODE = 's101'; aSEN = 228; sCLR = 's67'; vFB = 29
sOLD1 = 's3'; sPA, sPB = 's66', 's67'
sMO, sOLD, sMK, sDONE, sGO, sGC, sOOB = 's92', 's93', 's94', 's95', 's64', 's65', 's66'
vPR = 99; aPR = 212; sMASK = "s57"
aQ, aKF, aVF, aL, aONE = 0, 64, 128, 192, 208
VBASE = 65536
FLAGB = 0x100000
OOB = 0x40000000
SPIN = 0x40000

class Cfg:
    NT = 32
    polkv = "nt"; polx = ""; polw = ""; polout = ""
    diag = False; spin = -1; spin0 = 0; spinmul = 1
    pf = 2; pft = 2; wosp = 2; wo0 = 8
    xmap = 1; rotg = 4; x1first = 0
    w1early = 1; qD = 14; qG = 6; qkv = 'K0|V0,K1|V1'
    krot = (9, 3, 20)
    soft = 0; soft0 = 1; l0 = 4
    wl = '2,2,2'; wx = 3; wt = 0; wtt = 0; wsh = 2; wn = 1; ops = '2,3,2'; T = 30; pst = 0
    f0 = 0; mode = 'M'; nclr = 3; qi = 'x0,w0'; qj = 'w1,x1'; qx = '1:x2,3:x3'; qA = 4; q7 = 0; q7r = 18; fin = 0; wstep = 4096; wch = 4; wpos = 0; bg = -1; bd = 1; xc = 3; xw = 4; xb = 4; nc = 3; nb = 4; nbd = 0; g1 = 22; g2 = 52; w2o = 44; w3 = 64; gy = 128; wa = 52; bo = 8; om = 'QHHH'; thr = 0; polv = None; ntf = 4; so = 5; ob = 0; qko = 0; pfpos = 0; qs = 'x0,a0|S1|S2|b0,w1,x1|R|W'; n1f = 1; rsm = 1; cap = 0; wb = '15,16'; home = 2; rf = 6; bk = 20; cu = 0; n2 = 0; w2 = 60; ps = 4; tch = 6; tout = 2; fb = 0; qm = 0; psp = 0; f0d = 64; tann = 1; n1 = 0; p2 = 1; pp = 4; f0p = -60
    padA = 0; padB = 0; padT = 4
    off = 6; fkv = 'K2,V2'; fden = 8; b0 = 24; polp = 'sc1'; omax = 8
    expoff = 8; rdend = 7; gc = 100; roll = 1; mk = 5; dmaalone = 1; smf = 1; psw = 1; cvtd = 0
    def __init__(self, **kw):
        self.__dict__.update(kw)
        if self.smf and 'expoff' not in kw: self.expoff = 7
        self.gA, self.gB, self.gS = kunit(self.NT - 1), vunit(self.NT - 1), vunit(self.NT - 2)
        self.wl = self.wl.split(','); self.wb = [int(x) for x in self.wb.split(',')]
        if isinstance(self.krot, str): self.krot = tuple(int(x) for x in self.krot.split(','))

def stamp_l(cfg, k):
    if k == 9: return []
    return [f"s_memrealtime s[{70+2*k}:{71+2*k}]", "s_memtime s[96:97]", "s_waitcnt lgkmcnt(0)", f"s_mov_b32 s{71+2*k}, s96"] if cfg.diag else []
def lstamp(idx, r=254):
    return ["s_memrealtime s[98:99]", "s_memtime s[96:97]", "s_waitcnt lgkmcnt(0)", f"v_writelane_b32 v{r}, s98, {idx}", f"v_writelane_b32 v{r+1}, s96, {idx}"]
def stamp(e, cfg, k):
    for l in stamp_l(cfg, k): e(l)
def spread(o): return (o & 0x1fff) | ((o >> 13) << 14)
def srd(e, base, size):
    n = int(base[2:base.index(':')])
    e(f"s_mov_b32 s{n+2}, {size}"); e(f"s_mov_b32 s{n+3}, 0x20000")

def code_prefetch(e, cfg):
    e("s_getpc_b64 s[88:89]")
    e("L_pf:")
    e("s_mov_b32 s90, L_last-L_pf"); e("s_mov_b32 s91, 0x20000")
    e(f"s_lshr_b32 {sT3}, s2, 3"); e(f"s_mul_i32 {sT3}, {sT3}, 1280")
    e("v_cmp_gt_u32 vcc, 10, v0")
    e(f"v_lshl_add_u32 v2, v0, 7, {sT3}")
    e(f"v_cndmask_b32 v{vPF}, 2.0, v2, vcc")
    e(f"buffer_load_dword v{vPF2}, v{vPF}, s[88:91], 0 offen")

def prologue(e, cfg):
    stamp(e, cfg, 0)
    e("s_cmp_ge_u32 s2, 256")
    e("s_cbranch_scc1 L_end")
    e(f"s_mov_b32 {sMODE}, 0")
    e("L_top:")
    if cfg.pfpos == -1: code_prefetch(e, cfg)
    e(f"s_bfe_u32 {sBR}, s2, 0x10002")
    e(f"s_mul_i32 {sT0}, {sBR}, 40")
    e(f"s_add_u32 s62, s0, {sT0}")
    e("s_addc_u32 s63, s1, 0")
    e("s_load_dwordx8 s[48:55], s[62:63], 0")
    e("s_load_dwordx2 s[56:57], s[62:63], 32")
    e("s_load_dwordx4 s[64:67], s[0:1], 80")
    e("s_load_dwordx2 s[24:25], s[0:1], 96")
    if cfg.pfpos == 0: code_prefetch(e, cfg)
    T = vT
    e(f"v_readfirstlane_b32 {sW}, v0")
    e(f"v_and_b32 v{vI15}, 15, v0")
    e(f"v_bfe_u32 v{vG}, v0, 4, 2")
    e(f"s_lshr_b32 {sB}, s2, 5")
    e(f"s_bfe_u32 {sT1}, s2, 0x20003")
    e(f"s_lshl_b32 {sW4K}, {sW}, 6")
    e(f"s_lshr_b32 {sW}, {sW}, 6")
    e(f"v_xor_b32 v3, v{vG}, v{vI15}")
    e(f"v_lshlrev_b32 v{vKD}, 4, v3")
    e(f"v_lshl_add_u32 v{T}, v{vG}, 10, v{vKD}")
    e(f"v_lshlrev_b32 v3, 1, v{vG}")
    e(f"v_xor_b32 v3, v3, v{vI15}")
    e(f"v_lshlrev_b32 v{vVD}, 4, v3")
    e(f"v_lshl_add_u32 v{T+8}, v{vG}, 13, v{vVD}")
    for n in range(1, 4):
        e(f"v_xor_b32 v3, {64*n}, v{T}"); e(f"v_add_u32 v{T+n}, {3072*n}, v3")
    e(f"v_xor_b32 v3, 0x80, v{T+8}")
    e(f"v_add_u32 v{T+9}, {65536-1024}, v3"); e(f"v_add_u32 v{T+10}, {2*(65536-1024)}, v{T+8}"); e(f"v_add_u32 v{T+11}, {3*(65536-1024)}, v3")
    e(f"s_add_u32 {sROT}, {sT1}, {sB}"); e(f"s_lshl_b32 {sROT}, {sROT}, {1 if cfg.rotg == 4 else 2}")
    e(f"s_and_b32 {sMEM}, s2, 3"); e(f"s_lshl2_add_u32 {sMEM}, {sMEM}, {sT1}")
    e(f"s_and_b32 {sKH}, {sW}, 1"); e(f"s_lshr_b32 {sHH}, {sW}, 1")
    e(f"s_lshl2_add_u32 {sT0}, {sB}, {sW}"); e(f"s_lshl_b32 {sT0}, {sT0}, 14")
    e(f"s_lshl3_add_u32 {sT2}, {sHH}, {sKH}"); e(f"s_lshl_b32 {sT2}, {sT2}, 6"); e(f"s_add_u32 {sT2}, {sT2}, {sMEM}"); e(f"s_lshl_b32 {sT1}, {sT2}, 9")
    srd(e, SX, 16384)
    e(f"s_sub_u32 s18, 4194304, {sT1}"); e("s_mov_b32 s19, 0x20000")
    e("s_waitcnt lgkmcnt(0)")
    stamp(e, cfg, 8)
    e(f"s_add_u32 s4, s48, {sT0}"); e("s_addc_u32 s5, s49, 0")
    e(f"s_add_u32 s16, s54, {sT1}"); e("s_addc_u32 s17, s55, 0")

def flags_setup(e, cfg):
    e(f"s_lshl_b32 {sT0}, {sGRP}, 14"); e(f"s_lshl_b32 {sT1}, {sGRP}, 22"); e(f"s_add_u32 {sT0}, {sT0}, {sT1}")
    e(f"s_add_u32 {sT0}, {sT0}, 0x202000")
    e(f"s_lshl_b32 {sT1}, {sMEM}, 9"); e(f"s_add_u32 {sT1}, {sT1}, {sT0}")
    e(f"s_lshl_b32 {sT3}, {sW}, 7"); e(f"s_add_u32 {sMO}, {sT3}, {sT1}")
    e(f"s_cmp_eq_u32 {sMODE}, 0")
    e("s_cbranch_scc0 L_old")
    e(f"s_xor_b32 {sSEL}, {sMO}, 0x2000")
    e(f"s_load_dword {sOLD}, s[24:25], {sMO} glc")
    e(f"s_load_dword {sOLD1}, s[24:25], {sSEL} glc")
    e(f"s_cmp_eq_u32 {sW}, 0")
    e("s_cbranch_scc0 L_old")
    e(f"s_lshl_b32 {sPA}, {sGRP}, 22"); e(f"s_mul_i32 {sPB}, {sMEM}, 0x8100"); e(f"s_add_u32 {sPA}, {sPA}, {sPB}"); e(f"s_xor_b32 {sPB}, {sPA}, 0x2000")
    e(f"s_load_dword {sMK}, s[24:25], {sPA} glc")
    e(f"s_load_dword {sGC}, s[24:25], {sPB} glc")
    e("L_old:")
    e(f"s_lshl_b32 {sT3}, {sW}, 11"); e(f"s_add_u32 {sT3}, {sT3}, {sT0}")
    e("v_cmp_gt_u32 vcc, 4, v27")
    e(f"v_lshl_add_u32 v3, v27, 9, {sT3}")
    e(f"v_cndmask_b32 v{vFD}, 2.0, v3, vcc")
    e(f"s_lshl_b32 {sT3}, {sW}, 2"); e(f"s_xor_b32 {sT3}, {sT3}, {sMEM}")
    e(f"v_xor_b32 v3, {sT3}, v27")
    e(f"v_lshlrev_b32 v{vFB}, v3, 1")

def prologue2(e, cfg):
    e(f"s_lshr_b32 {sHKV}, {sMEM}, 1")
    e(f"s_lshl3_add_u32 {sGRP}, {sBR}, {sB}")
    e("v_and_b32 v27, 63, v0")
    e(f"v_lshlrev_b32 v{vL16}, 4, v27")
    e("s_add_u32 s24, s24, 0x1fffff"); e("s_addc_u32 s25, s25, 0"); e("s_and_b32 s24, s24, 0xffe00000")
    srd(e, SWS, 268435456 - 0x200000)
    e(f"s_lshl_b32 {sT0}, {sB}, 3")
    e(f"s_add_u32 {sT0}, {sT0}, {sHKV}")
    e(f"s_lshl_b32 {sT0}, {sT0}, 19")
    e(f"s_add_u32 s8, s50, {sT0}"); e("s_addc_u32 s9, s51, 0"); srd(e, SK, 524288)
    e(f"s_add_u32 s12, s52, {sT0}"); e("s_addc_u32 s13, s53, 0"); srd(e, SV, 524288)
    e(f"s_lshl_b32 {sT0}, {sMEM}, 18")
    e(f"s_add_u32 s20, s56, {sT0}"); e("s_addc_u32 s21, s57, 0"); srd(e, SWO, 262144)
    e("s_mov_b32 s28, s64"); e("s_mov_b32 s29, s65"); srd(e, SOUT, 1048576)
    e("s_mov_b32 s32, s66"); e("s_mov_b32 s33, s67"); srd(e, SDBG, 256)
    if cfg.tch:
        e(f"s_lshl_b32 {sT0}, {sGRP}, 22"); e(f"s_add_u32 {sT1}, {sT0}, 0x300000")
        for k, (sr, so) in enumerate(((SK, 0), (SV, 0), (SWO, 0), (SWS, sT1))):
            e(f"buffer_load_dword v{vP+k}, off, {sr}, {so}")
    ch, cb, cr = cfg.krot
    e(f"s_mul_i32 {sKO}, {sHKV}, {ch}"); e(f"s_mul_i32 {sT0}, {sB}, {cb}"); e(f"s_add_u32 {sKO}, {sKO}, {sT0}")
    e(f"s_mul_i32 {sT0}, {sBR}, {cr}"); e(f"s_add_u32 {sKO}, {sKO}, {sT0}")
    tb = [k for k in range(12, 19) if k not in cfg.wb]
    e(f"s_mov_b32 {sMASK}, {hex(sum(1 << k for k in tb))}")
    runs = {}
    for i, k in enumerate(tb): runs.setdefault(k - i, []).append(k)
    for idx, (sh, ks) in enumerate(runs.items()):
        d = sVO if idx == 0 else sT0
        e(f"s_lshl_b32 {d}, {sKO}, {sh}"); e(f"s_and_b32 {d}, {d}, {hex(sum(1 << k for k in ks))}")
        if idx: e(f"s_or_b32 {sVO}, {sVO}, {sT0}")
    e(f"s_mov_b32 {sKO}, {sVO}")
    for c in range(4):
        e(f"s_add_u32 {sT0}, {sB}, {c}"); e(f"s_and_b32 {sT0}, {sT0}, 3"); e(f"s_lshl_b32 s{sWC+c}, {sT0}, 8")
    e(f"s_lshl_b32 {sT0}, {sKH}, {cfg.wb[0]}"); e(f"s_lshl_b32 {sT1}, {sHH}, {cfg.wb[1]}"); e(f"s_or_b32 {sT0}, {sT0}, {sT1}")
    e(f"s_lshl_b32 {sT1}, {sW}, 14")
    e(f"v_lshl_add_u32 v3, v{vG}, 10, {sT1}"); e(f"v_add_u32 v{vWD}, v3, v{vVD}")
    e(f"v_xor_b32 v3, 0x80, v{vWD}")
    e(f"v_add_u32 v{vWD+1}, 3072, v3"); e(f"v_add_u32 v{vWD+2}, 6144, v{vWD}"); e(f"v_add_u32 v{vWD+3}, 9216, v3")
    e(f"v_lshl_add_u32 v3, v{vG}, 8, {sT0}")
    e(f"v_add_u32 v{vKD}, v{vKD}, v3"); e(f"v_add_u32 v{vVD}, v{vVD}, v3")
    for n in range(1, 4): e(f"v_xor_b32 v{vKD+n}, {64*n}, v{vKD}")
    e(f"v_xor_b32 v{vVD+1}, 0x80, v{vVD}")
    e(f"v_xor_b32 v3, v{vG}, v{vI15}")
    e(f"v_lshlrev_b32 v25, 8, v{vI15}")
    for s in range(4):
        e(f"v_xor_b32 v26, {4*s}, v3")
        e(f"v_lshl_add_u32 v{vKA+s}, v26, 4, v25")
    e(f"v_lshrrev_b32 v3, 2, v{vI15}")
    e(f"v_lshl_add_u32 v3, v{vG}, 2, v3")
    e("v_and_b32 v25, 7, v3")
    e("v_lshlrev_b32 v3, 8, v3")
    e(f"v_and_b32 v26, 3, v{vI15}")
    e("v_lshl_add_u32 v3, v26, 3, v3")
    e(f"v_add_u32 v3, {VBASE}, v3")
    for dt in range(8):
        e(f"v_xor_b32 v26, {dt}, v25")
        e(f"v_lshl_add_u32 v{vVA+dt}, v26, 5, v3")

def x_dma(cfg, j):
    pre = [f"s_add_u32 {sT2}, {sROT}, {2*j}", f"s_and_b32 {sT2}, {sT2}, 7", f"s_lshl_b32 {sT2}, {sT2}, 7", f"s_add_u32 m0, {sW4K}, {j*16384}"]
    return [(pre if n == 0 else [], f"buffer_load_dwordx4 v{vT+n}, {SX}, {sT2} offen offset:{1024*n} {cfg.polx} lds") for n in range(4)]

def wq_dma(cfg, i, heads=(0, 1)):
    T = vT; G = []
    for hh in heads:
        for n in range(4):
            pre = []
            if n == 0:
                if hh == 0: pre += [f"s_add_u32 {sT4}, {sROT}, {i}", f"s_and_b32 {sT4}, {sT4}, 7", f"s_lshl_b32 {sT4}, {sT4}, 19"]
                else: pre += [f"s_add_u32 {sT4}, {sT4}, 256"]
                pre += [f"s_add_u32 m0, {sW4K}, {VBASE + hh*49152 + (i%3)*16384}"]
            G.append((pre, f"buffer_load_dwordx4 v{T+8+n}, {SWQ}, {sT4} offen offset:{1024*n} {cfg.polw} lds ; tag=W{i} loc=u{4 + hh*3 + i%3}"))
    return G

def kunit(t): return t & 3
def vunit(t): return 4 + ((t + 2) & 3)

def kv_dma(cfg, which, t):
    joint = cfg.off == 6 and t >= 3
    so = sKO if which == 'K' or joint else sVO
    u = kunit(t) if which == 'K' else vunit(t)
    pol = cfg.polkv if which == 'K' or cfg.polv is None else cfg.polv
    if t < cfg.ntf: pol = ''
    G = []
    for n in range(4):
        pre = []
        if n == 0:
            if t > 0 and not (joint and which == 'V'):
                pre.append(f"s_sub_u32 {so}, {so}, {sMASK}")
                pre.append(f"s_and_b32 {so}, {so}, {sMASK}")
            pre.append(f"s_add_u32 m0, {sW4K}, {u*16384}" if u else f"s_and_b32 m0, {sW4K}, 0xffff")
        v = vKD + n if which == 'K' else vVD + (n & 1)
        G.append((pre, f"buffer_load_dwordx4 v{v}, {SK if which == 'K' else SV}, {so} offen offset:{1024*n} {pol} lds"))
    return G

def wo_dma(cfg, i, u):
    G = []
    for n in range(4):
        pre = []
        if n == 0:
            pre.append(f"s_xor_b32 {sT4}, s{sWC + (i >> 2)}, {(i & 3) * 65536}")
            pre.append(f"s_add_u32 m0, {sW4K}, {u*16384}")
        G.append((pre, f"buffer_load_dwordx4 v{vWD+n}, {SWO}, {sT4} offen offset:{1024*n} {cfg.polw} lds ; tag=O{i} loc=u{u}" + (",g0,g1" if u == cfg.gA else ",ck" if u == cfg.gS else "")))
    return G

def flat(G):
    L = []
    for pre, d in G:
        L += pre; L.append(d)
    return L

def place_dma(st, G, g0, g1, alone=0):
    empty = [g for g in range(g0 + len(G[0][0]), g1 + 1) if st.used[g] == 0]
    if alone == 1 and len(empty) >= len(G):
        ch = [empty[(i * len(empty)) // len(G)] for i in range(len(G))]
        for (_, d), g in zip(G, ch):
            st.force(g, d); st.used[g] = 2
    elif alone == 2:
        a0 = g0 + len(G[0][0]); ch = []; m = len(G)
        for i, (_, d) in enumerate(G):
            lo = max(a0 + (i * (g1 - a0 + 1)) // m, ch[-1] + 1 if ch else 0); hi = max(lo, a0 + ((i + 1) * (g1 - a0 + 1)) // m - 1)
            gg = min(range(lo, hi + 1), key=lambda t: (st.used[t] + 2 * any(y.startswith('v_exp') for y in st.fill[t]) + 9 * (t in st.block), t))
            st.force(gg, d); ch.append(gg)
    else:
        ch = st.spread([d for _, d in G], g0 + len(G[0][0]), g1)
    prev = g0 - 1
    isexp = lambda t: any(y.startswith('v_exp') for y in st.fill[t])
    nos = lambda t: not any(y.startswith('s_') or y.startswith('@') for y in st.fill[t])
    for (pre, d), g in zip(G, ch):
        lo = max(prev + 1, g0)
        k = len(pre)
        assert not pre or g >= lo, (g, lo, pre)
        hi = max(lo, g - 1); pos = []
        for idx in range(k - 1, -1, -1):
            cand = [t for t in range(hi, lo + idx - 1, -1) if nos(t) and (align.size(pre[idx]) == 8 or isexp(t))]
            t = cand[0] if cand else min(max(lo, g - k + idx), hi)
            pos.append(t); hi = max(lo, t - 1)
        for s, t in zip(pre, reversed(pos)): st.force(t, s)
        prev = g
    return ch

def race(e, cfg, filler):
    e(f"s_or_b32 {sT0}, {sMODE}, {sW}")
    e("s_cbranch_scc1 L_norace")
    e("s_waitcnt lgkmcnt(0)")
    e(f"s_not_b32 {sDONE}, {sGC}")
    e("@noauto")
    e(f"s_load_dword {sMK}, s[24:25], {sPA} glc")
    e(f"s_load_dword {sDONE}, s[24:25], {sPB} glc")
    e("@auto")
    e("s_waitcnt lgkmcnt(1)")
    e("L_norace:")
    for l in filler: e(l)
    e(f"s_cmp_lg_u32 {sDONE}, {sGC}")
    if cfg.home < 2: e(f"s_cmp_eq_u32 {sBR}, {cfg.home}")
    e(f"s_cselect_b32 {sT0}, 1, 0x10001")
    e(f"v_mov_b32 v{vONE1}, {sT0}")

def apply_sel():
    return [f"s_xor_b32 {sMO}, {sMO}, {sSEL}", f"s_xor_b32 {sPST}, {sPST}, {sSEL}", f"v_xor_b32 v{vFD}, {sSEL}, v{vFD}", f"v_xor_b32 v{vFL}, {sSEL}, v{vFL}"]

def warm(e, cfg):
    e("s_mov_b64 exec, 0")
    for k in range(1, cfg.wch):
        e(f"s_cmp_eq_u32 {sW}, {k}")
        e(f"s_cbranch_scc1 L_w{k}")
    e("s_branch L_w0")
    e(".p2align 12")
    e("L_wdone:")
    e("s_mov_b64 exec, -1")

def qproj(e0, cfg):
    T = vT
    def xw(S):
        G = []
        for it in S.split(','):
            if it: G += x_dma(cfg, int(it[1])) if it[0] == 'x' else wq_dma(cfg, int(it[1]), {'w': (0, 1), 'a': (0,), 'b': (1,)}[it[0]])
        return G
    SU = []; e = SU.append
    if cfg.pfpos == 1: code_prefetch(e, cfg)
    prologue2(e, cfg)
    flags_setup(e, cfg)
    vX, vW = vXA, T + 16
    e(f"s_mul_i32 {sT1}, {sHH}, 49152"); e(f"s_lshl_b32 {sT0}, {sKH}, 7")
    for k in range(4):
        e(f"v_xor_b32 v{vW+k}, {sT0}, v{vVA+k}")
        e(f"v_add_u32 v{vW+k}, {sT1}, v{vW+k}")
    e(f"s_lshl_b32 {sT0}, {sKH}, 13")
    for s in range(4):
        e(f"v_mov_b32 v{vX+s}, v{vKA+s}")
        e(f"v_add_u32 v{vKA+s}, {sT0}, v{vKA+s}")
    e(f"s_lshl_b32 {sT3}, {sW}, 6")
    for k in range(2):
        e(f"v_xor_b32 v{vWA[2+k]}, {sT3}, v{vVA+k}")
        e(f"v_subrev_u32 v{vWA[k]}, {VBASE}, v{vWA[2+k]}")
        e(f"v_add_u32 v{vWA[4+k]}, {VBASE}, v{vWA[2+k]}")
    for dt in range(8): e(f"v_add_u32 v{vVA+dt}, {sT0}, v{vVA+dt}")
    e(f"s_lshl_b32 {sT1}, {sHH}, 14"); e(f"s_add_u32 {sT1}, {sT1}, {8*16384}")
    e(f"s_add_u32 {sT3}, {sT1}, {sT0}")
    e(f"v_add_u32 v{vQR}, {sT3}, v{vL16}")
    e(f"v_xor_b32 v{vQR+1}, 0x2000, v{vQR}")
    e(f"s_lshl_b32 {sT0}, {sKH}, 11"); e(f"s_add_u32 {sT1}, {sT1}, {sT0}")
    e(f"v_lshrrev_b32 v3, 1, v{vG}"); e(f"v_lshl_add_u32 v3, v3, 8, {sT1}")
    e(f"v_lshl_add_u32 v3, v{vI15}, 4, v3")
    e(f"v_and_b32 v25, 1, v{vG}"); e(f"v_lshl_add_u32 v{vQW}, v25, 3, v3")
    e("@split")
    gA, gB, gS = cfg.gA, cfg.gB, cfg.gS
    e(f"v_add_u32 v{vGA}, {gA*16384}, v{vL16}"); e(f"v_add_u32 v{vGA+1}, {gB*16384}, v{vL16}")
    e(f"s_mul_i32 {sT0}, {sHH}, {(gB - gA)*16384}"); e(f"s_lshl_b32 {sT1}, {sKH}, 11"); e(f"s_add_u32 {sT0}, {sT0}, {sT1}")
    e(f"v_add_u32 v{vGW}, {sT0}, v{vGA}"); e(f"v_xor_b32 v{vGW+1}, 0x800, v{vGW}")
    e(f"s_lshl_b32 {sT0}, {sW}, 10"); e(f"s_add_u32 {sT0}, {sT0}, {gS*16384}")
    e(f"v_add_u32 v{vGW+2}, {sT0}, v{vL16}"); e(f"v_xor_b32 v{vGW+3}, 0x400, v{vGW+2}")
    e(f"v_add_u32 v{vCK+1}, {gS*16384}, v{vL16}"); e(f"v_lshl_add_u32 v{vCK}, {sW}, 2, v{vCK+1}")
    e(f"s_lshl_b32 {sPST}, {sGRP}, 22")
    e(f"s_lshl4_add_u32 {sT0}, {sW}, {sMEM}"); e(f"s_lshl_b32 {sT0}, {sT0}, 15"); e(f"s_add_u32 {sPLD}, {sPST}, {sT0}")
    e(f"s_lshl_b32 {sT1}, {sW}, 17"); e(f"s_add_u32 {sPST}, {sPST}, {sT1}")
    e(f"s_lshl_b32 {sT1}, {sW}, 2"); e(f"s_xor_b32 {sT1}, {sT1}, {sMEM}")
    e(f"s_and_b32 {sT0}, {sT1}, 8"); e(f"s_add_u32 {sT1}, {sT1}, {sT0}"); e(f"s_lshl_b32 {sT1}, {sT1}, 10")
    e(f"s_add_u32 {sPST}, {sPST}, {sT1}")
    e(f"s_lshl_b32 {sT3}, {sB}, 17")
    e(f"s_and_b32 {sT0}, {sMEM}, 3"); e(f"s_lshl_b32 {sT0}, {sT0}, 15"); e(f"s_add_u32 {sT3}, {sT3}, {sT0}")
    e(f"s_lshl_b32 {sT0}, {sBR}, 10"); e(f"s_add_u32 {sT3}, {sT3}, {sT0}")
    e(f"s_add_u32 {sT0}, {sW}, {sB}"); e(f"s_and_b32 {sT0}, {sT0}, 3"); e(f"s_lshl_b32 {sT0}, {sT0}, 8"); e(f"s_add_u32 {sT3}, {sT3}, {sT0}")
    e(f"s_lshr_b32 {sT0}, {sMEM}, 2"); e(f"s_lshl_b32 {sT0}, {sT0}, 6"); e(f"s_add_u32 {sT3}, {sT3}, {sT0}")
    if cfg.tch == 5: e(f"s_load_dword {sGC}, s[28:29], {sT3} glc")
    e(f"v_lshl_add_u32 v3, v{vI15}, 11, {sT3}")
    e(f"v_lshl_add_u32 v{vOUT}, v{vG}, 4, v3")
    e(f"s_lshl_b32 {sT1}, {sGRP}, 4")
    e("v_cmp_eq_u32 vcc, 0, v0")
    e(f"v_mov_b32 v27, {sT1}")
    e(f"v_cndmask_b32 v{vOT}, 2.0, v{vOUT}, vcc")
    e("v_cndmask_b32 v26, 2.0, v27, vcc")
    e(f"v_add_u32 v{vFL}, {sPLD}, v{vL16}")
    e(f"s_lshl_b32 {sGO}, {sGRP}, 4")
    e("@s3")
    e("v_mov_b32 v3, 0x3f803f80")
    if cfg.smf:
        e(f"v_xor_b32 v25, v{vI15}, v{vG}"); e("v_and_b32 v25, 2, v25")
        e("v_cmp_eq_u32 vcc, 0, v25")
        e("v_cndmask_b32 v3, 0, v3, vcc")
        e(f"v_and_b32 v25, 1, v{vI15}"); e(f"v_mul_u32_u24 v25, 0xaaaa, v25"); e(f"v_add_u32 v{vSI}, 0x4444, v25")
    e(f"v_mov_b32 v{vSA0}, v3")
    e(f"s_mov_b32 {sSC}, {hex(QSCALE)}"); e(f"s_mov_b32 s69, {hex(QSCALE)}")
    e(f"v_and_b32 v3, 3, v{vI15}"); e(f"v_xor_b32 v25, v3, v{vG}")
    e("v_lshlrev_b32 v3, 8, v3"); e(f"v_lshl_add_u32 v{vPR}, v25, 4, v3")
    e = e0
    k = SU.index("@split"); S1, S2 = SU[:k], SU[k + 1:]
    SEL = []; selector(SEL.append, vSEL, 2)
    k = S2.index("@s3"); S2, S3 = S2[:k], (SEL + S2[k + 1:])
    S3, S4 = S3[:cfg.rf], S3[cfg.rf:]
    for step in cfg.qs.split('|'):
        if step == 'S1':
            for l in S1: e(l)
        elif step == 'S2':
            for l in S2: e(l)
        elif step == 'R':
            race(e, cfg, S3)
            for l in S4: e(l)
        elif step == 'W':
            if cfg.wstep: warm(e, cfg)
        else:
            for l in flat(xw(step)): e(l)
    if cfg.diag == 3:
        for l in lstamp(1): e(l)
    st = Stream()
    D = cfg.qD
    for _ in range(D): st.add(None)
    def xfrag(i, ks, q4): return (96, 192, 64)[i % 3] + (ks * 4 + q4) * 4
    def wfrag(i, ks, k): return (160, 224, 128)[i % 3] + (ks * 4 + k) * 4
    def acc(q4, k): return vO + (q4 * 4 + k) * 4
    done = {}
    order = [(i, ks, k, q4) for i in range(6) for ks in range(2) for k in range(4) for q4 in range(4)]
    nA = cfg.qA
    order += [(6, ks, k, q4) for ks in range(2) for k in range(4) for q4 in range(nA)]
    n7 = len(order)
    order += [(i, ks, k, q4) for q4 in range(4) for k in range(4) for i in ((7,) if q4 < nA else (6, 7)) for ks in range(2)]
    for i, ks, k, q4 in order:
        a = vr(acc(q4, k))
        c = "0" if (i == 0 and ks == 0) else a
        done[q4, k] = st.add(f"{MF} {a}, {ar(wfrag(i, ks, k))}, {ar(xfrag(i, ks, q4))}, {c} ; use=w{i}_{ks}_{k},x{i}_{ks}_{q4}")
    xs = dict(it.split(':') for it in cfg.qx.split(',') if it)
    latex = []
    for i in range(8):
        g0 = 32 * i if i < 7 else n7 - cfg.q7
        g1 = g0 + 32 if i != 6 else n7 - cfg.q7
        need = f"W{i}" + (f",X{i>>1}" if i % 2 == 0 else "")
        st.force(g0, f"@vmwait {need} lgkm0")
        st.force(g0, "s_barrier")
        if cfg.diag == 3:
            for l in lstamp(i + 2): st.force(g0, l)
        xr = lambda ks, q4: f"ds_read_b128 {ar(xfrag(i, ks, q4))}, v{vX + 2*(i&1) + ks} offset:{(i>>1)*16384 + q4*4096}"
        wr = lambda ks, k: [f"ds_read_b64_tr_b16 {ar(wfrag(i, ks, k) + 2*u, 2)}, v{vW+k} offset:{(i%3)*16384 + ks*8192 + u*4096}" for u in range(2)]
        rd = []
        if i < 7:
            for ks in range(2):
                rd += wr(ks, 0) + [xr(ks, q4) for q4 in range(4 if i < 6 else nA)] + wr(ks, 1) + wr(ks, 2) + wr(ks, 3)
            if i == 6: latex = [xr(ks, q4) for q4 in range(nA, 4) for ks in range(2)]
        else:
            rd = [xr(0, 0), xr(1, 0)] + sum((wr(ks, k) for k in range(4) for ks in range(2)), []) + [xr(ks, q4) for q4 in range(1, 4) for ks in range(2)] + latex
        G = wq_dma(cfg, i + 2) if i + 2 < 8 and f'w{i+2}' not in cfg.qs else []
        G += xw(xs.get(str(i), ''))
        qk = cfg.qkv.split('|')
        for it in qk[i - 8 + len(qk)].split(',') if i >= 8 - len(qk) else []:
            if it: G += kv_dma(cfg, it[0], int(it[1:]))
        if G: place_dma(st, G, g0 + 1, g1 - 4 if i != 6 else g1 - 1)
        ch = st.spread(rd, g0, g1 - 1 - cfg.qG if i < 7 else g0 + cfg.q7r)
    gb = ch[-1] + 6
    st.force(gb, "@vmwait _ lgkm0"); st.force(gb + 1, "s_barrier")
    def fin(q4, k, pk):
        a = acc(q4, k)
        if pk: L = [f"v_pk_mul_f32 {vr(a+j, 2)}, {vr(a+j, 2)}, {sSC2}" for j in (0, 2)]
        else: L = [f"v_mul_f32 v{a+j}, {sSC}, v{a+j}" for j in range(4)]
        L += [f"v_cvt_pk_bf16_f32 v{a+j}, v{a+2*j}, v{a+2*j+1}" for j in range(2)]
        return L, f"ds_write_b64 v{vQW}, {vr(a, 2)} offset:{(q4*4 + (k>>1))*1024 + (k&1)*512}"
    tiles = [(q4, k) for q4 in range(4) for k in range(4)]
    G = []
    for it in cfg.fkv.split(','):
        if it: G += kv_dma(cfg, it[0], int(it[1:]))
    if cfg.fin and G:
        place_dma(st, G, max(gb + 2, 32 * 7 + 28 - 32 + cfg.qA * 8), st.n() - 1); G = []
    g = 0; gw = gb + 1; nt = 0
    while True:
        q4, k = tiles[nt]
        g = max(g, done[q4, k] + 4)
        if max(g, gw) + 4 >= st.n(): break
        V, wr = fin(q4, k, False)
        for x in V: g = st.put(g, x)
        gw = st.put(max(g, gw) + 1, wr)
        nt += 1
    if '-v' in sys.argv: print("Q tiles finalised in stream:", nt)
    for l in st.lines(): e(l)
    if cfg.diag == 3:
        for l in lstamp(10): e(l)
    cfg.pre_issued = set(it for part in (cfg.qkv + '|' + cfg.fkv).split('|') for it in part.split(',') if it)
    rest = tiles[nt:]
    pend = None
    for idx, (q4, k) in enumerate(rest):
        V, wr = fin(q4, k, True)
        for x in V: e(x)
        if pend: e(pend)
        pend = wr
        while G and len(G) > (len(rest) - 1 - idx) * cfg.fden // 12:
            for x in flat(G[:1]): e(x)
            G = G[1:]
    e(pend)
    if cfg.diag == 3:
        for l in lstamp(11): e(l)

def Qreg(qt, s): return ar(aQ + (qt * 4 + s) * 4)
def k_reads(t):
    return [f"ds_read_b128 {ar(aKF + (t & 1)*32 + (kt*4+s)*4)}, v{vKA+s} offset:{kunit(t)*16384 + kt*4096}" for kt in range(2) for s in range(4)]
def v_reads(t):
    return [f"ds_read_b64_tr_b16 {ar(aVF + (t & 1)*32 + dt*4 + 2*u, 2)}, v{vVA+dt} offset:{vunit(t)*16384 - VBASE + u*4096}" for dt in range(8) for u in range(2)]

def afrag(j, kk, k): return (192, 224, 128, 160)[j & 3] + (kk * 2 + k) * 4
def a_reads(j, wo_unit):
    rd = []
    for kk in range(4):
        i = 2 * j + (kk >> 1); u = wo_unit[i]
        for k in range(2):
            for h in range(2):
                rd.append(f"ds_read_b64_tr_b16 {ar(afrag(j, kk, k) + 2*h, 2)}, v{vWA[2*(u>>2) + k]} offset:{(u&3)*16384 + (kk&1)*8192 + h*4096}")
    return rd

def selector(e, base, tmp):
    e(f"v_lshrrev_b32 v{tmp}, 2, v{vI15}")
    e(f"v_cmp_eq_u32 vcc, v{tmp}, v{vG}")
    e(f"v_and_b32 v{tmp}, 1, v{vI15}")
    e(f"v_lshlrev_b32 v{tmp}, 4, v{tmp}")
    e(f"v_mov_b32 v{tmp+1}, 0x3f80")
    e(f"v_lshlrev_b32 v{tmp}, v{tmp}, v{tmp+1}")
    e(f"v_cndmask_b32 v{tmp}, 0, v{tmp}, vcc")
    e(f"v_and_b32 v{tmp+1}, 2, v{vI15}")
    e(f"v_cmp_eq_u32 vcc, 0, v{tmp+1}")
    for i in (0, 1, 4, 5): e(f"v_mov_b32 v{base+i}, 0")
    e(f"v_cndmask_b32 v{base+2}, 0, v{tmp}, vcc")
    e(f"v_sub_u32 v{base+3}, v{tmp}, v{base+2}")

def retry_block(name, dst, voff, srdn, off, val):
    return [f"{name}:", f"s_mov_b32 {sCNT}, 0", f"{name}_l:",
            f"buffer_load_dword v{dst}, v{voff}, {srdn}, 0 offen offset:{off} sc1",
            f"s_add_u32 {sCNT}, {sCNT}, 1", "s_waitcnt vmcnt(0)",
            f"v_cmp_gt_u32 vcc, {val}, v{dst}",
            f"s_cmp_ge_u32 {sCNT}, {SPIN}", f"s_cbranch_scc1 {name}_b",
            f"s_cbranch_vccnz {name}_l", f"s_branch {name}_b"]

def check_in_stream(st, g, tag, name, dst, val):
    st.force(g, f"@vmwait {tag}")
    st.force(g, f"v_cmp_gt_u32 vcc, {val}, v{dst}")
    st.force(g + 1, f"s_cbranch_vccnz {name}")
    st.force(g + 1, f"@label {name}_b")
    return g + 1

def norm_head(qt):
    A = vL if qt == 0 else vL1
    return [f"v_add_f32 v{A}, v{A}, v{A+1}", f"v_add_f32 v{A+2}, v{A+2}, v{A+3}", f"v_add_f32 v{A}, v{A}, v{vL+8+qt}",
            f"v_add_f32 v{1+qt}, v{A}, v{A+2}", f"v_rcp_f32 v{26+qt}, v{1+qt}"]
def norm_frag(cfg, qt, s, pk):
    a = vO + (qt * 8 + 2 * s) * 4
    if pk: L = [f"v_pk_mul_f32 {vr(a+j, 2)}, {vr(a+j, 2)}, v[26:27] op_sel:[0,{qt}] op_sel_hi:[1,{qt}]" for j in range(0, 8, 2)]
    else: L = [f"v_mul_f32 v{a+j}, v{26+qt}, v{a+j}" for j in range(8)]
    L += [f"v_cvt_pk_bf16_f32 v{a+j}, v{a+2*j}, v{a+2*j+1}" for j in range(4)]
    return L, f"ds_write_b128 v{vGW}, {vr(a)} offset:{(s*4+qt)*1024}"

def attention(e, cfg, ool):
    NT = cfg.NT
    ta, tb = NT - 2, NT - 1
    mu = [(t, qt) for t in range(NT - 2) for qt in (2, 3, 0, 1)]
    mu += [(ta, 2), (ta, 3), (tb, 2), (tb, 3), (ta, 0), (tb, 0), (ta, 1), (tb, 1)]
    n = len(mu)
    gA, gB, gS = cfg.gA, cfg.gB, cfg.gS
    e(f"s_cmp_eq_u32 {sMODE}, 0")
    e("@vmwait K0,V0 lgkm0")
    e("s_barrier")
    e("s_cbranch_scc0 L_slow")
    if cfg.diag == 3:
        for l in lstamp(12): e(l)
        for l in lstamp(13): e(l)
        e("v_mov_b32 v126, v254"); e("v_mov_b32 v127, v255")
    if cfg.diag in (2, 4, 6): e('s_mov_b32 s49, 0')
    pr = [f"ds_read_b128 {ar(aPR + s*4)}, v{vPR} offset:{kunit(0)*16384 + 64*s}" for s in range(4)]
    qr = lambda qt: [f"ds_read_b128 {Qreg(qt, s)}, v{vQR + (qt >> 1)} offset:{(qt&1)*4096 + s*1024}" for s in range(4)]
    for x, y in zip(pr, qr(2)): e(x); e(y)
    for l in qr(3): e(l)
    for i in range(4): e(f"v_mov_b32 v{vSA+i}, v{vSA0}")
    for i in range(8): e(f"v_mov_b32 v{vL+i}, 0")
    for i in (2, 3): e(f"v_mov_b32 v{vL1+i}, 0")
    if cfg.ob:
        for i in range(4): e(f"v_mov_b32 v{vL+8+i}, {hex(f2u(cfg.ob / 100))}")
    def probe(qt):
        d = vr(vCI + 4 * qt)
        return [f"{MF} {d}, {ar(aPR + s*4)}, {Qreg(qt, s)}, {'0' if s == 0 else d} ; use=pr{s},q{qt}_{s}" for s in range(4)]
    def pfin(qt):
        a = vCI + 4 * qt
        if cfg.so:
            return [f"v_max3_f32 v{a}, v{a}, v{a+1}, v{a+2}", f"v_max_f32 v{a}, v{a}, v{a+3}"] + [f"v_sub_f32 v{a+j}, {hex(f2u(-float(cfg.so)))}, v{a}" for j in (1, 2, 3, 0)]
        return [f"v_min3_f32 v{a}, -v{a}, -v{a+1}, -v{a+2}"] + [f"v_min_f32_e64 v{a+j}, v{a}, -v{a+3}" for j in (1, 2)] + \
               [f"v_mov_b32 v{a}, v{a+1}", f"v_mov_b32 v{a+3}, v{a+1}"]
    def addO(qt):
        L = []
        for s in range(4):
            for T in range(2):
                o = vr(vO + (qt * 8 + 2 * s + T) * 4)
                L.append(f"{MF} {o}, {vr(vSEL + 2 - 2*T)}, {ar(aQ + 32 + (qt*4+s)*4)}, {o} ; use=_,po{qt}_{s}")
        return L
    st = Stream()
    st.wsh = cfg.wsh
    qk0 = {}; pv0 = {}; pvend = {}; smf = {}
    for x in probe(2) + probe(3): st.add(x)
    st.add(None)
    for i in range(-1, n):
        if i + 1 < n:
            t, qt = mu[i + 1]
            qk0[i + 1] = st.n()
            for kt in range(2):
                d = vr(vS + ((i + 1) & 1) * 8 + kt * 4)
                for s in range(4):
                    st.add(f"{MF} {d}, {ar(aKF + (t & 1)*32 + (kt*4+s)*4)}, {Qreg(qt, s)}, {vr(vCI + 4*qt) if s == 0 else d} ; use=k{t}_{kt}_{s},q{qt}_{s}")
        else:
            for x in addO(1): st.add(x)
        if i >= 0:
            t, qt = mu[i]
            p = vr(vP + (i & 1) * 4)
            if i & 1:
                smf[i] = st.add(f"v_smfmac_f32_16x16x64_bf16 {vr(vL1 if i == n - 1 else vL + 4*(qt >> 1))}, {vr(vSA)}, {vr(vP, 8)}, v{vSI}")
            pv0[i] = st.n()
            for dt in range(8):
                o = vr(vO + (qt * 8 + dt) * 4)
                pvend[i] = st.add(f"{MF} {o}, {ar(aVF + (t & 1)*32 + dt*4)}, {p}, {(vr(vL+8) if cfg.ob else '0') if t == 0 else o} ; use=v{t}_{dt},p{i}")
            if i == n - 3:
                gadd = st.n()
                for x in addO(0): st.add(x)
        else:
            gp0 = st.n()
            for x in probe(0) + probe(1): st.add(x)
            st.add(None)
    for i in range(n):
        g = qk0[i] + cfg.expoff
        sb = vS + (i & 1) * 8; pb = vP + (i & 1) * 4
        for j in range(8):
            st.force(g + 2 * j, f"v_exp_f32 v{sb+j}, v{sb+j}")
            if j & 1: st.force(g + 2 * j + 1, f"v_cvt_pk_bf16_f32 v{pb + j//2}, v{sb+j-1}, v{sb+j} ; def=p{i}")
    G0 = lambda t: qk0[4 * t]
    for k, x in enumerate(k_reads(0) + qr(0) + qr(1)): st.force(k // 2, x)
    for x in pfin(2): st.force(8, x)
    for qt, g in ((3, G0(0) + 3), (0, gp0 + 8), (1, gp0 + 12)):
        for x in pfin(qt): g = st.put(g, x)
    st.spread(v_reads(0), G0(0), G0(0) + 14)
    isexp = lambda t: any(y.startswith('v_exp') for y in st.fill[t])
    def seq_put(L, g, cap):
        for x in L:
            while g < st.n() - 1 and (isexp(g) or st.used[g] >= cap): g += 1
            st.force(g, x)
        return g
    ool += ["L_rG:", f"s_mov_b32 {sCNT}, 0", "L_rG_l:", f"s_load_dword {sGC}, s[32:33], {sGO} glc", f"s_add_u32 {sCNT}, {sCNT}, 1", "s_waitcnt lgkmcnt(0)",
            f"s_cmp_ge_u32 {sCNT}, {SPIN}", "s_cbranch_scc1 L_rG_b", f"s_and_b32 {sT2}, {sGC}, 0xfff0", "s_cbranch_scc0 L_rG_l", "s_branch L_rG_b"]
    wo_unit = {}; free = [8, 9]
    def wo_next(k):
        G = []
        while k and free and len(wo_unit) < 16:
            i = len(wo_unit); wo_unit[i] = free.pop(0); G += wo_dma(cfg, i, wo_unit[i]); k -= 1
        return G
    if cfg.roll:
        for t in range(cfg.l0, NT - 3, 4):
            gm = G0(t) - cfg.mk
            while st.used[gm]: gm += 1
            assert gm < G0(t) - 1
            if t == cfg.l0: st.force(gm - 1, f"s_mov_b32 {sLOOP}, {-((NT - 4 - cfg.l0) // 4)}")
            else:
                st.force(gm - 1, f"s_add_u32 {sLOOP}, {sLOOP}, 1")
                st.force(gm, "s_cbranch_scc0 L_att")
            st.force(gm, "@iter L_att")
            st.used[gm] = 2
    seq_put([f"v_mov_b32 v{vL1}, v{vL+2}", f"v_mov_b32 v{vL1+1}, v{vL+3}", f"v_mov_b32 v{vL+2}, 0", f"v_mov_b32 v{vL+3}, 0"], G0(tb) - 10, 2)
    g = G0(tb) + 2; gw = g
    for h in range(2):
        g = max(g, pvend[n - 6 + h] - 2)
        for s in range(4):
            a = vO + ((2 + h) * 8 + 2 * s) * 4
            g = seq_put([f"v_cvt_pk_bf16_f32 v{a+j}, v{a+2*j}, v{a+2*j+1}" for j in range(4)], max(g, pv0[n - 6 + h] + 2 * s + 6), cfg.xc)
            gw = max(g + 1, gw + cfg.xw)
            while isexp(gw): gw += 1
            st.force(gw, f"ds_write_b128 v{vGW+1}, {vr(a)} offset:{(s*4+h)*1024} ; tag=OX{h} loc=" + (f"u{gA},u{gB},g0" if h == 0 else "g1"))
        if h == 0:
            g = seq_put([f"v_add_f32 v{vL+4}, v{vL+4}, v{vL+5}", f"v_add_f32 v{vL+5}, v{vL+6}, v{vL+7}"], max(g, smf[n - 5] + 5), cfg.xc)
            gw = max(g + 1, gw + cfg.xw)
            while isexp(gw): gw += 1
            st.force(gw, f"ds_write_b64 v{vGW+3}, {vr(vL + 4, 2)}")
    gx = gw + cfg.xb
    st.force(gx - 1, "@vmwait _ lgkm0"); st.force(gx, "s_barrier")
    gy = G0(ta) + cfg.gy
    while isexp(gy): gy += 1
    if cfg.wt: st.fill[gx - 1] = [x.replace("@vmwait _", "@vmwait O2,O3") for x in st.fill[gx - 1]]; gy = gx + 12
    else: st.force(gy - 1, "@vmwait O2,O3"); st.force(gy, "s_barrier")
    rd = [f"ds_read_b128 {ar(aQ + 32 + (h*4+s)*4)}, v{vGW} offset:{(s*4+h)*1024}" for h in range(2) for s in range(4)]
    rd.insert(4, f"ds_read_b64 {vr(vL + 8, 2)}, v{vGW+2} ; rd=LX")
    if '-v' in sys.argv: print("exchange barrier at", gx - G0(ta), "first add at", gadd - G0(ta), "end", st.n() - G0(ta))
    assert gx + 4 < gadd
    st.spread(rd[:5], gx, gx + 4); st.spread(rd[5:], gx + 5, gx + 12)
    g = seq_put(norm_head(0), gadd + 1, 3); gw = g
    for s in range(4):
        V, wr = norm_frag(cfg, 0, s, False)
        g = seq_put(V, max(g + (s == 0), gadd + 2 * s + 6), cfg.nc)
        gw = min(max(g + 1, gw + cfg.xw), st.n() - 1)
        while isexp(gw): gw += 1
        assert gw > g
        st.force(gw, wr)
    if '-v' in sys.argv: print("first gather write done at", gw - G0(ta))
    if cfg.diag == 7:
        for k, gg in ((1, G0(4)), (2, G0(NT - 4)), (3, G0(NT - 3)), (4, G0(NT - 2)), (5, G0(NT - 1)), (6, gx)):
            st.force(gg - (60 if k == 1 else 0), "\n".join(lstamp(k, 126)))
    seq = [(wh, t) for t in range(NT) for wh in 'KV' if f"{wh}{t}" not in cfg.pre_issued]
    GB = {}
    for t in range(NT):
        o = max(cfg.b0, cfg.bk) if t == 0 else cfg.bk if t < NT - 3 else (2 * cfg.bk // 3, cfg.bk // 4, 0)[t - NT + 3]
        gb = G0(t) + o
        while st.used[gb] or not isexp(gb - 1): gb += 1
        GB[t] = gb
        st.force(gb - 1, f"@vmwait K{t+1},V{t+1}{',O0,O1' if t == tb else ''} rd:K{t},V{t},QX")
        st.force(gb, "s_barrier")
        if cfg.diag == 2 or (cfg.diag in (4, 6) and t % 2 == 0):
            st.force(gb, "\n".join(["s_memrealtime s[98:99]", "s_memtime s[96:97]", "s_add_u32 s49, s49, 1", "s_mov_b32 s100, m0", "s_mov_b32 m0, s49", "s_waitcnt lgkmcnt(0)", "v_writelane_b32 v126, s98, m0", "v_writelane_b32 v127, s96, m0", "s_mov_b32 m0, s100"]))
    st.force(GB[NT - 4] + 1, f"s_load_dword {sGC}, s[32:33], {sGO}")
    st.force(GB[NT - 3] + 1, f"s_and_b32 {sT2}, {sGC}, 0xfff0\ns_cbranch_scc0 L_rG\n@label L_rG_b")
    g = GB[NT - 3] + 2
    for x in [f"s_and_b32 {sT2}, {sGC}, 0x3fff", f"s_mul_i32 {sT2}, {sT2}, 3", f"s_lshr_b32 {sGC}, {sGC}, 14",
              f"s_cmp_ge_u32 {sGC}, {sT2}\ns_cselect_b32 {sSEL}, 0x2000, 0\ns_cselect_b32 {sOLD}, {sOLD1}, {sOLD}"] + apply_sel() + \
             [f"s_xor_b32 {sT2}, {sPST}, 0x2000", f"buffer_load_dword v{vPF2}, off, {SWS}, {sT2}"]:
        g = st.put(g, x) + 1
    def reads(t):
        first_qk, first_pv = (qk0[4 * t + 4], pv0[4 * t + 4]) if t < ta else (qk0[n - 6], pv0[n - 6])
        pl = pv0[4 * t - 1] if t > 0 else 0
        lo = [0] * 8 + [pl + d // 2 for d in range(16)]
        end = GB[t + 1] - cfg.rdend
        hi = [min(end, first_qk - 7 + k // 2) for k in range(8)] + [min(end, first_pv - 8 + d // 2) for d in range(16)]
        st.spreadc(k_reads(t + 1) + v_reads(t + 1), GB[t], min(end - 1, first_pv - 4), lo, hi)
    if cfg.bk:
        for t in range(tb): reads(t)
    carry = []
    for t in range(NT):
        g0 = G0(t); g1 = G0(t + 1) if t + 1 < NT else g0 + 66
        G = []; k = 0
        if t + 3 >= NT: free += [u for u in (kunit(t - 1), vunit(t - 1)) if u not in (gA, gB, gS)]
        while seq and 2 * seq[0][1] + (seq[0][0] == 'V') <= 2 * t + cfg.off + 1:
            wh, tt = seq.pop(0); G += kv_dma(cfg, wh, tt); k += 1
        if t < cfg.cu:
            G = carry + G
            m = 8 + -(-(len(G) - 8) // (cfg.cu - t))
            G, carry = G[:m], G[m:]
        if not seq and not k: G += wo_next(int(cfg.wl[t - NT]))
        if cfg.pf == 2 and t % 4 == cfg.pft and t >= cfg.l0:
            G = G + [([], f"buffer_load_dword v{vPF2}, v{vPF}, s[88:91], 0 offen sc1")]
        if t == cfg.tout and cfg.tch == 6:
            G = [([], f"buffer_store_dword v{vONE1}, v{vOT}, {SOUT}, 0 offen")] + G
        if t == cfg.tann:
            G = [([], f"buffer_atomic_add v{vONE1}, v26, {SDBG}, 0 offen sc1")] + G
        if G: gl = place_dma(st, G, g0 + 2, g1 - cfg.mk - 3 if t < ta else g0 + cfg.wa if t == ta else g0 + 17 * int(cfg.wl[-1]), 1 if t < tb and len(G) < 11 and not cfg.bk else 2)[-1]
        if t < tb and not cfg.bk: reads(t)
    st.spreadc(a_reads(0, wo_unit), GB[tb] + 1, gx - 6, None, [gx - 5] * 16)
    free += [wo_unit[0], wo_unit[1]]
    place_dma(st, wo_next(cfg.wx), max(gx, gl) + 1, st.n() - 2, 2)
    st.spreadc(a_reads(1, wo_unit), gy, st.n() - 6, None, [st.n() - 4] * 16)
    if cfg.soft: st.late = set(range(G0(cfg.soft0), G0(cfg.soft) - cfg.mk - 1))
    for l in st.lines(): e(l)
    if '-v' in sys.argv:
        over = sum(max(0, u - 2) for u, m in zip(st.used, st.mf) if m)
        print("attention gaps", st.n(), "overfull slots", over, "in last two periods", sum(max(0, u - 2) for u in st.used[G0(ta):]), "wo units", wo_unit)
    cfg.wo_pre = dict(wo_unit)
    return wo_unit, free, wo_next

def oproj(e, cfg, wo_unit, free, wo_next):
    gA, gB, gS = cfg.gA, cfg.gB, cfg.gS
    ls = lambda k: lstamp(k, 126) if cfg.diag == 7 else []
    def b_reads(q4):
        return [f"ds_read_b128 {ar((ks8*4+q4)*4)}, v{vGA + (ks8>>2)} offset:{((ks8&3)*4+q4)*1024}" for ks8 in range(8)]
    e("L_norm:")
    for l in ls(7): e(l)
    for l in norm_head(1): e(l)
    e("@vmwait O4,O5 lgkm0"); e("s_barrier")
    stamp(e, cfg, 3)
    for l in b_reads(0): e(l)
    e("v_add_f32 v25, v1, v2")
    wrs = [f"ds_write_b32 v{vCK}, v25 offset:4096"]
    free += [wo_unit[2], wo_unit[3]]
    Gb = wo_next(2)
    for s in range(cfg.nb):
        V, wr = norm_frag(cfg, 1, s, True)
        if s < cfg.nbd:
            for l in flat(Gb[:1]): e(l)
            Gb = Gb[1:]
        for l in V: e(l)
        if s < cfg.nb - 1: e(wr)
        else: wrs.append(wr)
    for l in ls(8): e(l)
    st = Stream()
    st.wsh = cfg.wsh
    def acc(c, q4, k): return vO + c * 32 + q4 * 8 + k * 4
    S0 = lambda j: 32 * j
    qend = {}
    for c in range(4):
        qs = (0, 2, 1, 3) if c == 0 else range(4)
        if cfg.om[c] == 'Q': order = [(ks8, k, q4) for q4 in qs for k in range(2) for ks8 in range(8)]
        else: order = [(4 * hf + kk, k, q4) for hf in range(2) for q4 in qs for k in range(2) for kk in range(4)]
        for ks8, k, q4 in order:
            j, kk = 2 * c + (ks8 >> 2), ks8 & 3
            a = vr(acc(c, q4, k))
            qend[c, q4] = st.add(f"{MF} {a}, {ar(afrag(j, kk, k))}, {ar((ks8*4+q4)*4)}, {'0' if ks8 == 0 else a} ; use=a{j}_{kk}_{k},b{ks8}_{q4}")
    if cfg.diag == 7:
        for j in (2, 4, 6): st.force(S0(j) + 2, "\n".join(lstamp(8 + j // 2, 126)))
        st.force(st.n() - 1, "\n".join(lstamp(12, 126)))
    for k, l in enumerate(b_reads(2)): st.force(k, l)
    gw = -1
    for l in wrs: gw = st.force(gw + 2, l)
    g = 0
    for s in range(cfg.nb, 4):
        V, wr = norm_frag(cfg, 1, s, False)
        for x in V: g = st.put(g, x)
        gw = st.force(max(g + 1, gw + 3), wr)
    g1 = max(cfg.g1, gw + 5)
    if '-v' in sys.argv: print("second gather barrier at", g1)
    place_dma(st, Gb, 0, g1 - 2, 2)
    st.spread(a_reads(2, wo_unit), 4, g1 - 6)
    st.force(g1 - 1, "@vmwait O6,O7,O8 lgkm0"); st.force(g1, "s_barrier")
    rd = b_reads(1); rd.insert(4, f"ds_read_b128 {vr(vS)}, v{vCK+1} offset:4096 ; rd=CK")
    for k, l in enumerate(rd): st.force(g1 + k // 2, l)
    g = g1 + 10
    for l in [f"v_add_f32 v{vS}, v{vS}, v{vS+1}", f"v_add_f32 v{vS+2}, v{vS+2}, v{vS+3}", f"v_add_f32 v{vS}, v{vS}, v{vS+2}", f"v_cmp_nge_f32 vcc, {hex(f2u(2.0**(cfg.T - cfg.so)))}, v{vS}"]:
        g = st.put(g, l) + 1
    st.force(g, "s_cbranch_vccnz L_fail\n@label L_fail_b")
    gck = g
    free += [wo_unit[4], wo_unit[5]]
    g2 = cfg.g2
    gl = place_dma(st, wo_next(2), g1 + 1, g1 + cfg.w2o, 2)[-1]
    st.spread(b_reads(3), g1 + 5, g1 + 14)
    rdst = {x: (x - 2 if cfg.om[x >> 1] == 'Q' and x & 1 else x - 1) for x in range(3, 8)}
    if rdst[3] == 1: st.spread(a_reads(3, wo_unit), g1 + 15, 57)
    st.force(g2 - 1, "@vmwait _ rd:G0,G1,CK"); st.force(g2, "s_barrier")
    free += [gS, gA, gB]
    place_dma(st, wo_next(3), max(g2, gl) + 1, max(g2, gl) + cfg.w3, 2)
    assert len(wo_unit) == 16
    seen = set(range(9))
    for j in range(2, 7):
        todo = [x for x in range(3, 8) if rdst[x] == j]
        need = [i for x in todo for i in (2 * x, 2 * x + 1) if i not in seen]
        if need:
            st.force(S0(j) + cfg.bo - 1, "@vmwait " + ",".join(f"O{i}" for i in need)); st.force(S0(j) + cfg.bo, "s_barrier")
            seen.update(range(max(need) + 1))
        if todo: st.spread(sum((a_reads(x, wo_unit) for x in todo), []), S0(j) + cfg.bo, S0(j) + 25)
    left = []; g = 0
    for c in range(4):
        for q4 in ((0, 2, 1, 3) if c == 0 else range(4)):
            a = acc(c, q4, 0)
            g = max(g, qend[c, q4] + 5, cfg.pst)
            if g + 6 >= st.n(): left.append(q4); continue
            st.put(g, f"s_xor_b32 {sT3}, {sPST}, {spread(c*262144 + q4*17408)}")
            for k in range(4): g = st.put(g, f"v_cvt_pk_bf16_f32 v{a+k}, v{a+2*k}, v{a+2*k+1}")
            g = st.put(g + 2, f"buffer_store_dwordx4 {vr(a)}, v{vL16}, {SWS}, {sT3} offen sc1 ; tag=PS{c}") + 1 + (cfg.psp if c < 3 else 0)
    g = S0(5) + 4
    for l in [f"s_movk_i32 s{sWC+k}, {hex(spread(4096*k))}" for k in range(1, 4)] + [f"s_mov_b32 {sCNT}, 0", f"s_mov_b32 {sDONE}, 0"]: g = st.put(g, l) + 1
    if cfg.rsm:
        SL = [f"v_lshrrev_b32 v1, 3, v{vI15}", f"v_and_b32 v2, 1, v{vG}", "v_cmp_eq_u32 vcc, v1, v2",
              f"v_and_b32 v1, 1, v{vI15}", "v_lshlrev_b32 v1, 4, v1", "v_mov_b32 v2, 0x3f80", "v_lshlrev_b32 v1, v1, v2", "v_cndmask_b32 v1, 0, v1, vcc",
              f"v_and_b32 v2, 4, v{vI15}", "v_cmp_eq_u32 vcc, 0, v2", f"v_bfe_u32 v2, v{vI15}, 1, 1", "v_mul_u32_u24 v2, 0xaaaa, v2", "v_cndmask_b32 v8, 0, v1, vcc",
              "v_sub_u32 v10, v1, v8", "v_add_u32 v20, 0x4444, v2", "v_mov_b32 v13, v8", "v_mov_b32 v15, v10"] + [f"v_mov_b32 v{r}, 0" for r in (9, 11, 12, 14, 4, 5, 6, 7, 16, 17, 18, 19)]
        g = S0(3) + 2
        for l in SL: g = st.put(g, l) + 1
    flag = lambda c: [f"@vmwait PS{c}", f"buffer_atomic_xor v{vFB}, v{vFD}, {SWS}, 0 offen offset:{128*c} sc1"]
    if cfg.n1: st.force(S0(7) + cfg.pp, f"@vmwait _ lgkm0\ns_load_dword {sMK}, s[24:25], {sMO} glc")
    for c in range(cfg.f0):
        gg = S0(7) + cfg.f0p + c * cfg.f0d
        assert gg > gck
        st.force(gg, flag(c)[0]); st.put(gg, flag(c)[1])
    for l in st.lines(): e(l)
    if '-v' in sys.argv: print("oproj overfull", sum(max(0, u - 2) for u in st.used))
    stamp(e, cfg, 4)
    for q4 in left:
        a = acc(3, q4, 0)
        e(f"s_xor_b32 {sT3}, {sPST}, {spread(3*262144 + q4*17408)}")
        for k in range(4): e(f"v_cvt_pk_bf16_f32 v{a+k}, v{a+2*k}, v{a+2*k+1}")
        e(f"buffer_store_dwordx4 {vr(a)}, v{vL16}, {SWS}, {sT3} offen sc1 ; tag=PS3")
    def lowest(k):
        for _ in range(k):
            e(f"s_sub_u32 {sT2}, {sT1}, 1"); e(f"s_and_b32 {sT1}, {sT1}, {sT2}")
        e(f"s_xor_b32 {sT0}, {sT0}, {sT1}")
    def sweep(tag):
        e(f"s_or_b32 {sDONE}, {sDONE}, {sT0}")
        e("@noauto")
        for q in range(4):
            e(f"s_and_b32 {sT1}, {sT0}, {hex(15 << (4*q))}")
            e(f"s_cbranch_scc0 L_{tag}q{q}")
            for j in range(4 * q, 4 * q + 4):
                e(f"s_bitcmp1_b32 {sT0}, {j}")
                e(f"s_cbranch_scc0 L_{tag}j{j}")
                if cfg.cap and tag == 'p': e(f"s_waitcnt vmcnt({cfg.cap - 1})")
                e(f"buffer_load_dwordx4 {vr(vO+4*j)}, v{vFL}, {SWS}, {'s%d' % (sWC + q) if q else 0} offen offset:{1024*(j&3)} sc1")
                e(f"L_{tag}j{j}:")
            e(f"L_{tag}q{q}:")
        e("@auto")
    if cfg.n1:
        for c in range(cfg.f0, 3 if cfg.n1f else 2):
            for l in flag(c): e(l)
        e(f"s_xor_b32 {sT0}, {sMK}, {sOLD}"); e(f"s_mov_b32 {sT1}, {sT0}")
        e(f"s_load_dword {sMK}, s[24:25], {sMO} glc")
        lowest(cfg.n1)
        sweep("e")
        e("s_waitcnt vmcnt(0)")
        for c in range(3 if cfg.n1f else 2, 4): e(flag(c)[1])
    else:
        e(f"s_load_dword {sMK}, s[24:25], {sMO} glc")
        for c in range(cfg.f0, 4):
            for l in flag(c): e(l)
    if cfg.fb: e("s_barrier")
    stamp(e, cfg, 5)
    e("s_waitcnt lgkmcnt(0)")
    e("s_branch L_pF_e")
    e("L_pF:")
    e(f"s_load_dword {sMK}, s[24:25], {sMO} glc")
    e(f"s_add_u32 {sCNT}, {sCNT}, 1")
    e(f"s_cmp_ge_u32 {sCNT}, {SPIN}")
    e("s_waitcnt lgkmcnt(0)")
    e("s_cbranch_scc1 L_pF_x")
    e("L_pF_e:")
    e(f"s_xor_b32 {sMK}, {sMK}, {sOLD}")
    e(f"s_andn2_b32 {sT0}, {sMK}, {sDONE}")
    e("s_cbranch_scc0 L_pF")
    if cfg.thr:
        e(f"s_cmp_eq_u32 {sMK}, 0xffff")
        e(f"s_cselect_b32 {sT1}, 0, {sT0}")
        lowest(cfg.thr)
    sweep("p")
    e(f"s_cmp_eq_u32 {sDONE}, 0xffff")
    e("s_cbranch_scc0 L_pF")
    e("L_pF_x:")
    stamp(e, cfg, 6)
    e("s_waitcnt vmcnt(0)")
    for j in range(0, 16, 2) if cfg.rsm else []:
        e(f"v_smfmac_f32_16x16x64_bf16 v[16:19], v[8:11], {vr(vO+4*j, 8)}, v20")
        e(f"v_smfmac_f32_16x16x64_bf16 v[4:7], v[12:15], {vr(vO+4*j, 8)}, v20")
    for j in range(16) if not cfg.rsm else []:
        e(f"{MF} v[16:19], {vr(vSEL+2)}, {vr(vO+4*j)}, {'0' if j == 0 else 'v[16:19]'}")
        e(f"{MF} v[4:7], {vr(vSEL)}, {vr(vO+4*j)}, {'0' if j == 0 else 'v[4:7]'}")
    e("v_cvt_pk_bf16_f32 v16, v16, v17"); e("v_cvt_pk_bf16_f32 v17, v18, v19")
    e("v_cvt_pk_bf16_f32 v18, v4, v5"); e("v_cvt_pk_bf16_f32 v19, v6, v7")
    for op in ("v_permlane32_swap_b32", "v_permlane16_swap_b32"):
        e(f"{op} v16, v18"); e(f"{op} v17, v19")
    e(f"buffer_store_dwordx4 v[16:19], v{vOUT}, {SOUT}, 0 offen {cfg.polout}")

def slow_path(cfg):
    L = []; e = L.append
    vM, vLs, vA, vX = vCI, vCI + 2, vCI + 4, vCI + 6
    e("L_slow:")
    for l in apply_sel(): e(l)
    e("s_waitcnt vmcnt(0)")
    for qt in range(2):
        for s in range(4): e(f"ds_read_b128 {Qreg(qt, s)}, v{vQR} offset:{qt*4096 + s*1024}")
    for i in range(64): e(f"v_mov_b32 v{vO+i}, 0")
    for qt in range(2):
        e(f"v_mov_b32 v{vM+qt}, 0xff7fffff"); e(f"v_mov_b32 v{vLs+qt}, 0")
    e(f"s_mov_b32 {sKO}, 0"); e(f"s_mov_b32 {sLOOP}, 0")
    e("L_sl:")
    e("s_waitcnt lgkmcnt(0)")
    e(f"s_bitcmp1_b32 {sLOOP}, 0")
    e("s_cbranch_scc1 L_sl2")
    e("s_barrier")
    for srdn, base, regs in ((SK, 0, [vKD + n for n in range(4)]), (SV, VBASE, [vVD + (n & 1) for n in range(4)])):
        e(f"s_add_u32 m0, {sW4K}, {base}")
        for n in range(4): e(f"buffer_load_dwordx4 v{regs[n]}, {srdn}, {sKO} offen offset:{1024*n} lds")
    e(f"s_sub_u32 {sKO}, {sKO}, {sMASK}"); e(f"s_and_b32 {sKO}, {sKO}, {sMASK}")
    e("s_waitcnt vmcnt(0)")
    e("s_barrier")
    e("L_sl2:")
    for kt in range(2):
        for s in range(4): e(f"ds_read_b128 {ar(aKF + (kt*4+s)*4)}, v{vKA+s} offset:{kt*4096}")
    for dt in range(8):
        for u in range(2): e(f"ds_read_b64_tr_b16 {ar(aVF + dt*4 + 2*u, 2)}, v{vVA+dt} offset:{u*4096}")
    for r in range(vKA, vKA + 12): e(f"v_xor_b32 v{r}, 0x2000, v{r}")
    for qt in range(2):
        for kt in range(2):
            d = vr(vS + kt * 4)
            for s in range(4): e(f"{MF} {d}, {ar(aKF + (kt*4+s)*4)}, {Qreg(qt, s)}, {'0' if s == 0 else d}")
        e(f"v_max3_f32 v{vX}, v{vS}, v{vS+1}, v{vM+qt}")
        for j in (2, 4, 6): e(f"v_max3_f32 v{vX}, v{vS+j}, v{vS+j+1}, v{vX}")
        for op in ("v_permlane32_swap_b32", "v_permlane16_swap_b32"):
            e(f"v_mov_b32 v{vX+1}, v{vX}"); e(f"{op} v{vX}, v{vX+1}"); e(f"v_max_f32 v{vX}, v{vX}, v{vX+1}")
        e(f"v_sub_f32 v{vA}, v{vM+qt}, v{vX}"); e(f"v_exp_f32 v{vA}, v{vA}"); e(f"v_mov_b32 v{vM+qt}, v{vX}")
        e(f"v_mul_f32 v{vLs+qt}, v{vA}, v{vLs+qt}")
        for j in range(8): e(f"v_sub_f32 v{vS+j}, v{vS+j}, v{vX}")
        for j in range(8): e(f"v_exp_f32 v{vS+j}, v{vS+j}")
        for j in range(8): e(f"v_add_f32 v{vLs+qt}, v{vLs+qt}, v{vS+j}")
        for j in range(4): e(f"v_cvt_pk_bf16_f32 v{vP+j}, v{vS+2*j}, v{vS+2*j+1}")
        for i in range(32): e(f"v_mul_f32 v{vO+32*qt+i}, v{vA}, v{vO+32*qt+i}")
        for dt in range(8):
            o = vr(vO + (qt * 8 + dt) * 4)
            e(f"{MF} {o}, {ar(aVF + dt*4)}, {vr(vP)}, {o}")
    e(f"s_add_u32 {sLOOP}, {sLOOP}, 1")
    e(f"s_cmp_lt_u32 {sLOOP}, 64")
    e("s_nop 7")
    e("s_cbranch_scc1 L_sl")
    for qt in range(2):
        for op in ("v_permlane32_swap_b32", "v_permlane16_swap_b32"):
            e(f"v_mov_b32 v{vX+1}, v{vLs+qt}"); e(f"{op} v{vLs+qt}, v{vX+1}"); e(f"v_add_f32 v{vLs+qt}, v{vLs+qt}, v{vX+1}")
    for r in list(range(vL, vL + 10)) + list(range(vL1, vL1 + 4)): e(f"v_mov_b32 v{r}, 0")
    e(f"v_mov_b32 v{vL}, v{vLs}"); e(f"v_mov_b32 v{vL1}, v{vLs+1}")
    for l in norm_head(0): e(l)
    for s in range(4):
        V, wr = norm_frag(cfg, 0, s, True)
        for l in V + [wr.split(' ; ')[0]]: e(l)
    W = cfg.wo_pre
    strip = lambda X: [x.split(' ; ')[0] for x in X]
    e("s_barrier")
    for i in range(4):
        for l in strip(flat(wo_dma(cfg, i, W[i]))): e(l)
    e("s_waitcnt vmcnt(0)"); e("s_barrier")
    for l in strip(a_reads(0, W) + a_reads(1, W)): e(l)
    e("s_waitcnt lgkmcnt(0)"); e("s_barrier")
    for i in range(4, len(W)):
        for l in strip(flat(wo_dma(cfg, i, W[i]))): e(l)
    e("s_waitcnt vmcnt(0)")
    e("s_nop 7")
    e("s_branch L_norm")
    L = finish(L)
    return ["L_fail:", f"s_cmp_eq_u32 {sMODE}, 0", "s_cbranch_scc0 L_fail_b", f"s_mov_b32 {sMODE}, 1",
            "s_waitcnt vmcnt(0) lgkmcnt(0)", "s_barrier", "s_nop 7", "s_branch L_top"] + L

def diag_dump(e, cfg):
    if not cfg.diag: return
    e("s_waitcnt vmcnt(0)")
    stamp(e, cfg, 7)
    if cfg.spin >= 0:
        if cfg.spin >= 100:
            e("s_getreg_b32 s3, hwreg(HW_REG_XCC_ID)"); e("s_sub_u32 s3, s3, s2"); e(f"s_add_u32 s3, s3, {cfg.spin - 100}"); e("s_and_b32 s3, s3, 7")
        else: e(f"s_sub_u32 s3, s{70+2*cfg.spin}, s{70+2*cfg.spin0}")
        e(f"s_mul_i32 s3, s3, {cfg.spinmul}")
        e("s_min_u32 s3, s3, 20000")
        e("L_spin:")
        e("s_memrealtime s[62:63]")
        e("s_waitcnt lgkmcnt(0)")
        e("s_sub_u32 s62, s62, s84")
        e("s_cmp_lt_u32 s62, s3")
        e("s_cbranch_scc1 L_spin")
        return
    e("s_lshl_b32 s3, s2, 2"); e(f"s_add_u32 s3, s3, {sW}"); e("s_lshl_b32 s3, s3, 7")
    e("s_add_u32 s3, s3, 0x8000000")
    e("v_mov_b32 v3, s3")
    if cfg.diag >= 2:
        e("s_lshl_b32 s62, s2, 2"); e(f"s_add_u32 s62, s62, {sW}"); e("s_lshl_b32 s62, s62, 9"); e("s_add_u32 s62, s62, 0x9000000")
        e(f"v_lshrrev_b32 v4, 2, v{vL16}")
        e(f"buffer_store_dword v126, v4, {SWS}, s62 offen")
        e(f"buffer_store_dword v127, v4, {SWS}, s62 offen offset:256")
    for k in range(11):
        e(f"v_mov_b32 v4, s{70+2*k}")
        e(f"buffer_store_dword v4, v3, {SWS}, 0 offen offset:{4*k}")
        e(f"v_mov_b32 v5, s{71+2*k}")
        e(f"buffer_store_dword v5, v3, {SWS}, 0 offen offset:{64+4*k}")

def roll(L):
    idx = [i for i, x in enumerate(L) if x.startswith('.iter')]
    if not idx: return L
    name = L[idx[0]].split()[1]
    strip = lambda X: [x.split(' ; ')[0].rstrip() for x in X]
    body = strip(L[idx[0] + 1: idx[1]])
    for a, b in zip(idx[1:-1], idx[2:]):
        other = strip(L[a + 1:b])
        assert len(other) == len(body)
        for k, (x, y) in enumerate(zip(body, other)):
            if x == y: continue
            assert x.startswith('s_waitcnt') and re.sub(r'\d+', '', x) == re.sub(r'\d+', '', y), (x, y)
            m = iter(min(int(p), int(q)) for p, q in zip(re.findall(r'\d+', x), re.findall(r'\d+', y)))
            body[k] = re.sub(r'\d+', lambda _: str(next(m)), x)
    return L[:idx[0]] + [".iter", name + ":"] + body + L[idx[-1] + 1:]

def finish(L, step=0, nchain=1):
    L = [(x.split()[1] + ":") if x.startswith('@label') else x.replace('@iter', '.iter').replace('v_nop_pad', 's_nop 3') for x in L]
    keep = {}; on = True; M = []
    for x in L:
        if x == '@noauto': on = False
        elif x == '@auto': on = True
        elif not on and (x.startswith('buffer_load') or x.startswith('s_load')):
            keep[f"s_setprio K{len(keep)}"] = x; M.append(f"s_setprio K{len(keep)-1}")
        else: M.append(x)
    L = M
    errs = frag_check(L)
    assert not errs, errs[:5]
    L = auto_wait(L)
    L, nn = hazard.fix(L)
    errs = hazard.check(L, verbose=('-v' in sys.argv))
    assert not errs, errs[:5]
    errs = lds_check(L)
    assert not errs, errs[:5]
    L = roll([keep.get(x, x) for x in L])
    L, bad = align.align8(L, promote=('noal' not in sys.argv), step=step, nchain=nchain)
    if '-v' in sys.argv: print("auto nops", nn, "misaligned", bad, "pads", align.align8.npads)
    return [x for x in L if x != '.iter']

def gen(cfg):
    L = []; e = L.append
    ool = []
    prologue(e, cfg)
    qproj(e, cfg)
    if cfg.diag != 8: stamp(e, cfg, 1)
    wo = attention(e, cfg, ool)
    stamp(e, cfg, 2)
    oproj(e, cfg, *wo)
    diag_dump(e, cfg)
    e("L_end:")
    e("s_endpgm")
    L = finish(L, cfg.wstep, cfg.wch)
    L += ["L_last:"]
    size = sum(align.size(x) for x in L)
    L += ool + slow_path(cfg)
    if '-v' in sys.argv: print("code bytes", size)
    assert size < 32768 or cfg.diag or not cfg.roll
    fmt = lambda X: "\n".join((x if x.endswith(':') else "  " + x.split(' ; ')[0].rstrip()) for x in X) + "\n"
    s = header(["@launch grid=(256,1,1) block=(256,1,1) lds=163840"])
    s += kernel_begin(KNAME) + fmt(L)
    s += rodata([descriptor(KNAME)])
    return s

if __name__ == "__main__":
    out = sys.argv[1]
    kw = {}
    for a in sys.argv[2:]:
        if '=' in a:
            k, v = a.split('=', 1)
            kw[k] = int(v) if v.lstrip('-').isdigit() else v.replace('+', ' ')
    open(out, "w").write(gen(Cfg(**kw)))
```

```python
import sys, struct, re
from gen_common import *
import hazard, align
from sched import Stream, auto_wait, lds_check, frag_check

MF = "v_mfma_f32_16x16x32_bf16"
def f2u(x): return struct.unpack('<I', struct.pack('<f', x))[0]
QSCALE = f2u(1.4426950408889634 * 128 ** -0.5)
def vr(a, n=4): return f"v[{a}:{a+n-1}]"
def ar(a, n=4): return f"a[{a}:{a+n-1}]"

SX, SK, SV, SWQ, SWO, SWS, SOUT, SDBG = (f"s[{i}:{i+3}]" for i in (4, 8, 12, 16, 20, 24, 28, 32))
sHKV, sP, sB, sBR, sW, sW4K, sROT = "s36", "s37", "s38", "s39", "s40", "s41", "s42"
sKO, sVO, sT0, sT1, sT2, sJ0, sJ1, sGRP, sMEM = "s43", "s44", "s45", "s46", "s47", "s58", "s59", "s60", "s61"
sT3, sT4 = "s62", "s63"
sXO, sXI, sWOB, sPST = "s48", "s49", "s50", "s51"
sWC = 52
sCNT = "s56"
vKA, vVA, vKD, vVD = 4, 8, 16, 20
vL16, vI15, vG = 22, 23, 24
vFD, vFP, vFL, vFQ = 28, 29, 30, 31
vS, vP, vCI, vQ, vO = 32, 48, 56, 72, 128
vT = 104
vGC, vPOLL, vLP, vONE1, vWD, vSEL = 72, 73, 74, 76, 80, 84
vWA = [116, 117, 118, 119, 124, 125]; vOUT = 79; sPLD = 's50'
vXA, vGA, vQR, vQW, vGW = 90, 94, 96, 98, 100
sKH, sHH, sSC, sSC2, sLOOP = "s58", "s59", "s68", "s[68:69]", "s48"
vL, vSA, vSA0, vSI = 104, 120, 77, 78
vPF, vPF2 = 31, 75; vL1 = 90; sSEL = 's37'; vOT = 74; vWT = 27; sWT = 's66'; vCK = 72; sMODE = 's101'; aSEN = 228; sCLR = 's67'; vFB = 29
sOLD1 = 's3'; sPA, sPB = 's66', 's67'
sMO, sOLD, sMK, sDONE, sGO, sGC, sOOB = 's92', 's93', 's94', 's95', 's64', 's65', 's66'
vPR = 99; aPR = 212; sMASK = "s57"
aQ, aKF, aVF, aL, aONE = 0, 64, 128, 192, 208
VBASE = 65536
FLAGB = 0x100000
OOB = 0x40000000
SPIN = 0x40000

class Cfg:
    NT = 32
    polkv = "nt"; polx = ""; polw = ""; polout = ""
    diag = False; spin = -1; spin0 = 0; spinmul = 1
    pf = 2; pft = 2; wosp = 2; wo0 = 8
    xmap = 1; rotg = 4; x1first = 0
    w1early = 1; qD = 14; qG = 6; qkv = 'K0|V0,K1|V1'
    krot = (9, 3, 20)
    soft = 0; soft0 = 1; l0 = 4
    wl = '2,2,2'; wx = 3; wt = 0; wtt = 0; wsh = 2; wn = 1; ops = '2,3,2'; T = 30; pst = 0
    f0 = 0; mode = 'M'; nclr = 3; qi = 'x0,w0'; qj = 'w1,x1'; qx = '1:x2,3:x3'; qA = 4; q7 = 0; q7r = 18; fin = 0; wstep = 4096; wch = 4; wpos = 0; bg = -1; bd = 1; xc = 3; xw = 4; xb = 4; nc = 3; nb = 4; nbd = 0; g1 = 22; g2 = 52; w2o = 44; w3 = 64; gy = 128; wa = 52; bo = 8; om = 'QHHH'; thr = 0; polv = None; ntf = 4; so = 5; ob = 0; qko = 0; pfpos = 0; qs = 'x0,a0|S1|S2|b0,w1,x1|R|W'; n1f = 1; rsm = 1; cap = 0; wb = '15,16'; home = 2; rf = 6; bk = 20; cu = 0; n2 = 0; w2 = 60; ps = 4; tch = 6; tout = 2; fb = 0; qm = 0; psp = 0; f0d = 64; tann = 1; n1 = 0; p2 = 1; pp = 4; f0p = -60
    padA = 0; padB = 0; padT = 4
    off = 6; fkv = 'K2,V2'; fden = 8; b0 = 24; polp = 'sc1'; omax = 8
    expoff = 8; rdend = 7; gc = 100; roll = 1; mk = 5; dmaalone = 1; smf = 1; psw = 1; cvtd = 0
    def __init__(self, **kw):
        self.__dict__.update(kw)
        if self.smf and 'expoff' not in kw: self.expoff = 7
        self.gA, self.gB, self.gS = kunit(self.NT - 1), vunit(self.NT - 1), vunit(self.NT - 2)
        self.wl = self.wl.split(','); self.wb = [int(x) for x in self.wb.split(',')]
        if isinstance(self.krot, str): self.krot = tuple(int(x) for x in self.krot.split(','))

def stamp_l(cfg, k):
    if k == 9: return []
    return [f"s_memrealtime s[{70+2*k}:{71+2*k}]", "s_memtime s[96:97]", "s_waitcnt lgkmcnt(0)", f"s_mov_b32 s{71+2*k}, s96"] if cfg.diag else []
def lstamp(idx, r=254):
    return ["s_memrealtime s[98:99]", "s_memtime s[96:97]", "s_waitcnt lgkmcnt(0)", f"v_writelane_b32 v{r}, s98, {idx}", f"v_writelane_b32 v{r+1}, s96, {idx}"]
def stamp(e, cfg, k):
    for l in stamp_l(cfg, k): e(l)
def spread(o): return (o & 0x1fff) | ((o >> 13) << 14)
def srd(e, base, size):
    n = int(base[2:base.index(':')])
    e(f"s_mov_b32 s{n+2}, {size}"); e(f"s_mov_b32 s{n+3}, 0x20000")

def code_prefetch(e, cfg):
    e("s_getpc_b64 s[88:89]")
    e("L_pf:")
    e("s_mov_b32 s90, L_last-L_pf"); e("s_mov_b32 s91, 0x20000")
    e(f"s_lshr_b32 {sT3}, s2, 3"); e(f"s_mul_i32 {sT3}, {sT3}, 1280")
    e("v_cmp_gt_u32 vcc, 10, v0")
    e(f"v_lshl_add_u32 v2, v0, 7, {sT3}")
    e(f"v_cndmask_b32 v{vPF}, 2.0, v2, vcc")
    e(f"buffer_load_dword v{vPF2}, v{vPF}, s[88:91], 0 offen")

def prologue(e, cfg):
    stamp(e, cfg, 0)
    e("s_cmp_ge_u32 s2, 256")
    e("s_cbranch_scc1 L_end")
    e(f"s_mov_b32 {sMODE}, 0")
    e("L_top:")
    if cfg.pfpos == -1: code_prefetch(e, cfg)
    e(f"s_bfe_u32 {sBR}, s2, 0x10002")
    e(f"s_mul_i32 {sT0}, {sBR}, 40")
    e(f"s_add_u32 s62, s0, {sT0}")
    e("s_addc_u32 s63, s1, 0")
    e("s_load_dwordx8 s[48:55], s[62:63], 0")
    e("s_load_dwordx2 s[56:57], s[62:63], 32")
    e("s_load_dwordx4 s[64:67], s[0:1], 80")
    e("s_load_dwordx2 s[24:25], s[0:1], 96")
    if cfg.pfpos == 0: code_prefetch(e, cfg)
    T = vT
    e(f"v_readfirstlane_b32 {sW}, v0")
    e(f"v_and_b32 v{vI15}, 15, v0")
    e(f"v_bfe_u32 v{vG}, v0, 4, 2")
    e(f"s_lshr_b32 {sB}, s2, 5")
    e(f"s_bfe_u32 {sT1}, s2, 0x20003")
    e(f"s_lshl_b32 {sW4K}, {sW}, 6")
    e(f"s_lshr_b32 {sW}, {sW}, 6")
    e(f"v_xor_b32 v3, v{vG}, v{vI15}")
    e(f"v_lshlrev_b32 v{vKD}, 4, v3")
    e(f"v_lshl_add_u32 v{T}, v{vG}, 10, v{vKD}")
    e(f"v_lshlrev_b32 v3, 1, v{vG}")
    e(f"v_xor_b32 v3, v3, v{vI15}")
    e(f"v_lshlrev_b32 v{vVD}, 4, v3")
    e(f"v_lshl_add_u32 v{T+8}, v{vG}, 13, v{vVD}")
    for n in range(1, 4):
        e(f"v_xor_b32 v3, {64*n}, v{T}"); e(f"v_add_u32 v{T+n}, {3072*n}, v3")
    e(f"v_xor_b32 v3, 0x80, v{T+8}")
    e(f"v_add_u32 v{T+9}, {65536-1024}, v3"); e(f"v_add_u32 v{T+10}, {2*(65536-1024)}, v{T+8}"); e(f"v_add_u32 v{T+11}, {3*(65536-1024)}, v3")
    e(f"s_add_u32 {sROT}, {sT1}, {sB}"); e(f"s_lshl_b32 {sROT}, {sROT}, {1 if cfg.rotg == 4 else 2}")
    e(f"s_and_b32 {sMEM}, s2, 3"); e(f"s_lshl2_add_u32 {sMEM}, {sMEM}, {sT1}")
    e(f"s_and_b32 {sKH}, {sW}, 1"); e(f"s_lshr_b32 {sHH}, {sW}, 1")
    e(f"s_lshl2_add_u32 {sT0}, {sB}, {sW}"); e(f"s_lshl_b32 {sT0}, {sT0}, 14")
    e(f"s_lshl3_add_u32 {sT2}, {sHH}, {sKH}"); e(f"s_lshl_b32 {sT2}, {sT2}, 6"); e(f"s_add_u32 {sT2}, {sT2}, {sMEM}"); e(f"s_lshl_b32 {sT1}, {sT2}, 9")
    srd(e, SX, 16384)
    e(f"s_sub_u32 s18, 4194304, {sT1}"); e("s_mov_b32 s19, 0x20000")
    e("s_waitcnt lgkmcnt(0)")
    stamp(e, cfg, 8)
    e(f"s_add_u32 s4, s48, {sT0}"); e("s_addc_u32 s5, s49, 0")
    e(f"s_add_u32 s16, s54, {sT1}"); e("s_addc_u32 s17, s55, 0")

def flags_setup(e, cfg):
    e(f"s_lshl_b32 {sT0}, {sGRP}, 14"); e(f"s_lshl_b32 {sT1}, {sGRP}, 22"); e(f"s_add_u32 {sT0}, {sT0}, {sT1}")
    e(f"s_add_u32 {sT0}, {sT0}, 0x202000")
    e(f"s_lshl_b32 {sT1}, {sMEM}, 9"); e(f"s_add_u32 {sT1}, {sT1}, {sT0}")
    e(f"s_lshl_b32 {sT3}, {sW}, 7"); e(f"s_add_u32 {sMO}, {sT3}, {sT1}")
    e(f"s_cmp_eq_u32 {sMODE}, 0")
    e("s_cbranch_scc0 L_old")
    e(f"s_xor_b32 {sSEL}, {sMO}, 0x2000")
    e(f"s_load_dword {sOLD}, s[24:25], {sMO} glc")
    e(f"s_load_dword {sOLD1}, s[24:25], {sSEL} glc")
    e(f"s_cmp_eq_u32 {sW}, 0")
    e("s_cbranch_scc0 L_old")
    e(f"s_lshl_b32 {sPA}, {sGRP}, 22"); e(f"s_mul_i32 {sPB}, {sMEM}, 0x8100"); e(f"s_add_u32 {sPA}, {sPA}, {sPB}"); e(f"s_xor_b32 {sPB}, {sPA}, 0x2000")
    e(f"s_load_dword {sMK}, s[24:25], {sPA} glc")
    e(f"s_load_dword {sGC}, s[24:25], {sPB} glc")
    e("L_old:")
    e(f"s_lshl_b32 {sT3}, {sW}, 11"); e(f"s_add_u32 {sT3}, {sT3}, {sT0}")
    e("v_cmp_gt_u32 vcc, 4, v27")
    e(f"v_lshl_add_u32 v3, v27, 9, {sT3}")
    e(f"v_cndmask_b32 v{vFD}, 2.0, v3, vcc")
    e(f"s_lshl_b32 {sT3}, {sW}, 2"); e(f"s_xor_b32 {sT3}, {sT3}, {sMEM}")
    e(f"v_xor_b32 v3, {sT3}, v27")
    e(f"v_lshlrev_b32 v{vFB}, v3, 1")

def prologue2(e, cfg):
    e(f"s_lshr_b32 {sHKV}, {sMEM}, 1")
    e(f"s_lshl3_add_u32 {sGRP}, {sBR}, {sB}")
    e("v_and_b32 v27, 63, v0")
    e(f"v_lshlrev_b32 v{vL16}, 4, v27")
    e("s_add_u32 s24, s24, 0x1fffff"); e("s_addc_u32 s25, s25, 0"); e("s_and_b32 s24, s24, 0xffe00000")
    srd(e, SWS, 268435456 - 0x200000)
    e(f"s_lshl_b32 {sT0}, {sB}, 3")
    e(f"s_add_u32 {sT0}, {sT0}, {sHKV}")
    e(f"s_lshl_b32 {sT0}, {sT0}, 19")
    e(f"s_add_u32 s8, s50, {sT0}"); e("s_addc_u32 s9, s51, 0"); srd(e, SK, 524288)
    e(f"s_add_u32 s12, s52, {sT0}"); e("s_addc_u32 s13, s53, 0"); srd(e, SV, 524288)
    e(f"s_lshl_b32 {sT0}, {sMEM}, 18")
    e(f"s_add_u32 s20, s56, {sT0}"); e("s_addc_u32 s21, s57, 0"); srd(e, SWO, 262144)
    e("s_mov_b32 s28, s64"); e("s_mov_b32 s29, s65"); srd(e, SOUT, 1048576)
    e("s_mov_b32 s32, s66"); e("s_mov_b32 s33, s67"); srd(e, SDBG, 256)
    if cfg.tch:
        e(f"s_lshl_b32 {sT0}, {sGRP}, 22"); e(f"s_add_u32 {sT1}, {sT0}, 0x300000")
        for k, (sr, so) in enumerate(((SK, 0), (SV, 0), (SWO, 0), (SWS, sT1))):
            e(f"buffer_load_dword v{vP+k}, off, {sr}, {so}")
    ch, cb, cr = cfg.krot
    e(f"s_mul_i32 {sKO}, {sHKV}, {ch}"); e(f"s_mul_i32 {sT0}, {sB}, {cb}"); e(f"s_add_u32 {sKO}, {sKO}, {sT0}")
    e(f"s_mul_i32 {sT0}, {sBR}, {cr}"); e(f"s_add_u32 {sKO}, {sKO}, {sT0}")
    tb = [k for k in range(12, 19) if k not in cfg.wb]
    e(f"s_mov_b32 {sMASK}, {hex(sum(1 << k for k in tb))}")
    runs = {}
    for i, k in enumerate(tb): runs.setdefault(k - i, []).append(k)
    for idx, (sh, ks) in enumerate(runs.items()):
        d = sVO if idx == 0 else sT0
        e(f"s_lshl_b32 {d}, {sKO}, {sh}"); e(f"s_and_b32 {d}, {d}, {hex(sum(1 << k for k in ks))}")
        if idx: e(f"s_or_b32 {sVO}, {sVO}, {sT0}")
    e(f"s_mov_b32 {sKO}, {sVO}")
    for c in range(4):
        e(f"s_add_u32 {sT0}, {sB}, {c}"); e(f"s_and_b32 {sT0}, {sT0}, 3"); e(f"s_lshl_b32 s{sWC+c}, {sT0}, 8")
    e(f"s_lshl_b32 {sT0}, {sKH}, {cfg.wb[0]}"); e(f"s_lshl_b32 {sT1}, {sHH}, {cfg.wb[1]}"); e(f"s_or_b32 {sT0}, {sT0}, {sT1}")
    e(f"s_lshl_b32 {sT1}, {sW}, 14")
    e(f"v_lshl_add_u32 v3, v{vG}, 10, {sT1}"); e(f"v_add_u32 v{vWD}, v3, v{vVD}")
    e(f"v_xor_b32 v3, 0x80, v{vWD}")
    e(f"v_add_u32 v{vWD+1}, 3072, v3"); e(f"v_add_u32 v{vWD+2}, 6144, v{vWD}"); e(f"v_add_u32 v{vWD+3}, 9216, v3")
    e(f"v_lshl_add_u32 v3, v{vG}, 8, {sT0}")
    e(f"v_add_u32 v{vKD}, v{vKD}, v3"); e(f"v_add_u32 v{vVD}, v{vVD}, v3")
    for n in range(1, 4): e(f"v_xor_b32 v{vKD+n}, {64*n}, v{vKD}")
    e(f"v_xor_b32 v{vVD+1}, 0x80, v{vVD}")
    e(f"v_xor_b32 v3, v{vG}, v{vI15}")
    e(f"v_lshlrev_b32 v25, 8, v{vI15}")
    for s in range(4):
        e(f"v_xor_b32 v26, {4*s}, v3")
        e(f"v_lshl_add_u32 v{vKA+s}, v26, 4, v25")
    e(f"v_lshrrev_b32 v3, 2, v{vI15}")
    e(f"v_lshl_add_u32 v3, v{vG}, 2, v3")
    e("v_and_b32 v25, 7, v3")
    e("v_lshlrev_b32 v3, 8, v3")
    e(f"v_and_b32 v26, 3, v{vI15}")
    e("v_lshl_add_u32 v3, v26, 3, v3")
    e(f"v_add_u32 v3, {VBASE}, v3")
    for dt in range(8):
        e(f"v_xor_b32 v26, {dt}, v25")
        e(f"v_lshl_add_u32 v{vVA+dt}, v26, 5, v3")

def x_dma(cfg, j):
    pre = [f"s_add_u32 {sT2}, {sROT}, {2*j}", f"s_and_b32 {sT2}, {sT2}, 7", f"s_lshl_b32 {sT2}, {sT2}, 7", f"s_add_u32 m0, {sW4K}, {j*16384}"]
    return [(pre if n == 0 else [], f"buffer_load_dwordx4 v{vT+n}, {SX}, {sT2} offen offset:{1024*n} {cfg.polx} lds") for n in range(4)]

def wq_dma(cfg, i, heads=(0, 1)):
    T = vT; G = []
    for hh in heads:
        for n in range(4):
            pre = []
            if n == 0:
                if hh == 0: pre += [f"s_add_u32 {sT4}, {sROT}, {i}", f"s_and_b32 {sT4}, {sT4}, 7", f"s_lshl_b32 {sT4}, {sT4}, 19"]
                else: pre += [f"s_add_u32 {sT4}, {sT4}, 256"]
                pre += [f"s_add_u32 m0, {sW4K}, {VBASE + hh*49152 + (i%3)*16384}"]
            G.append((pre, f"buffer_load_dwordx4 v{T+8+n}, {SWQ}, {sT4} offen offset:{1024*n} {cfg.polw} lds ; tag=W{i} loc=u{4 + hh*3 + i%3}"))
    return G

def kunit(t): return t & 3
def vunit(t): return 4 + ((t + 2) & 3)

def kv_dma(cfg, which, t):
    joint = cfg.off == 6 and t >= 3
    so = sKO if which == 'K' or joint else sVO
    u = kunit(t) if which == 'K' else vunit(t)
    pol = cfg.polkv if which == 'K' or cfg.polv is None else cfg.polv
    if t < cfg.ntf: pol = ''
    G = []
    for n in range(4):
        pre = []
        if n == 0:
            if t > 0 and not (joint and which == 'V'):
                pre.append(f"s_sub_u32 {so}, {so}, {sMASK}")
                pre.append(f"s_and_b32 {so}, {so}, {sMASK}")
            pre.append(f"s_add_u32 m0, {sW4K}, {u*16384}" if u else f"s_and_b32 m0, {sW4K}, 0xffff")
        v = vKD + n if which == 'K' else vVD + (n & 1)
        G.append((pre, f"buffer_load_dwordx4 v{v}, {SK if which == 'K' else SV}, {so} offen offset:{1024*n} {pol} lds"))
    return G

def wo_dma(cfg, i, u):
    G = []
    for n in range(4):
        pre = []
        if n == 0:
            pre.append(f"s_xor_b32 {sT4}, s{sWC + (i >> 2)}, {(i & 3) * 65536}")
            pre.append(f"s_add_u32 m0, {sW4K}, {u*16384}")
        G.append((pre, f"buffer_load_dwordx4 v{vWD+n}, {SWO}, {sT4} offen offset:{1024*n} {cfg.polw} lds ; tag=O{i} loc=u{u}" + (",g0,g1" if u == cfg.gA else ",ck" if u == cfg.gS else "")))
    return G

def flat(G):
    L = []
    for pre, d in G:
        L += pre; L.append(d)
    return L

def place_dma(st, G, g0, g1, alone=0):
    empty = [g for g in range(g0 + len(G[0][0]), g1 + 1) if st.used[g] == 0]
    if alone == 1 and len(empty) >= len(G):
        ch = [empty[(i * len(empty)) // len(G)] for i in range(len(G))]
        for (_, d), g in zip(G, ch):
            st.force(g, d); st.used[g] = 2
    elif alone == 2:
        a0 = g0 + len(G[0][0]); ch = []; m = len(G)
        for i, (_, d) in enumerate(G):
            lo = max(a0 + (i * (g1 - a0 + 1)) // m, ch[-1] + 1 if ch else 0); hi = max(lo, a0 + ((i + 1) * (g1 - a0 + 1)) // m - 1)
            gg = min(range(lo, hi + 1), key=lambda t: (st.used[t] + 2 * any(y.startswith('v_exp') for y in st.fill[t]) + 9 * (t in st.block), t))
            st.force(gg, d); ch.append(gg)
    else:
        ch = st.spread([d for _, d in G], g0 + len(G[0][0]), g1)
    prev = g0 - 1
    isexp = lambda t: any(y.startswith('v_exp') for y in st.fill[t])
    nos = lambda t: not any(y.startswith('s_') or y.startswith('@') for y in st.fill[t])
    for (pre, d), g in zip(G, ch):
        lo = max(prev + 1, g0)
        k = len(pre)
        assert not pre or g >= lo, (g, lo, pre)
        hi = max(lo, g - 1); pos = []
        for idx in range(k - 1, -1, -1):
            cand = [t for t in range(hi, lo + idx - 1, -1) if nos(t) and (align.size(pre[idx]) == 8 or isexp(t))]
            t = cand[0] if cand else min(max(lo, g - k + idx), hi)
            pos.append(t); hi = max(lo, t - 1)
        for s, t in zip(pre, reversed(pos)): st.force(t, s)
        prev = g
    return ch

def race(e, cfg, filler):
    e(f"s_or_b32 {sT0}, {sMODE}, {sW}")
    e("s_cbranch_scc1 L_norace")
    e("s_waitcnt lgkmcnt(0)")
    e(f"s_not_b32 {sDONE}, {sGC}")
    e("@noauto")
    e(f"s_load_dword {sMK}, s[24:25], {sPA} glc")
    e(f"s_load_dword {sDONE}, s[24:25], {sPB} glc")
    e("@auto")
    e("s_waitcnt lgkmcnt(1)")
    e("L_norace:")
    for l in filler: e(l)
    e(f"s_cmp_lg_u32 {sDONE}, {sGC}")
    if cfg.home < 2: e(f"s_cmp_eq_u32 {sBR}, {cfg.home}")
    e(f"s_cselect_b32 {sT0}, 1, 0x10001")
    e(f"v_mov_b32 v{vONE1}, {sT0}")

def apply_sel():
    return [f"s_xor_b32 {sMO}, {sMO}, {sSEL}", f"s_xor_b32 {sPST}, {sPST}, {sSEL}", f"v_xor_b32 v{vFD}, {sSEL}, v{vFD}", f"v_xor_b32 v{vFL}, {sSEL}, v{vFL}"]

def warm(e, cfg):
    e("s_mov_b64 exec, 0")
    for k in range(1, cfg.wch):
        e(f"s_cmp_eq_u32 {sW}, {k}")
        e(f"s_cbranch_scc1 L_w{k}")
    e("s_branch L_w0")
    e(".p2align 12")
    e("L_wdone:")
    e("s_mov_b64 exec, -1")

def qproj(e0, cfg):
    T = vT
    def xw(S):
        G = []
        for it in S.split(','):
            if it: G += x_dma(cfg, int(it[1])) if it[0] == 'x' else wq_dma(cfg, int(it[1]), {'w': (0, 1), 'a': (0,), 'b': (1,)}[it[0]])
        return G
    SU = []; e = SU.append
    if cfg.pfpos == 1: code_prefetch(e, cfg)
    prologue2(e, cfg)
    flags_setup(e, cfg)
    vX, vW = vXA, T + 16
    e(f"s_mul_i32 {sT1}, {sHH}, 49152"); e(f"s_lshl_b32 {sT0}, {sKH}, 7")
    for k in range(4):
        e(f"v_xor_b32 v{vW+k}, {sT0}, v{vVA+k}")
        e(f"v_add_u32 v{vW+k}, {sT1}, v{vW+k}")
    e(f"s_lshl_b32 {sT0}, {sKH}, 13")
    for s in range(4):
        e(f"v_mov_b32 v{vX+s}, v{vKA+s}")
        e(f"v_add_u32 v{vKA+s}, {sT0}, v{vKA+s}")
    e(f"s_lshl_b32 {sT3}, {sW}, 6")
    for k in range(2):
        e(f"v_xor_b32 v{vWA[2+k]}, {sT3}, v{vVA+k}")
        e(f"v_subrev_u32 v{vWA[k]}, {VBASE}, v{vWA[2+k]}")
        e(f"v_add_u32 v{vWA[4+k]}, {VBASE}, v{vWA[2+k]}")
    for dt in range(8): e(f"v_add_u32 v{vVA+dt}, {sT0}, v{vVA+dt}")
    e(f"s_lshl_b32 {sT1}, {sHH}, 14"); e(f"s_add_u32 {sT1}, {sT1}, {8*16384}")
    e(f"s_add_u32 {sT3}, {sT1}, {sT0}")
    e(f"v_add_u32 v{vQR}, {sT3}, v{vL16}")
    e(f"v_xor_b32 v{vQR+1}, 0x2000, v{vQR}")
    e(f"s_lshl_b32 {sT0}, {sKH}, 11"); e(f"s_add_u32 {sT1}, {sT1}, {sT0}")
    e(f"v_lshrrev_b32 v3, 1, v{vG}"); e(f"v_lshl_add_u32 v3, v3, 8, {sT1}")
    e(f"v_lshl_add_u32 v3, v{vI15}, 4, v3")
    e(f"v_and_b32 v25, 1, v{vG}"); e(f"v_lshl_add_u32 v{vQW}, v25, 3, v3")
    e("@split")
    gA, gB, gS = cfg.gA, cfg.gB, cfg.gS
    e(f"v_add_u32 v{vGA}, {gA*16384}, v{vL16}"); e(f"v_add_u32 v{vGA+1}, {gB*16384}, v{vL16}")
    e(f"s_mul_i32 {sT0}, {sHH}, {(gB - gA)*16384}"); e(f"s_lshl_b32 {sT1}, {sKH}, 11"); e(f"s_add_u32 {sT0}, {sT0}, {sT1}")
    e(f"v_add_u32 v{vGW}, {sT0}, v{vGA}"); e(f"v_xor_b32 v{vGW+1}, 0x800, v{vGW}")
    e(f"s_lshl_b32 {sT0}, {sW}, 10"); e(f"s_add_u32 {sT0}, {sT0}, {gS*16384}")
    e(f"v_add_u32 v{vGW+2}, {sT0}, v{vL16}"); e(f"v_xor_b32 v{vGW+3}, 0x400, v{vGW+2}")
    e(f"v_add_u32 v{vCK+1}, {gS*16384}, v{vL16}"); e(f"v_lshl_add_u32 v{vCK}, {sW}, 2, v{vCK+1}")
    e(f"s_lshl_b32 {sPST}, {sGRP}, 22")
    e(f"s_lshl4_add_u32 {sT0}, {sW}, {sMEM}"); e(f"s_lshl_b32 {sT0}, {sT0}, 15"); e(f"s_add_u32 {sPLD}, {sPST}, {sT0}")
    e(f"s_lshl_b32 {sT1}, {sW}, 17"); e(f"s_add_u32 {sPST}, {sPST}, {sT1}")
    e(f"s_lshl_b32 {sT1}, {sW}, 2"); e(f"s_xor_b32 {sT1}, {sT1}, {sMEM}")
    e(f"s_and_b32 {sT0}, {sT1}, 8"); e(f"s_add_u32 {sT1}, {sT1}, {sT0}"); e(f"s_lshl_b32 {sT1}, {sT1}, 10")
    e(f"s_add_u32 {sPST}, {sPST}, {sT1}")
    e(f"s_lshl_b32 {sT3}, {sB}, 17")
    e(f"s_and_b32 {sT0}, {sMEM}, 3"); e(f"s_lshl_b32 {sT0}, {sT0}, 15"); e(f"s_add_u32 {sT3}, {sT3}, {sT0}")
    e(f"s_lshl_b32 {sT0}, {sBR}, 10"); e(f"s_add_u32 {sT3}, {sT3}, {sT0}")
    e(f"s_add_u32 {sT0}, {sW}, {sB}"); e(f"s_and_b32 {sT0}, {sT0}, 3"); e(f"s_lshl_b32 {sT0}, {sT0}, 8"); e(f"s_add_u32 {sT3}, {sT3}, {sT0}")
    e(f"s_lshr_b32 {sT0}, {sMEM}, 2"); e(f"s_lshl_b32 {sT0}, {sT0}, 6"); e(f"s_add_u32 {sT3}, {sT3}, {sT0}")
    if cfg.tch == 5: e(f"s_load_dword {sGC}, s[28:29], {sT3} glc")
    e(f"v_lshl_add_u32 v3, v{vI15}, 11, {sT3}")
    e(f"v_lshl_add_u32 v{vOUT}, v{vG}, 4, v3")
    e(f"s_lshl_b32 {sT1}, {sGRP}, 4")
    e("v_cmp_eq_u32 vcc, 0, v0")
    e(f"v_mov_b32 v27, {sT1}")
    e(f"v_cndmask_b32 v{vOT}, 2.0, v{vOUT}, vcc")
    e("v_cndmask_b32 v26, 2.0, v27, vcc")
    e(f"v_add_u32 v{vFL}, {sPLD}, v{vL16}")
    e(f"s_lshl_b32 {sGO}, {sGRP}, 4")
    e("@s3")
    e("v_mov_b32 v3, 0x3f803f80")
    if cfg.smf:
        e(f"v_xor_b32 v25, v{vI15}, v{vG}"); e("v_and_b32 v25, 2, v25")
        e("v_cmp_eq_u32 vcc, 0, v25")
        e("v_cndmask_b32 v3, 0, v3, vcc")
        e(f"v_and_b32 v25, 1, v{vI15}"); e(f"v_mul_u32_u24 v25, 0xaaaa, v25"); e(f"v_add_u32 v{vSI}, 0x4444, v25")
    e(f"v_mov_b32 v{vSA0}, v3")
    e(f"s_mov_b32 {sSC}, {hex(QSCALE)}"); e(f"s_mov_b32 s69, {hex(QSCALE)}")
    e(f"v_and_b32 v3, 3, v{vI15}"); e(f"v_xor_b32 v25, v3, v{vG}")
    e("v_lshlrev_b32 v3, 8, v3"); e(f"v_lshl_add_u32 v{vPR}, v25, 4, v3")
    e = e0
    k = SU.index("@split"); S1, S2 = SU[:k], SU[k + 1:]
    SEL = []; selector(SEL.append, vSEL, 2)
    k = S2.index("@s3"); S2, S3 = S2[:k], (SEL + S2[k + 1:])
    S3, S4 = S3[:cfg.rf], S3[cfg.rf:]
    for step in cfg.qs.split('|'):
        if step == 'S1':
            for l in S1: e(l)
        elif step == 'S2':
            for l in S2: e(l)
        elif step == 'R':
            race(e, cfg, S3)
            for l in S4: e(l)
        elif step == 'W':
            if cfg.wstep: warm(e, cfg)
        else:
            for l in flat(xw(step)): e(l)
    if cfg.diag == 3:
        for l in lstamp(1): e(l)
    st = Stream()
    D = cfg.qD
    for _ in range(D): st.add(None)
    def xfrag(i, ks, q4): return (96, 192, 64)[i % 3] + (ks * 4 + q4) * 4
    def wfrag(i, ks, k): return (160, 224, 128)[i % 3] + (ks * 4 + k) * 4
    def acc(q4, k): return vO + (q4 * 4 + k) * 4
    done = {}
    order = [(i, ks, k, q4) for i in range(6) for ks in range(2) for k in range(4) for q4 in range(4)]
    nA = cfg.qA
    order += [(6, ks, k, q4) for ks in range(2) for k in range(4) for q4 in range(nA)]
    n7 = len(order)
    order += [(i, ks, k, q4) for q4 in range(4) for k in range(4) for i in ((7,) if q4 < nA else (6, 7)) for ks in range(2)]
    for i, ks, k, q4 in order:
        a = vr(acc(q4, k))
        c = "0" if (i == 0 and ks == 0) else a
        done[q4, k] = st.add(f"{MF} {a}, {ar(wfrag(i, ks, k))}, {ar(xfrag(i, ks, q4))}, {c} ; use=w{i}_{ks}_{k},x{i}_{ks}_{q4}")
    xs = dict(it.split(':') for it in cfg.qx.split(',') if it)
    latex = []
    for i in range(8):
        g0 = 32 * i if i < 7 else n7 - cfg.q7
        g1 = g0 + 32 if i != 6 else n7 - cfg.q7
        need = f"W{i}" + (f",X{i>>1}" if i % 2 == 0 else "")
        st.force(g0, f"@vmwait {need} lgkm0")
        st.force(g0, "s_barrier")
        if cfg.diag == 3:
            for l in lstamp(i + 2): st.force(g0, l)
        xr = lambda ks, q4: f"ds_read_b128 {ar(xfrag(i, ks, q4))}, v{vX + 2*(i&1) + ks} offset:{(i>>1)*16384 + q4*4096}"
        wr = lambda ks, k: [f"ds_read_b64_tr_b16 {ar(wfrag(i, ks, k) + 2*u, 2)}, v{vW+k} offset:{(i%3)*16384 + ks*8192 + u*4096}" for u in range(2)]
        rd = []
        if i < 7:
            for ks in range(2):
                rd += wr(ks, 0) + [xr(ks, q4) for q4 in range(4 if i < 6 else nA)] + wr(ks, 1) + wr(ks, 2) + wr(ks, 3)
            if i == 6: latex = [xr(ks, q4) for q4 in range(nA, 4) for ks in range(2)]
        else:
            rd = [xr(0, 0), xr(1, 0)] + sum((wr(ks, k) for k in range(4) for ks in range(2)), []) + [xr(ks, q4) for q4 in range(1, 4) for ks in range(2)] + latex
        G = wq_dma(cfg, i + 2) if i + 2 < 8 and f'w{i+2}' not in cfg.qs else []
        G += xw(xs.get(str(i), ''))
        qk = cfg.qkv.split('|')
        for it in qk[i - 8 + len(qk)].split(',') if i >= 8 - len(qk) else []:
            if it: G += kv_dma(cfg, it[0], int(it[1:]))
        if G: place_dma(st, G, g0 + 1, g1 - 4 if i != 6 else g1 - 1)
        ch = st.spread(rd, g0, g1 - 1 - cfg.qG if i < 7 else g0 + cfg.q7r)
    gb = ch[-1] + 6
    st.force(gb, "@vmwait _ lgkm0"); st.force(gb + 1, "s_barrier")
    def fin(q4, k, pk):
        a = acc(q4, k)
        if pk: L = [f"v_pk_mul_f32 {vr(a+j, 2)}, {vr(a+j, 2)}, {sSC2}" for j in (0, 2)]
        else: L = [f"v_mul_f32 v{a+j}, {sSC}, v{a+j}" for j in range(4)]
        L += [f"v_cvt_pk_bf16_f32 v{a+j}, v{a+2*j}, v{a+2*j+1}" for j in range(2)]
        return L, f"ds_write_b64 v{vQW}, {vr(a, 2)} offset:{(q4*4 + (k>>1))*1024 + (k&1)*512}"
    tiles = [(q4, k) for q4 in range(4) for k in range(4)]
    G = []
    for it in cfg.fkv.split(','):
        if it: G += kv_dma(cfg, it[0], int(it[1:]))
    if cfg.fin and G:
        place_dma(st, G, max(gb + 2, 32 * 7 + 28 - 32 + cfg.qA * 8), st.n() - 1); G = []
    g = 0; gw = gb + 1; nt = 0
    while True:
        q4, k = tiles[nt]
        g = max(g, done[q4, k] + 4)
        if max(g, gw) + 4 >= st.n(): break
        V, wr = fin(q4, k, False)
        for x in V: g = st.put(g, x)
        gw = st.put(max(g, gw) + 1, wr)
        nt += 1
    if '-v' in sys.argv: print("Q tiles finalised in stream:", nt)
    for l in st.lines(): e(l)
    if cfg.diag == 3:
        for l in lstamp(10): e(l)
    cfg.pre_issued = set(it for part in (cfg.qkv + '|' + cfg.fkv).split('|') for it in part.split(',') if it)
    rest = tiles[nt:]
    pend = None
    for idx, (q4, k) in enumerate(rest):
        V, wr = fin(q4, k, True)
        for x in V: e(x)
        if pend: e(pend)
        pend = wr
        while G and len(G) > (len(rest) - 1 - idx) * cfg.fden // 12:
            for x in flat(G[:1]): e(x)
            G = G[1:]
    e(pend)
    if cfg.diag == 3:
        for l in lstamp(11): e(l)

def Qreg(qt, s): return ar(aQ + (qt * 4 + s) * 4)
def k_reads(t):
    return [f"ds_read_b128 {ar(aKF + (t & 1)*32 + (kt*4+s)*4)}, v{vKA+s} offset:{kunit(t)*16384 + kt*4096}" for kt in range(2) for s in range(4)]
def v_reads(t):
    return [f"ds_read_b64_tr_b16 {ar(aVF + (t & 1)*32 + dt*4 + 2*u, 2)}, v{vVA+dt} offset:{vunit(t)*16384 - VBASE + u*4096}" for dt in range(8) for u in range(2)]

def afrag(j, kk, k): return (192, 224, 128, 160)[j & 3] + (kk * 2 + k) * 4
def a_reads(j, wo_unit):
    rd = []
    for kk in range(4):
        i = 2 * j + (kk >> 1); u = wo_unit[i]
        for k in range(2):
            for h in range(2):
                rd.append(f"ds_read_b64_tr_b16 {ar(afrag(j, kk, k) + 2*h, 2)}, v{vWA[2*(u>>2) + k]} offset:{(u&3)*16384 + (kk&1)*8192 + h*4096}")
    return rd

def selector(e, base, tmp):
    e(f"v_lshrrev_b32 v{tmp}, 2, v{vI15}")
    e(f"v_cmp_eq_u32 vcc, v{tmp}, v{vG}")
    e(f"v_and_b32 v{tmp}, 1, v{vI15}")
    e(f"v_lshlrev_b32 v{tmp}, 4, v{tmp}")
    e(f"v_mov_b32 v{tmp+1}, 0x3f80")
    e(f"v_lshlrev_b32 v{tmp}, v{tmp}, v{tmp+1}")
    e(f"v_cndmask_b32 v{tmp}, 0, v{tmp}, vcc")
    e(f"v_and_b32 v{tmp+1}, 2, v{vI15}")
    e(f"v_cmp_eq_u32 vcc, 0, v{tmp+1}")
    for i in (0, 1, 4, 5): e(f"v_mov_b32 v{base+i}, 0")
    e(f"v_cndmask_b32 v{base+2}, 0, v{tmp}, vcc")
    e(f"v_sub_u32 v{base+3}, v{tmp}, v{base+2}")

def retry_block(name, dst, voff, srdn, off, val):
    return [f"{name}:", f"s_mov_b32 {sCNT}, 0", f"{name}_l:",
            f"buffer_load_dword v{dst}, v{voff}, {srdn}, 0 offen offset:{off} sc1",
            f"s_add_u32 {sCNT}, {sCNT}, 1", "s_waitcnt vmcnt(0)",
            f"v_cmp_gt_u32 vcc, {val}, v{dst}",
            f"s_cmp_ge_u32 {sCNT}, {SPIN}", f"s_cbranch_scc1 {name}_b",
            f"s_cbranch_vccnz {name}_l", f"s_branch {name}_b"]

def check_in_stream(st, g, tag, name, dst, val):
    st.force(g, f"@vmwait {tag}")
    st.force(g, f"v_cmp_gt_u32 vcc, {val}, v{dst}")
    st.force(g + 1, f"s_cbranch_vccnz {name}")
    st.force(g + 1, f"@label {name}_b")
    return g + 1

def norm_head(qt):
    A = vL if qt == 0 else vL1
    return [f"v_add_f32 v{A}, v{A}, v{A+1}", f"v_add_f32 v{A+2}, v{A+2}, v{A+3}", f"v_add_f32 v{A}, v{A}, v{vL+8+qt}",
            f"v_add_f32 v{1+qt}, v{A}, v{A+2}", f"v_rcp_f32 v{26+qt}, v{1+qt}"]
def norm_frag(cfg, qt, s, pk):
    a = vO + (qt * 8 + 2 * s) * 4
    if pk: L = [f"v_pk_mul_f32 {vr(a+j, 2)}, {vr(a+j, 2)}, v[26:27] op_sel:[0,{qt}] op_sel_hi:[1,{qt}]" for j in range(0, 8, 2)]
    else: L = [f"v_mul_f32 v{a+j}, v{26+qt}, v{a+j}" for j in range(8)]
    L += [f"v_cvt_pk_bf16_f32 v{a+j}, v{a+2*j}, v{a+2*j+1}" for j in range(4)]
    return L, f"ds_write_b128 v{vGW}, {vr(a)} offset:{(s*4+qt)*1024}"

def attention(e, cfg, ool):
    NT = cfg.NT
    ta, tb = NT - 2, NT - 1
    mu = [(t, qt) for t in range(NT - 2) for qt in (2, 3, 0, 1)]
    mu += [(ta, 2), (ta, 3), (tb, 2), (tb, 3), (ta, 0), (tb, 0), (ta, 1), (tb, 1)]
    n = len(mu)
    gA, gB, gS = cfg.gA, cfg.gB, cfg.gS
    e(f"s_cmp_eq_u32 {sMODE}, 0")
    e("@vmwait K0,V0 lgkm0")
    e("s_barrier")
    e("s_cbranch_scc0 L_slow")
    if cfg.diag == 3:
        for l in lstamp(12): e(l)
        for l in lstamp(13): e(l)
        e("v_mov_b32 v126, v254"); e("v_mov_b32 v127, v255")
    if cfg.diag in (2, 4, 6): e('s_mov_b32 s49, 0')
    pr = [f"ds_read_b128 {ar(aPR + s*4)}, v{vPR} offset:{kunit(0)*16384 + 64*s}" for s in range(4)]
    qr = lambda qt: [f"ds_read_b128 {Qreg(qt, s)}, v{vQR + (qt >> 1)} offset:{(qt&1)*4096 + s*1024}" for s in range(4)]
    for x, y in zip(pr, qr(2)): e(x); e(y)
    for l in qr(3): e(l)
    for i in range(4): e(f"v_mov_b32 v{vSA+i}, v{vSA0}")
    for i in range(8): e(f"v_mov_b32 v{vL+i}, 0")
    for i in (2, 3): e(f"v_mov_b32 v{vL1+i}, 0")
    if cfg.ob:
        for i in range(4): e(f"v_mov_b32 v{vL+8+i}, {hex(f2u(cfg.ob / 100))}")
    def probe(qt):
        d = vr(vCI + 4 * qt)
        return [f"{MF} {d}, {ar(aPR + s*4)}, {Qreg(qt, s)}, {'0' if s == 0 else d} ; use=pr{s},q{qt}_{s}" for s in range(4)]
    def pfin(qt):
        a = vCI + 4 * qt
        if cfg.so:
            return [f"v_max3_f32 v{a}, v{a}, v{a+1}, v{a+2}", f"v_max_f32 v{a}, v{a}, v{a+3}"] + [f"v_sub_f32 v{a+j}, {hex(f2u(-float(cfg.so)))}, v{a}" for j in (1, 2, 3, 0)]
        return [f"v_min3_f32 v{a}, -v{a}, -v{a+1}, -v{a+2}"] + [f"v_min_f32_e64 v{a+j}, v{a}, -v{a+3}" for j in (1, 2)] + \
               [f"v_mov_b32 v{a}, v{a+1}", f"v_mov_b32 v{a+3}, v{a+1}"]
    def addO(qt):
        L = []
        for s in range(4):
            for T in range(2):
                o = vr(vO + (qt * 8 + 2 * s + T) * 4)
                L.append(f"{MF} {o}, {vr(vSEL + 2 - 2*T)}, {ar(aQ + 32 + (qt*4+s)*4)}, {o} ; use=_,po{qt}_{s}")
        return L
    st = Stream()
    st.wsh = cfg.wsh
    qk0 = {}; pv0 = {}; pvend = {}; smf = {}
    for x in probe(2) + probe(3): st.add(x)
    st.add(None)
    for i in range(-1, n):
        if i + 1 < n:
            t, qt = mu[i + 1]
            qk0[i + 1] = st.n()
            for kt in range(2):
                d = vr(vS + ((i + 1) & 1) * 8 + kt * 4)
                for s in range(4):
                    st.add(f"{MF} {d}, {ar(aKF + (t & 1)*32 + (kt*4+s)*4)}, {Qreg(qt, s)}, {vr(vCI + 4*qt) if s == 0 else d} ; use=k{t}_{kt}_{s},q{qt}_{s}")
        else:
            for x in addO(1): st.add(x)
        if i >= 0:
            t, qt = mu[i]
            p = vr(vP + (i & 1) * 4)
            if i & 1:
                smf[i] = st.add(f"v_smfmac_f32_16x16x64_bf16 {vr(vL1 if i == n - 1 else vL + 4*(qt >> 1))}, {vr(vSA)}, {vr(vP, 8)}, v{vSI}")
            pv0[i] = st.n()
            for dt in range(8):
                o = vr(vO + (qt * 8 + dt) * 4)
                pvend[i] = st.add(f"{MF} {o}, {ar(aVF + (t & 1)*32 + dt*4)}, {p}, {(vr(vL+8) if cfg.ob else '0') if t == 0 else o} ; use=v{t}_{dt},p{i}")
            if i == n - 3:
                gadd = st.n()
                for x in addO(0): st.add(x)
        else:
            gp0 = st.n()
            for x in probe(0) + probe(1): st.add(x)
            st.add(None)
    for i in range(n):
        g = qk0[i] + cfg.expoff
        sb = vS + (i & 1) * 8; pb = vP + (i & 1) * 4
        for j in range(8):
            st.force(g + 2 * j, f"v_exp_f32 v{sb+j}, v{sb+j}")
            if j & 1: st.force(g + 2 * j + 1, f"v_cvt_pk_bf16_f32 v{pb + j//2}, v{sb+j-1}, v{sb+j} ; def=p{i}")
    G0 = lambda t: qk0[4 * t]
    for k, x in enumerate(k_reads(0) + qr(0) + qr(1)): st.force(k // 2, x)
    for x in pfin(2): st.force(8, x)
    for qt, g in ((3, G0(0) + 3), (0, gp0 + 8), (1, gp0 + 12)):
        for x in pfin(qt): g = st.put(g, x)
    st.spread(v_reads(0), G0(0), G0(0) + 14)
    isexp = lambda t: any(y.startswith('v_exp') for y in st.fill[t])
    def seq_put(L, g, cap):
        for x in L:
            while g < st.n() - 1 and (isexp(g) or st.used[g] >= cap): g += 1
            st.force(g, x)
        return g
    ool += ["L_rG:", f"s_mov_b32 {sCNT}, 0", "L_rG_l:", f"s_load_dword {sGC}, s[32:33], {sGO} glc", f"s_add_u32 {sCNT}, {sCNT}, 1", "s_waitcnt lgkmcnt(0)",
            f"s_cmp_ge_u32 {sCNT}, {SPIN}", "s_cbranch_scc1 L_rG_b", f"s_and_b32 {sT2}, {sGC}, 0xfff0", "s_cbranch_scc0 L_rG_l", "s_branch L_rG_b"]
    wo_unit = {}; free = [8, 9]
    def wo_next(k):
        G = []
        while k and free and len(wo_unit) < 16:
            i = len(wo_unit); wo_unit[i] = free.pop(0); G += wo_dma(cfg, i, wo_unit[i]); k -= 1
        return G
    if cfg.roll:
        for t in range(cfg.l0, NT - 3, 4):
            gm = G0(t) - cfg.mk
            while st.used[gm]: gm += 1
            assert gm < G0(t) - 1
            if t == cfg.l0: st.force(gm - 1, f"s_mov_b32 {sLOOP}, {-((NT - 4 - cfg.l0) // 4)}")
            else:
                st.force(gm - 1, f"s_add_u32 {sLOOP}, {sLOOP}, 1")
                st.force(gm, "s_cbranch_scc0 L_att")
            st.force(gm, "@iter L_att")
            st.used[gm] = 2
    seq_put([f"v_mov_b32 v{vL1}, v{vL+2}", f"v_mov_b32 v{vL1+1}, v{vL+3}", f"v_mov_b32 v{vL+2}, 0", f"v_mov_b32 v{vL+3}, 0"], G0(tb) - 10, 2)
    g = G0(tb) + 2; gw = g
    for h in range(2):
        g = max(g, pvend[n - 6 + h] - 2)
        for s in range(4):
            a = vO + ((2 + h) * 8 + 2 * s) * 4
            g = seq_put([f"v_cvt_pk_bf16_f32 v{a+j}, v{a+2*j}, v{a+2*j+1}" for j in range(4)], max(g, pv0[n - 6 + h] + 2 * s + 6), cfg.xc)
            gw = max(g + 1, gw + cfg.xw)
            while isexp(gw): gw += 1
            st.force(gw, f"ds_write_b128 v{vGW+1}, {vr(a)} offset:{(s*4+h)*1024} ; tag=OX{h} loc=" + (f"u{gA},u{gB},g0" if h == 0 else "g1"))
        if h == 0:
            g = seq_put([f"v_add_f32 v{vL+4}, v{vL+4}, v{vL+5}", f"v_add_f32 v{vL+5}, v{vL+6}, v{vL+7}"], max(g, smf[n - 5] + 5), cfg.xc)
            gw = max(g + 1, gw + cfg.xw)
            while isexp(gw): gw += 1
            st.force(gw, f"ds_write_b64 v{vGW+3}, {vr(vL + 4, 2)}")
    gx = gw + cfg.xb
    st.force(gx - 1, "@vmwait _ lgkm0"); st.force(gx, "s_barrier")
    gy = G0(ta) + cfg.gy
    while isexp(gy): gy += 1
    if cfg.wt: st.fill[gx - 1] = [x.replace("@vmwait _", "@vmwait O2,O3") for x in st.fill[gx - 1]]; gy = gx + 12
    else: st.force(gy - 1, "@vmwait O2,O3"); st.force(gy, "s_barrier")
    rd = [f"ds_read_b128 {ar(aQ + 32 + (h*4+s)*4)}, v{vGW} offset:{(s*4+h)*1024}" for h in range(2) for s in range(4)]
    rd.insert(4, f"ds_read_b64 {vr(vL + 8, 2)}, v{vGW+2} ; rd=LX")
    if '-v' in sys.argv: print("exchange barrier at", gx - G0(ta), "first add at", gadd - G0(ta), "end", st.n() - G0(ta))
    assert gx + 4 < gadd
    st.spread(rd[:5], gx, gx + 4); st.spread(rd[5:], gx + 5, gx + 12)
    g = seq_put(norm_head(0), gadd + 1, 3); gw = g
    for s in range(4):
        V, wr = norm_frag(cfg, 0, s, False)
        g = seq_put(V, max(g + (s == 0), gadd + 2 * s + 6), cfg.nc)
        gw = min(max(g + 1, gw + cfg.xw), st.n() - 1)
        while isexp(gw): gw += 1
        assert gw > g
        st.force(gw, wr)
    if '-v' in sys.argv: print("first gather write done at", gw - G0(ta))
    if cfg.diag == 7:
        for k, gg in ((1, G0(4)), (2, G0(NT - 4)), (3, G0(NT - 3)), (4, G0(NT - 2)), (5, G0(NT - 1)), (6, gx)):
            st.force(gg - (60 if k == 1 else 0), "\n".join(lstamp(k, 126)))
    seq = [(wh, t) for t in range(NT) for wh in 'KV' if f"{wh}{t}" not in cfg.pre_issued]
    GB = {}
    for t in range(NT):
        o = max(cfg.b0, cfg.bk) if t == 0 else cfg.bk if t < NT - 3 else (2 * cfg.bk // 3, cfg.bk // 4, 0)[t - NT + 3]
        gb = G0(t) + o
        while st.used[gb] or not isexp(gb - 1): gb += 1
        GB[t] = gb
        st.force(gb - 1, f"@vmwait K{t+1},V{t+1}{',O0,O1' if t == tb else ''} rd:K{t},V{t},QX")
        st.force(gb, "s_barrier")
        if cfg.diag == 2 or (cfg.diag in (4, 6) and t % 2 == 0):
            st.force(gb, "\n".join(["s_memrealtime s[98:99]", "s_memtime s[96:97]", "s_add_u32 s49, s49, 1", "s_mov_b32 s100, m0", "s_mov_b32 m0, s49", "s_waitcnt lgkmcnt(0)", "v_writelane_b32 v126, s98, m0", "v_writelane_b32 v127, s96, m0", "s_mov_b32 m0, s100"]))
    st.force(GB[NT - 4] + 1, f"s_load_dword {sGC}, s[32:33], {sGO}")
    st.force(GB[NT - 3] + 1, f"s_and_b32 {sT2}, {sGC}, 0xfff0\ns_cbranch_scc0 L_rG\n@label L_rG_b")
    g = GB[NT - 3] + 2
    for x in [f"s_and_b32 {sT2}, {sGC}, 0x3fff", f"s_mul_i32 {sT2}, {sT2}, 3", f"s_lshr_b32 {sGC}, {sGC}, 14",
              f"s_cmp_ge_u32 {sGC}, {sT2}\ns_cselect_b32 {sSEL}, 0x2000, 0\ns_cselect_b32 {sOLD}, {sOLD1}, {sOLD}"] + apply_sel() + \
             [f"s_xor_b32 {sT2}, {sPST}, 0x2000", f"buffer_load_dword v{vPF2}, off, {SWS}, {sT2}"]:
        g = st.put(g, x) + 1
    def reads(t):
        first_qk, first_pv = (qk0[4 * t + 4], pv0[4 * t + 4]) if t < ta else (qk0[n - 6], pv0[n - 6])
        pl = pv0[4 * t - 1] if t > 0 else 0
        lo = [0] * 8 + [pl + d // 2 for d in range(16)]
        end = GB[t + 1] - cfg.rdend
        hi = [min(end, first_qk - 7 + k // 2) for k in range(8)] + [min(end, first_pv - 8 + d // 2) for d in range(16)]
        st.spreadc(k_reads(t + 1) + v_reads(t + 1), GB[t], min(end - 1, first_pv - 4), lo, hi)
    if cfg.bk:
        for t in range(tb): reads(t)
    carry = []
    for t in range(NT):
        g0 = G0(t); g1 = G0(t + 1) if t + 1 < NT else g0 + 66
        G = []; k = 0
        if t + 3 >= NT: free += [u for u in (kunit(t - 1), vunit(t - 1)) if u not in (gA, gB, gS)]
        while seq and 2 * seq[0][1] + (seq[0][0] == 'V') <= 2 * t + cfg.off + 1:
            wh, tt = seq.pop(0); G += kv_dma(cfg, wh, tt); k += 1
        if t < cfg.cu:
            G = carry + G
            m = 8 + -(-(len(G) - 8) // (cfg.cu - t))
            G, carry = G[:m], G[m:]
        if not seq and not k: G += wo_next(int(cfg.wl[t - NT]))
        if cfg.pf == 2 and t % 4 == cfg.pft and t >= cfg.l0:
            G = G + [([], f"buffer_load_dword v{vPF2}, v{vPF}, s[88:91], 0 offen sc1")]
        if t == cfg.tout and cfg.tch == 6:
            G = [([], f"buffer_store_dword v{vONE1}, v{vOT}, {SOUT}, 0 offen")] + G
        if t == cfg.tann:
            G = [([], f"buffer_atomic_add v{vONE1}, v26, {SDBG}, 0 offen sc1")] + G
        if G: gl = place_dma(st, G, g0 + 2, g1 - cfg.mk - 3 if t < ta else g0 + cfg.wa if t == ta else g0 + 17 * int(cfg.wl[-1]), 1 if t < tb and len(G) < 11 and not cfg.bk else 2)[-1]
        if t < tb and not cfg.bk: reads(t)
    st.spreadc(a_reads(0, wo_unit), GB[tb] + 1, gx - 6, None, [gx - 5] * 16)
    free += [wo_unit[0], wo_unit[1]]
    place_dma(st, wo_next(cfg.wx), max(gx, gl) + 1, st.n() - 2, 2)
    st.spreadc(a_reads(1, wo_unit), gy, st.n() - 6, None, [st.n() - 4] * 16)
    if cfg.soft: st.late = set(range(G0(cfg.soft0), G0(cfg.soft) - cfg.mk - 1))
    for l in st.lines(): e(l)
    if '-v' in sys.argv:
        over = sum(max(0, u - 2) for u, m in zip(st.used, st.mf) if m)
        print("attention gaps", st.n(), "overfull slots", over, "in last two periods", sum(max(0, u - 2) for u in st.used[G0(ta):]), "wo units", wo_unit)
    cfg.wo_pre = dict(wo_unit)
    return wo_unit, free, wo_next

def oproj(e, cfg, wo_unit, free, wo_next):
    gA, gB, gS = cfg.gA, cfg.gB, cfg.gS
    ls = lambda k: lstamp(k, 126) if cfg.diag == 7 else []
    def b_reads(q4):
        return [f"ds_read_b128 {ar((ks8*4+q4)*4)}, v{vGA + (ks8>>2)} offset:{((ks8&3)*4+q4)*1024}" for ks8 in range(8)]
    e("L_norm:")
    for l in ls(7): e(l)
    for l in norm_head(1): e(l)
    e("@vmwait O4,O5 lgkm0"); e("s_barrier")
    stamp(e, cfg, 3)
    for l in b_reads(0): e(l)
    e("v_add_f32 v25, v1, v2")
    wrs = [f"ds_write_b32 v{vCK}, v25 offset:4096"]
    free += [wo_unit[2], wo_unit[3]]
    Gb = wo_next(2)
    for s in range(cfg.nb):
        V, wr = norm_frag(cfg, 1, s, True)
        if s < cfg.nbd:
            for l in flat(Gb[:1]): e(l)
            Gb = Gb[1:]
        for l in V: e(l)
        if s < cfg.nb - 1: e(wr)
        else: wrs.append(wr)
    for l in ls(8): e(l)
    st = Stream()
    st.wsh = cfg.wsh
    def acc(c, q4, k): return vO + c * 32 + q4 * 8 + k * 4
    S0 = lambda j: 32 * j
    qend = {}
    for c in range(4):
        qs = (0, 2, 1, 3) if c == 0 else range(4)
        if cfg.om[c] == 'Q': order = [(ks8, k, q4) for q4 in qs for k in range(2) for ks8 in range(8)]
        else: order = [(4 * hf + kk, k, q4) for hf in range(2) for q4 in qs for k in range(2) for kk in range(4)]
        for ks8, k, q4 in order:
            j, kk = 2 * c + (ks8 >> 2), ks8 & 3
            a = vr(acc(c, q4, k))
            qend[c, q4] = st.add(f"{MF} {a}, {ar(afrag(j, kk, k))}, {ar((ks8*4+q4)*4)}, {'0' if ks8 == 0 else a} ; use=a{j}_{kk}_{k},b{ks8}_{q4}")
    if cfg.diag == 7:
        for j in (2, 4, 6): st.force(S0(j) + 2, "\n".join(lstamp(8 + j // 2, 126)))
        st.force(st.n() - 1, "\n".join(lstamp(12, 126)))
    for k, l in enumerate(b_reads(2)): st.force(k, l)
    gw = -1
    for l in wrs: gw = st.force(gw + 2, l)
    g = 0
    for s in range(cfg.nb, 4):
        V, wr = norm_frag(cfg, 1, s, False)
        for x in V: g = st.put(g, x)
        gw = st.force(max(g + 1, gw + 3), wr)
    g1 = max(cfg.g1, gw + 5)
    if '-v' in sys.argv: print("second gather barrier at", g1)
    place_dma(st, Gb, 0, g1 - 2, 2)
    st.spread(a_reads(2, wo_unit), 4, g1 - 6)
    st.force(g1 - 1, "@vmwait O6,O7,O8 lgkm0"); st.force(g1, "s_barrier")
    rd = b_reads(1); rd.insert(4, f"ds_read_b128 {vr(vS)}, v{vCK+1} offset:4096 ; rd=CK")
    for k, l in enumerate(rd): st.force(g1 + k // 2, l)
    g = g1 + 10
    for l in [f"v_add_f32 v{vS}, v{vS}, v{vS+1}", f"v_add_f32 v{vS+2}, v{vS+2}, v{vS+3}", f"v_add_f32 v{vS}, v{vS}, v{vS+2}", f"v_cmp_nge_f32 vcc, {hex(f2u(2.0**(cfg.T - cfg.so)))}, v{vS}"]:
        g = st.put(g, l) + 1
    st.force(g, "s_cbranch_vccnz L_fail\n@label L_fail_b")
    gck = g
    free += [wo_unit[4], wo_unit[5]]
    g2 = cfg.g2
    gl = place_dma(st, wo_next(2), g1 + 1, g1 + cfg.w2o, 2)[-1]
    st.spread(b_reads(3), g1 + 5, g1 + 14)
    rdst = {x: (x - 2 if cfg.om[x >> 1] == 'Q' and x & 1 else x - 1) for x in range(3, 8)}
    if rdst[3] == 1: st.spread(a_reads(3, wo_unit), g1 + 15, 57)
    st.force(g2 - 1, "@vmwait _ rd:G0,G1,CK"); st.force(g2, "s_barrier")
    free += [gS, gA, gB]
    place_dma(st, wo_next(3), max(g2, gl) + 1, max(g2, gl) + cfg.w3, 2)
    assert len(wo_unit) == 16
    seen = set(range(9))
    for j in range(2, 7):
        todo = [x for x in range(3, 8) if rdst[x] == j]
        need = [i for x in todo for i in (2 * x, 2 * x + 1) if i not in seen]
        if need:
            st.force(S0(j) + cfg.bo - 1, "@vmwait " + ",".join(f"O{i}" for i in need)); st.force(S0(j) + cfg.bo, "s_barrier")
            seen.update(range(max(need) + 1))
        if todo: st.spread(sum((a_reads(x, wo_unit) for x in todo), []), S0(j) + cfg.bo, S0(j) + 25)
    left = []; g = 0
    for c in range(4):
        for q4 in ((0, 2, 1, 3) if c == 0 else range(4)):
            a = acc(c, q4, 0)
            g = max(g, qend[c, q4] + 5, cfg.pst)
            if g + 6 >= st.n(): left.append(q4); continue
            st.put(g, f"s_xor_b32 {sT3}, {sPST}, {spread(c*262144 + q4*17408)}")
            for k in range(4): g = st.put(g, f"v_cvt_pk_bf16_f32 v{a+k}, v{a+2*k}, v{a+2*k+1}")
            g = st.put(g + 2, f"buffer_store_dwordx4 {vr(a)}, v{vL16}, {SWS}, {sT3} offen sc1 ; tag=PS{c}") + 1 + (cfg.psp if c < 3 else 0)
    g = S0(5) + 4
    for l in [f"s_movk_i32 s{sWC+k}, {hex(spread(4096*k))}" for k in range(1, 4)] + [f"s_mov_b32 {sCNT}, 0", f"s_mov_b32 {sDONE}, 0"]: g = st.put(g, l) + 1
    if cfg.rsm:
        SL = [f"v_lshrrev_b32 v1, 3, v{vI15}", f"v_and_b32 v2, 1, v{vG}", "v_cmp_eq_u32 vcc, v1, v2",
              f"v_and_b32 v1, 1, v{vI15}", "v_lshlrev_b32 v1, 4, v1", "v_mov_b32 v2, 0x3f80", "v_lshlrev_b32 v1, v1, v2", "v_cndmask_b32 v1, 0, v1, vcc",
              f"v_and_b32 v2, 4, v{vI15}", "v_cmp_eq_u32 vcc, 0, v2", f"v_bfe_u32 v2, v{vI15}, 1, 1", "v_mul_u32_u24 v2, 0xaaaa, v2", "v_cndmask_b32 v8, 0, v1, vcc",
              "v_sub_u32 v10, v1, v8", "v_add_u32 v20, 0x4444, v2", "v_mov_b32 v13, v8", "v_mov_b32 v15, v10"] + [f"v_mov_b32 v{r}, 0" for r in (9, 11, 12, 14, 4, 5, 6, 7, 16, 17, 18, 19)]
        g = S0(3) + 2
        for l in SL: g = st.put(g, l) + 1
    flag = lambda c: [f"@vmwait PS{c}", f"buffer_atomic_xor v{vFB}, v{vFD}, {SWS}, 0 offen offset:{128*c} sc1"]
    if cfg.n1: st.force(S0(7) + cfg.pp, f"@vmwait _ lgkm0\ns_load_dword {sMK}, s[24:25], {sMO} glc")
    for c in range(cfg.f0):
        gg = S0(7) + cfg.f0p + c * cfg.f0d
        assert gg > gck
        st.force(gg, flag(c)[0]); st.put(gg, flag(c)[1])
    for l in st.lines(): e(l)
    if '-v' in sys.argv: print("oproj overfull", sum(max(0, u - 2) for u in st.used))
    stamp(e, cfg, 4)
    for q4 in left:
        a = acc(3, q4, 0)
        e(f"s_xor_b32 {sT3}, {sPST}, {spread(3*262144 + q4*17408)}")
        for k in range(4): e(f"v_cvt_pk_bf16_f32 v{a+k}, v{a+2*k}, v{a+2*k+1}")
        e(f"buffer_store_dwordx4 {vr(a)}, v{vL16}, {SWS}, {sT3} offen sc1 ; tag=PS3")
    def lowest(k):
        for _ in range(k):
            e(f"s_sub_u32 {sT2}, {sT1}, 1"); e(f"s_and_b32 {sT1}, {sT1}, {sT2}")
        e(f"s_xor_b32 {sT0}, {sT0}, {sT1}")
    def sweep(tag):
        e(f"s_or_b32 {sDONE}, {sDONE}, {sT0}")
        e("@noauto")
        for q in range(4):
            e(f"s_and_b32 {sT1}, {sT0}, {hex(15 << (4*q))}")
            e(f"s_cbranch_scc0 L_{tag}q{q}")
            for j in range(4 * q, 4 * q + 4):
                e(f"s_bitcmp1_b32 {sT0}, {j}")
                e(f"s_cbranch_scc0 L_{tag}j{j}")
                if cfg.cap and tag == 'p': e(f"s_waitcnt vmcnt({cfg.cap - 1})")
                e(f"buffer_load_dwordx4 {vr(vO+4*j)}, v{vFL}, {SWS}, {'s%d' % (sWC + q) if q else 0} offen offset:{1024*(j&3)} sc1")
                e(f"L_{tag}j{j}:")
            e(f"L_{tag}q{q}:")
        e("@auto")
    if cfg.n1:
        for c in range(cfg.f0, 3 if cfg.n1f else 2):
            for l in flag(c): e(l)
        e(f"s_xor_b32 {sT0}, {sMK}, {sOLD}"); e(f"s_mov_b32 {sT1}, {sT0}")
        e(f"s_load_dword {sMK}, s[24:25], {sMO} glc")
        lowest(cfg.n1)
        sweep("e")
        e("s_waitcnt vmcnt(0)")
        for c in range(3 if cfg.n1f else 2, 4): e(flag(c)[1])
    else:
        e(f"s_load_dword {sMK}, s[24:25], {sMO} glc")
        for c in range(cfg.f0, 4):
            for l in flag(c): e(l)
    if cfg.fb: e("s_barrier")
    stamp(e, cfg, 5)
    e("s_waitcnt lgkmcnt(0)")
    e("s_branch L_pF_e")
    e("L_pF:")
    e(f"s_load_dword {sMK}, s[24:25], {sMO} glc")
    e(f"s_add_u32 {sCNT}, {sCNT}, 1")
    e(f"s_cmp_ge_u32 {sCNT}, {SPIN}")
    e("s_waitcnt lgkmcnt(0)")
    e("s_cbranch_scc1 L_pF_x")
    e("L_pF_e:")
    e(f"s_xor_b32 {sMK}, {sMK}, {sOLD}")
    e(f"s_andn2_b32 {sT0}, {sMK}, {sDONE}")
    e("s_cbranch_scc0 L_pF")
    if cfg.thr:
        e(f"s_cmp_eq_u32 {sMK}, 0xffff")
        e(f"s_cselect_b32 {sT1}, 0, {sT0}")
        lowest(cfg.thr)
    sweep("p")
    e(f"s_cmp_eq_u32 {sDONE}, 0xffff")
    e("s_cbranch_scc0 L_pF")
    e("L_pF_x:")
    stamp(e, cfg, 6)
    e("s_waitcnt vmcnt(0)")
    for j in range(0, 16, 2) if cfg.rsm else []:
        e(f"v_smfmac_f32_16x16x64_bf16 v[16:19], v[8:11], {vr(vO+4*j, 8)}, v20")
        e(f"v_smfmac_f32_16x16x64_bf16 v[4:7], v[12:15], {vr(vO+4*j, 8)}, v20")
    for j in range(16) if not cfg.rsm else []:
        e(f"{MF} v[16:19], {vr(vSEL+2)}, {vr(vO+4*j)}, {'0' if j == 0 else 'v[16:19]'}")
        e(f"{MF} v[4:7], {vr(vSEL)}, {vr(vO+4*j)}, {'0' if j == 0 else 'v[4:7]'}")
    e("v_cvt_pk_bf16_f32 v16, v16, v17"); e("v_cvt_pk_bf16_f32 v17, v18, v19")
    e("v_cvt_pk_bf16_f32 v18, v4, v5"); e("v_cvt_pk_bf16_f32 v19, v6, v7")
    for op in ("v_permlane32_swap_b32", "v_permlane16_swap_b32"):
        e(f"{op} v16, v18"); e(f"{op} v17, v19")
    e(f"buffer_store_dwordx4 v[16:19], v{vOUT}, {SOUT}, 0 offen {cfg.polout}")

def slow_path(cfg):
    L = []; e = L.append
    vM, vLs, vA, vX = vCI, vCI + 2, vCI + 4, vCI + 6
    e("L_slow:")
    for l in apply_sel(): e(l)
    e("s_waitcnt vmcnt(0)")
    for qt in range(2):
        for s in range(4): e(f"ds_read_b128 {Qreg(qt, s)}, v{vQR} offset:{qt*4096 + s*1024}")
    for i in range(64): e(f"v_mov_b32 v{vO+i}, 0")
    for qt in range(2):
        e(f"v_mov_b32 v{vM+qt}, 0xff7fffff"); e(f"v_mov_b32 v{vLs+qt}, 0")
    e(f"s_mov_b32 {sKO}, 0"); e(f"s_mov_b32 {sLOOP}, 0")
    e("L_sl:")
    e("s_waitcnt lgkmcnt(0)")
    e(f"s_bitcmp1_b32 {sLOOP}, 0")
    e("s_cbranch_scc1 L_sl2")
    e("s_barrier")
    for srdn, base, regs in ((SK, 0, [vKD + n for n in range(4)]), (SV, VBASE, [vVD + (n & 1) for n in range(4)])):
        e(f"s_add_u32 m0, {sW4K}, {base}")
        for n in range(4): e(f"buffer_load_dwordx4 v{regs[n]}, {srdn}, {sKO} offen offset:{1024*n} lds")
    e(f"s_sub_u32 {sKO}, {sKO}, {sMASK}"); e(f"s_and_b32 {sKO}, {sKO}, {sMASK}")
    e("s_waitcnt vmcnt(0)")
    e("s_barrier")
    e("L_sl2:")
    for kt in range(2):
        for s in range(4): e(f"ds_read_b128 {ar(aKF + (kt*4+s)*4)}, v{vKA+s} offset:{kt*4096}")
    for dt in range(8):
        for u in range(2): e(f"ds_read_b64_tr_b16 {ar(aVF + dt*4 + 2*u, 2)}, v{vVA+dt} offset:{u*4096}")
    for r in range(vKA, vKA + 12): e(f"v_xor_b32 v{r}, 0x2000, v{r}")
    for qt in range(2):
        for kt in range(2):
            d = vr(vS + kt * 4)
            for s in range(4): e(f"{MF} {d}, {ar(aKF + (kt*4+s)*4)}, {Qreg(qt, s)}, {'0' if s == 0 else d}")
        e(f"v_max3_f32 v{vX}, v{vS}, v{vS+1}, v{vM+qt}")
        for j in (2, 4, 6): e(f"v_max3_f32 v{vX}, v{vS+j}, v{vS+j+1}, v{vX}")
        for op in ("v_permlane32_swap_b32", "v_permlane16_swap_b32"):
            e(f"v_mov_b32 v{vX+1}, v{vX}"); e(f"{op} v{vX}, v{vX+1}"); e(f"v_max_f32 v{vX}, v{vX}, v{vX+1}")
        e(f"v_sub_f32 v{vA}, v{vM+qt}, v{vX}"); e(f"v_exp_f32 v{vA}, v{vA}"); e(f"v_mov_b32 v{vM+qt}, v{vX}")
        e(f"v_mul_f32 v{vLs+qt}, v{vA}, v{vLs+qt}")
        for j in range(8): e(f"v_sub_f32 v{vS+j}, v{vS+j}, v{vX}")
        for j in range(8): e(f"v_exp_f32 v{vS+j}, v{vS+j}")
        for j in range(8): e(f"v_add_f32 v{vLs+qt}, v{vLs+qt}, v{vS+j}")
        for j in range(4): e(f"v_cvt_pk_bf16_f32 v{vP+j}, v{vS+2*j}, v{vS+2*j+1}")
        for i in range(32): e(f"v_mul_f32 v{vO+32*qt+i}, v{vA}, v{vO+32*qt+i}")
        for dt in range(8):
            o = vr(vO + (qt * 8 + dt) * 4)
            e(f"{MF} {o}, {ar(aVF + dt*4)}, {vr(vP)}, {o}")
    e(f"s_add_u32 {sLOOP}, {sLOOP}, 1")
    e(f"s_cmp_lt_u32 {sLOOP}, 64")
    e("s_nop 7")
    e("s_cbranch_scc1 L_sl")
    for qt in range(2):
        for op in ("v_permlane32_swap_b32", "v_permlane16_swap_b32"):
            e(f"v_mov_b32 v{vX+1}, v{vLs+qt}"); e(f"{op} v{vLs+qt}, v{vX+1}"); e(f"v_add_f32 v{vLs+qt}, v{vLs+qt}, v{vX+1}")
    for r in list(range(vL, vL + 10)) + list(range(vL1, vL1 + 4)): e(f"v_mov_b32 v{r}, 0")
    e(f"v_mov_b32 v{vL}, v{vLs}"); e(f"v_mov_b32 v{vL1}, v{vLs+1}")
    for l in norm_head(0): e(l)
    for s in range(4):
        V, wr = norm_frag(cfg, 0, s, True)
        for l in V + [wr.split(' ; ')[0]]: e(l)
    W = cfg.wo_pre
    strip = lambda X: [x.split(' ; ')[0] for x in X]
    e("s_barrier")
    for i in range(4):
        for l in strip(flat(wo_dma(cfg, i, W[i]))): e(l)
    e("s_waitcnt vmcnt(0)"); e("s_barrier")
    for l in strip(a_reads(0, W) + a_reads(1, W)): e(l)
    e("s_waitcnt lgkmcnt(0)"); e("s_barrier")
    for i in range(4, len(W)):
        for l in strip(flat(wo_dma(cfg, i, W[i]))): e(l)
    e("s_waitcnt vmcnt(0)")
    e("s_nop 7")
    e("s_branch L_norm")
    L = finish(L)
    return ["L_fail:", f"s_cmp_eq_u32 {sMODE}, 0", "s_cbranch_scc0 L_fail_b", f"s_mov_b32 {sMODE}, 1",
            "s_waitcnt vmcnt(0) lgkmcnt(0)", "s_barrier", "s_nop 7", "s_branch L_top"] + L

def diag_dump(e, cfg):
    if not cfg.diag: return
    e("s_waitcnt vmcnt(0)")
    stamp(e, cfg, 7)
    if cfg.spin >= 0:
        if cfg.spin >= 200:
            e(f"s_lshr_b32 s3, {sGC}, 2"); e("s_sub_u32 s62, 16, s3"); e("s_cmp_ge_u32 s3, 9")
            e("s_cselect_b32 s3, s62, 0" if cfg.spin == 200 else "s_cselect_b32 s3, 0, s3")
        elif cfg.spin >= 100:
            e("s_getreg_b32 s3, hwreg(HW_REG_XCC_ID)"); e("s_sub_u32 s3, s3, s2"); e(f"s_add_u32 s3, s3, {cfg.spin - 100}"); e("s_and_b32 s3, s3, 7")
        else: e(f"s_sub_u32 s3, s{70+2*cfg.spin}, s{70+2*cfg.spin0}")
        e(f"s_mul_i32 s3, s3, {cfg.spinmul}")
        e("s_min_u32 s3, s3, 20000")
        e("L_spin:")
        e("s_memrealtime s[62:63]")
        e("s_waitcnt lgkmcnt(0)")
        e("s_sub_u32 s62, s62, s84")
        e("s_cmp_lt_u32 s62, s3")
        e("s_cbranch_scc1 L_spin")
        return
    e("s_lshl_b32 s3, s2, 2"); e(f"s_add_u32 s3, s3, {sW}"); e("s_lshl_b32 s3, s3, 7")
    e("s_add_u32 s3, s3, 0x8000000")
    e("v_mov_b32 v3, s3")
    if cfg.diag >= 2:
        e("s_lshl_b32 s62, s2, 2"); e(f"s_add_u32 s62, s62, {sW}"); e("s_lshl_b32 s62, s62, 9"); e("s_add_u32 s62, s62, 0x9000000")
        e(f"v_lshrrev_b32 v4, 2, v{vL16}")
        e(f"buffer_store_dword v126, v4, {SWS}, s62 offen")
        e(f"buffer_store_dword v127, v4, {SWS}, s62 offen offset:256")
    for k in range(11):
        e(f"v_mov_b32 v4, s{70+2*k}")
        e(f"buffer_store_dword v4, v3, {SWS}, 0 offen offset:{4*k}")
        e(f"v_mov_b32 v5, s{71+2*k}")
        e(f"buffer_store_dword v5, v3, {SWS}, 0 offen offset:{64+4*k}")

def roll(L):
    idx = [i for i, x in enumerate(L) if x.startswith('.iter')]
    if not idx: return L
    name = L[idx[0]].split()[1]
    strip = lambda X: [x.split(' ; ')[0].rstrip() for x in X]
    body = strip(L[idx[0] + 1: idx[1]])
    for a, b in zip(idx[1:-1], idx[2:]):
        other = strip(L[a + 1:b])
        assert len(other) == len(body)
        for k, (x, y) in enumerate(zip(body, other)):
            if x == y: continue
            assert x.startswith('s_waitcnt') and re.sub(r'\d+', '', x) == re.sub(r'\d+', '', y), (x, y)
            m = iter(min(int(p), int(q)) for p, q in zip(re.findall(r'\d+', x), re.findall(r'\d+', y)))
            body[k] = re.sub(r'\d+', lambda _: str(next(m)), x)
    return L[:idx[0]] + [".iter", name + ":"] + body + L[idx[-1] + 1:]

def finish(L, step=0, nchain=1):
    L = [(x.split()[1] + ":") if x.startswith('@label') else x.replace('@iter', '.iter').replace('v_nop_pad', 's_nop 3') for x in L]
    keep = {}; on = True; M = []
    for x in L:
        if x == '@noauto': on = False
        elif x == '@auto': on = True
        elif not on and (x.startswith('buffer_load') or x.startswith('s_load')):
            keep[f"s_setprio K{len(keep)}"] = x; M.append(f"s_setprio K{len(keep)-1}")
        else: M.append(x)
    L = M
    errs = frag_check(L)
    assert not errs, errs[:5]
    L = auto_wait(L)
    L, nn = hazard.fix(L)
    errs = hazard.check(L, verbose=('-v' in sys.argv))
    assert not errs, errs[:5]
    errs = lds_check(L)
    assert not errs, errs[:5]
    L = roll([keep.get(x, x) for x in L])
    L, bad = align.align8(L, promote=('noal' not in sys.argv), step=step, nchain=nchain)
    if '-v' in sys.argv: print("auto nops", nn, "misaligned", bad, "pads", align.align8.npads)
    return [x for x in L if x != '.iter']

def gen(cfg):
    L = []; e = L.append
    ool = []
    prologue(e, cfg)
    qproj(e, cfg)
    if cfg.diag != 8: stamp(e, cfg, 1)
    wo = attention(e, cfg, ool)
    stamp(e, cfg, 2)
    oproj(e, cfg, *wo)
    diag_dump(e, cfg)
    e("L_end:")
    e("s_endpgm")
    L = finish(L, cfg.wstep, cfg.wch)
    L += ["L_last:"]
    size = sum(align.size(x) for x in L)
    L += ool + slow_path(cfg)
    if '-v' in sys.argv: print("code bytes", size)
    assert size < 32768 or cfg.diag or not cfg.roll
    fmt = lambda X: "\n".join((x if x.endswith(':') else "  " + x.split(' ; ')[0].rstrip()) for x in X) + "\n"
    s = header(["@launch grid=(256,1,1) block=(256,1,1) lds=163840"])
    s += kernel_begin(KNAME) + fmt(L)
    s += rodata([descriptor(KNAME)])
    return s

if __name__ == "__main__":
    out = sys.argv[1]
    kw = {}
    for a in sys.argv[2:]:
        if '=' in a:
            k, v = a.split('=', 1)
            kw[k] = int(v) if v.lstrip('-').isdigit() else v.replace('+', ' ')
    open(out, "w").write(gen(Cfg(**kw)))
```

```python
import sys, struct, re
from gen_common import *
import hazard, align
from sched import Stream, auto_wait, lds_check, frag_check

MF = "v_mfma_f32_16x16x32_bf16"
def f2u(x): return struct.unpack('<I', struct.pack('<f', x))[0]
QSCALE = f2u(1.4426950408889634 * 128 ** -0.5)
def vr(a, n=4): return f"v[{a}:{a+n-1}]"
def ar(a, n=4): return f"a[{a}:{a+n-1}]"

SX, SK, SV, SWQ, SWO, SWS, SOUT, SDBG = (f"s[{i}:{i+3}]" for i in (4, 8, 12, 16, 20, 24, 28, 32))
sHKV, sP, sB, sBR, sW, sW4K, sROT = "s36", "s37", "s38", "s39", "s40", "s41", "s42"
sKO, sVO, sT0, sT1, sT2, sJ0, sJ1, sGRP, sMEM = "s43", "s44", "s45", "s46", "s47", "s58", "s59", "s60", "s61"
sT3, sT4 = "s62", "s63"
sXO, sXI, sWOB, sPST = "s48", "s49", "s50", "s51"
sWC = 52
sCNT = "s56"
vKA, vVA, vKD, vVD = 4, 8, 16, 20
vL16, vI15, vG = 22, 23, 24
vFD, vFP, vFL, vFQ = 28, 29, 30, 31
vS, vP, vCI, vQ, vO = 32, 48, 56, 72, 128
vT = 104
vGC, vPOLL, vLP, vONE1, vWD, vSEL = 72, 73, 74, 76, 80, 84
vWA = [116, 117, 118, 119, 124, 125]; vOUT = 79; sPLD = 's50'
vXA, vGA, vQR, vQW, vGW = 90, 94, 96, 98, 100
sKH, sHH, sSC, sSC2, sLOOP = "s58", "s59", "s68", "s[68:69]", "s48"
vL, vSA, vSA0, vSI = 104, 120, 77, 78
vPF, vPF2 = 31, 75; vL1 = 90; sSEL = 's37'; vOT = 74; vWT = 27; sWT = 's66'; vCK = 72; sMODE = 's101'; aSEN = 228; sCLR = 's67'; vFB = 29
sOLD1 = 's3'; sPA, sPB = 's66', 's67'
sMO, sOLD, sMK, sDONE, sGO, sGC, sOOB = 's92', 's93', 's94', 's95', 's64', 's65', 's66'
vPR = 99; aPR = 212; sMASK = "s57"
aQ, aKF, aVF, aL, aONE = 0, 64, 128, 192, 208
VBASE = 65536
FLAGB = 0x2000000
OOB = 0x40000000
SPIN = 0x40000

class Cfg:
    NT = 32
    polkv = "nt"; polx = ""; polw = ""; polout = ""
    diag = False; spin = -1; spin0 = 0; spinmul = 1
    pf = 1; pft = 2; wosp = 2; wo0 = 8
    xmap = 1; rotg = 4; x1first = 0
    w1early = 1; qD = 14; qG = 6; qkv = 'K0|V0,K1|V1'
    krot = (9, 3, 20)
    soft = 0; soft0 = 1; l0 = 4
    wl = '2,2,3'; wx = 2; wt = 0; wtt = 0; wsh = 2; wn = 1; ops = '2,3,2'; T = 30; pst = 0
    f0 = 0; mode = 'M'; nclr = 3; qi = 'x0,w0'; qj = 'w1,x1'; qx = '1:x2,3:x3'; qA = 4; q7 = 0; q7r = 18; fin = 0; wstep = 4096; wch = 4; wpos = 0; bg = -1; bd = 1; xc = 3; xw = 4; xb = 4; nc = 3; nb = 4; nbd = 0; g1 = 22; g2 = 52; w2o = 44; w3 = 64; gy = 128; wa = 52; bo = 8; om = 'QHHH'; thr = 0; polv = None; ntf = 4; so = 5; ob = 0; qko = 0; pfpos = 0; qs = 'x0,a0|S1|S2|b0,w1,x1|W|R'; n1f = 1; rsm = 1; cap = 0; wb = '15,16'; norace = 0; s2s = 0; home = 2; rf = 6; bk = 20; cu = 0; n2 = 0; w2 = 60; ps = 4; tv = ''; ts = 1; t0 = 1; pfs = 0; l00 = 1; tout = -1; fb = 0; qm = 0; psp = 0; f0d = 64; tann = 0; n1 = 0; p2 = 1; pp = 4; f0p = -60
    padA = 0; padB = 0; padT = 4
    off = 6; fkv = 'K2,V2'; fden = 8; b0 = 24; polp = 'sc1'; omax = 8
    expoff = 8; rdend = 5; gc = 100; roll = 1; mk = 5; dmaalone = 1; smf = 1; psw = 1; cvtd = 0
    def __init__(self, **kw):
        self.__dict__.update(kw)
        if self.smf and 'expoff' not in kw: self.expoff = 7
        self.gA, self.gB, self.gS = kunit(self.NT - 1), vunit(self.NT - 1), vunit(self.NT - 2)
        self.wl = self.wl.split(','); self.wb = [int(x) for x in self.wb.split(',')]
        if isinstance(self.krot, str): self.krot = tuple(int(x) for x in self.krot.split(','))

def stamp_l(cfg, k):
    if k == 9: return []
    return [f"s_memrealtime s[{70+2*k}:{71+2*k}]", "s_memtime s[96:97]", "s_waitcnt lgkmcnt(0)", f"s_mov_b32 s{71+2*k}, s96"] if cfg.diag else []
def lstamp(idx, r=254):
    return ["s_memrealtime s[98:99]", "s_memtime s[96:97]", "s_waitcnt lgkmcnt(0)", f"v_writelane_b32 v{r}, s98, {idx}", f"v_writelane_b32 v{r+1}, s96, {idx}"]
def stamp(e, cfg, k):
    for l in stamp_l(cfg, k): e(l)
def spread(o): return (o & 0x1fff) | ((o >> 13) << 14)
def srd(e, base, size):
    n = int(base[2:base.index(':')])
    e(f"s_mov_b32 s{n+2}, {size}"); e(f"s_mov_b32 s{n+3}, 0x20000")

def code_prefetch(e, cfg):
    e("s_getpc_b64 s[88:89]")
    e("L_pf:")
    e("s_mov_b32 s90, L_last-L_pf"); e("s_mov_b32 s91, 0x20000")
    e(f"s_lshr_b32 {sT3}, s2, 3"); e(f"s_mul_i32 {sT3}, {sT3}, 1280")
    e("v_cmp_gt_u32 vcc, 10, v0")
    e(f"v_lshl_add_u32 v2, v0, 7, {sT3}")
    e(f"v_cndmask_b32 v{vPF}, 2.0, v2, vcc")
    if not cfg.pfs: e(f"buffer_load_dword v{vPF2}, v{vPF}, s[88:91], 0 offen")

def prologue(e, cfg):
    stamp(e, cfg, 0)
    e("s_cmp_ge_u32 s2, 256")
    e("s_cbranch_scc1 L_end")
    e(f"s_mov_b32 {sMODE}, 0")
    e("L_top:")
    if cfg.pfpos == -1: code_prefetch(e, cfg)
    e(f"s_bfe_u32 {sBR}, s2, 0x10002")
    e(f"s_mul_i32 {sT0}, {sBR}, 40")
    e(f"s_add_u32 s62, s0, {sT0}")
    e("s_addc_u32 s63, s1, 0")
    e("s_load_dwordx8 s[48:55], s[62:63], 0")
    e("s_load_dwordx2 s[56:57], s[62:63], 32")
    e("s_load_dwordx4 s[64:67], s[0:1], 80")
    e("s_load_dwordx2 s[24:25], s[0:1], 96")
    if cfg.pfpos == 0: code_prefetch(e, cfg)
    T = vT
    e(f"v_readfirstlane_b32 {sW}, v0")
    e(f"v_and_b32 v{vI15}, 15, v0")
    e(f"v_bfe_u32 v{vG}, v0, 4, 2")
    e(f"s_lshr_b32 {sB}, s2, 5")
    e(f"s_bfe_u32 {sT1}, s2, 0x20003")
    e(f"s_lshl_b32 {sW4K}, {sW}, 6")
    e(f"s_lshr_b32 {sW}, {sW}, 6")
    if cfg.pfs:
        e(f"s_andn2_b32 {sT3}, s2, 7"); e(f"s_lshl1_add_u32 {sT3}, {sW}, {sT3}"); e(f"s_mul_i32 {sT3}, {sT3}, 144"); e(f"s_min_u32 {sT3}, {sT3}, s90")
        e(f"s_add_u32 s98, s88, {sT3}"); e("s_addc_u32 s99, s89, 0")
    e(f"v_xor_b32 v3, v{vG}, v{vI15}")
    e(f"v_lshlrev_b32 v{vKD}, 4, v3")
    e(f"v_lshl_add_u32 v{T}, v{vG}, 10, v{vKD}")
    e(f"v_lshlrev_b32 v3, 1, v{vG}")
    e(f"v_xor_b32 v3, v3, v{vI15}")
    e(f"v_lshlrev_b32 v{vVD}, 4, v3")
    e(f"v_lshl_add_u32 v{T+8}, v{vG}, 13, v{vVD}")
    for n in range(1, 4):
        e(f"v_xor_b32 v3, {64*n}, v{T}"); e(f"v_add_u32 v{T+n}, {3072*n}, v3")
    e(f"v_xor_b32 v3, 0x80, v{T+8}")
    e(f"v_add_u32 v{T+9}, {65536-1024}, v3"); e(f"v_add_u32 v{T+10}, {2*(65536-1024)}, v{T+8}"); e(f"v_add_u32 v{T+11}, {3*(65536-1024)}, v3")
    e(f"s_add_u32 {sROT}, {sT1}, {sB}"); e(f"s_lshl_b32 {sROT}, {sROT}, {1 if cfg.rotg == 4 else 2}")
    e(f"s_and_b32 {sMEM}, s2, 3"); e(f"s_lshl2_add_u32 {sMEM}, {sMEM}, {sT1}")
    e(f"s_and_b32 {sKH}, {sW}, 1"); e(f"s_lshr_b32 {sHH}, {sW}, 1")
    e(f"s_lshl2_add_u32 {sT0}, {sB}, {sW}"); e(f"s_lshl_b32 {sT0}, {sT0}, 14")
    e(f"s_lshl3_add_u32 {sT2}, {sHH}, {sKH}"); e(f"s_lshl_b32 {sT2}, {sT2}, 6"); e(f"s_add_u32 {sT2}, {sT2}, {sMEM}"); e(f"s_lshl_b32 {sT1}, {sT2}, 9")
    if cfg.t0: e(f"s_lshl_b32 {sT4}, {sROT}, 19"); e(f"s_and_b32 {sT4}, {sT4}, 0x3fffff")
    srd(e, SX, 16384)
    e(f"s_sub_u32 s18, 4194304, {sT1}"); e("s_mov_b32 s19, 0x20000")
    e("s_waitcnt lgkmcnt(0)")
    stamp(e, cfg, 8)
    if cfg.t0:
        e("@noauto")
        e(f"s_load_dword {sMK}, s[54:55], {sT4}")
        if cfg.t0 > 1:
            e(f"s_xor_b32 {sT4}, {sT4}, 0x200000"); e(f"s_load_dword {sMK}, s[54:55], {sT4}")
        e("@auto")
    if cfg.pfs:
        e("@noauto")
        for k in range(0, 320, 128 if cfg.pfs == 1 else 64): e(f"s_load_dword {sDONE}, s[98:99], {k}")
        e("@auto")
    e(f"s_add_u32 s4, s48, {sT0}"); e("s_addc_u32 s5, s49, 0")
    e(f"s_add_u32 s16, s54, {sT1}"); e("s_addc_u32 s17, s55, 0")

def flags_setup(e, cfg):
    e(f"s_and_b32 {sT1}, {sGRP}, 1"); e(f"s_lshl1_add_u32 {sT0}, {sGRP}, {sT1}"); e(f"s_lshl_b32 {sT0}, {sT0}, 13")
    e(f"s_add_u32 {sT0}, {sT0}, {FLAGB}")
    e(f"s_lshl_b32 {sT1}, {sMEM}, 9"); e(f"s_add_u32 {sT1}, {sT1}, {sT0}")
    e(f"s_lshl_b32 {sT3}, {sW}, 7"); e(f"s_add_u32 {sMO}, {sT3}, {sT1}")
    e(f"s_cmp_eq_u32 {sMODE}, 0")
    e("s_cbranch_scc0 L_old")
    e(f"s_xor_b32 {sSEL}, {sMO}, 0x2000")
    e(f"s_load_dword {sOLD}, s[24:25], {sMO} glc")
    e(f"s_load_dword {sOLD1}, s[24:25], {sSEL} glc")
    e(f"s_cmp_eq_u32 {sW}, 0")
    e("s_cbranch_scc0 L_old")
    e(f"s_lshl_b32 {sPA}, {sGRP}, 21"); e(f"s_mul_i32 {sPB}, {sMEM}, 0x8100"); e(f"s_add_u32 {sPA}, {sPA}, {sPB}"); e(f"s_xor_b32 {sPB}, {sPA}, 0x2000")
    e("@noauto")
    e(f"s_load_dword {sMK}, s[24:25], {sPA} glc")
    e("@auto")
    e(f"s_load_dword {sGC}, s[24:25], {sPB} glc")
    e("L_old:")
    e(f"s_lshl_b32 {sT3}, {sW}, 11"); e(f"s_add_u32 {sT3}, {sT3}, {sT0}")
    e("v_cmp_gt_u32 vcc, 4, v27")
    e(f"v_lshl_add_u32 v3, v27, 9, {sT3}")
    e(f"v_cndmask_b32 v{vFD}, 2.0, v3, vcc")
    e(f"s_lshl_b32 {sT3}, {sW}, 2"); e(f"s_xor_b32 {sT3}, {sT3}, {sMEM}")
    e(f"v_xor_b32 v3, {sT3}, v27")
    e(f"v_lshlrev_b32 v{vFB}, v3, 1")

def prologue2(e, cfg):
    e(f"s_lshr_b32 {sHKV}, {sMEM}, 1")
    e(f"s_lshl3_add_u32 {sGRP}, {sBR}, {sB}")
    e("v_and_b32 v27, 63, v0")
    e(f"v_lshlrev_b32 v{vL16}, 4, v27")
    e("s_add_u32 s24, s24, 0x1fffff"); e("s_addc_u32 s25, s25, 0"); e("s_and_b32 s24, s24, 0xffe00000")
    srd(e, SWS, 268435456 - 0x200000)
    e(f"s_lshl_b32 {sT0}, {sB}, 3")
    e(f"s_add_u32 {sT0}, {sT0}, {sHKV}")
    e(f"s_lshl_b32 {sT0}, {sT0}, 19")
    e(f"s_add_u32 s8, s50, {sT0}"); e("s_addc_u32 s9, s51, 0"); srd(e, SK, 524288)
    e(f"s_add_u32 s12, s52, {sT0}"); e("s_addc_u32 s13, s53, 0"); srd(e, SV, 524288)
    e(f"s_lshl_b32 {sT0}, {sMEM}, 18")
    e(f"s_add_u32 s20, s56, {sT0}"); e("s_addc_u32 s21, s57, 0"); srd(e, SWO, 262144)
    e("s_mov_b32 s28, s64"); e("s_mov_b32 s29, s65"); srd(e, SOUT, 1048576)
    e("s_mov_b32 s32, s66"); e("s_mov_b32 s33, s67"); srd(e, SDBG, 256)
    if cfg.tv:
        e(f"s_mov_b32 {sT1}, {FLAGB + 0x100000}")
        for k, ch in enumerate(cfg.tv):
            sr, so = {'K': (SK, 0), 'V': (SV, 0), 'O': (SWO, 0), 'F': (SWS, sT1)}[ch]
            e(f"buffer_load_dword v{vP+k}, off, {sr}, {so}")
    if cfg.ts:
        e(f"s_cmp_eq_u32 {sW}, 1"); e("s_cbranch_scc0 L_t1")
        e(f"s_load_dword {sMK}, s[8:9], 0"); e(f"s_load_dword {sDONE}, s[12:13], 0")
        e("L_t1:")
        e(f"s_cmp_eq_u32 {sW}, 2"); e("s_cbranch_scc0 L_t2")
        e(f"s_lshl_b32 {sT0}, {sROT}, 19"); e(f"s_andn2_b32 {sT0}, 0x200000, {sT0}")
        e("@noauto")
        e(f"s_load_dword {sMK}, s[16:17], {sT0}"); e(f"s_load_dword {sDONE}, s[20:21], 0")
        e("L_t2:")
        e(f"s_lshr_b32 {sT0}, s2, 3"); e(f"s_lshl2_add_u32 {sT0}, {sT0}, {sW}"); e(f"s_cmp_eq_u32 {sT0}, 3"); e("s_cbranch_scc0 L_t3")
        e(f"s_load_dword {sMK}, s[28:29], 0 glc"); e(f"s_load_dword {sDONE}, s[32:33], 0 glc")
        e("@auto")
        e("L_t3:")
    ch, cb, cr = cfg.krot
    e(f"s_mul_i32 {sKO}, {sHKV}, {ch}"); e(f"s_mul_i32 {sT0}, {sB}, {cb}"); e(f"s_add_u32 {sKO}, {sKO}, {sT0}")
    e(f"s_mul_i32 {sT0}, {sBR}, {cr}"); e(f"s_add_u32 {sKO}, {sKO}, {sT0}")
    tb = [k for k in range(12, 19) if k not in cfg.wb]
    e(f"s_mov_b32 {sMASK}, {hex(sum(1 << k for k in tb))}")
    runs = {}
    for i, k in enumerate(tb): runs.setdefault(k - i, []).append(k)
    for idx, (sh, ks) in enumerate(runs.items()):
        d = sVO if idx == 0 else sT0
        e(f"s_lshl_b32 {d}, {sKO}, {sh}"); e(f"s_and_b32 {d}, {d}, {hex(sum(1 << k for k in ks))}")
        if idx: e(f"s_or_b32 {sVO}, {sVO}, {sT0}")
    e(f"s_mov_b32 {sKO}, {sVO}")
    for c in range(4):
        e(f"s_add_u32 {sT0}, {sB}, {c}"); e(f"s_and_b32 {sT0}, {sT0}, 3"); e(f"s_lshl_b32 s{sWC+c}, {sT0}, 8")
    e(f"s_lshl_b32 {sT0}, {sKH}, {cfg.wb[0]}"); e(f"s_lshl_b32 {sT1}, {sHH}, {cfg.wb[1]}"); e(f"s_or_b32 {sT0}, {sT0}, {sT1}")
    e(f"s_lshl_b32 {sT1}, {sW}, 14")
    e(f"v_lshl_add_u32 v3, v{vG}, 10, {sT1}"); e(f"v_add_u32 v{vWD}, v3, v{vVD}")
    e(f"v_xor_b32 v3, 0x80, v{vWD}")
    e(f"v_add_u32 v{vWD+1}, 3072, v3"); e(f"v_add_u32 v{vWD+2}, 6144, v{vWD}"); e(f"v_add_u32 v{vWD+3}, 9216, v3")
    e(f"v_lshl_add_u32 v3, v{vG}, 8, {sT0}")
    e(f"v_add_u32 v{vKD}, v{vKD}, v3"); e(f"v_add_u32 v{vVD}, v{vVD}, v3")
    for n in range(1, 4): e(f"v_xor_b32 v{vKD+n}, {64*n}, v{vKD}")
    e(f"v_xor_b32 v{vVD+1}, 0x80, v{vVD}")
    e(f"v_xor_b32 v3, v{vG}, v{vI15}")
    e(f"v_lshlrev_b32 v25, 8, v{vI15}")
    for s in range(4):
        e(f"v_xor_b32 v26, {4*s}, v3")
        e(f"v_lshl_add_u32 v{vKA+s}, v26, 4, v25")
    e(f"v_lshrrev_b32 v3, 2, v{vI15}")
    e(f"v_lshl_add_u32 v3, v{vG}, 2, v3")
    e("v_and_b32 v25, 7, v3")
    e("v_lshlrev_b32 v3, 8, v3")
    e(f"v_and_b32 v26, 3, v{vI15}")
    e("v_lshl_add_u32 v3, v26, 3, v3")
    e(f"v_add_u32 v3, {VBASE}, v3")
    for dt in range(8):
        e(f"v_xor_b32 v26, {dt}, v25")
        e(f"v_lshl_add_u32 v{vVA+dt}, v26, 5, v3")

def x_dma(cfg, j):
    pre = [f"s_add_u32 {sT2}, {sROT}, {2*j}", f"s_and_b32 {sT2}, {sT2}, 7", f"s_lshl_b32 {sT2}, {sT2}, 7", f"s_add_u32 m0, {sW4K}, {j*16384}"]
    return [(pre if n == 0 else [], f"buffer_load_dwordx4 v{vT+n}, {SX}, {sT2} offen offset:{1024*n} {cfg.polx} lds") for n in range(4)]

def wq_dma(cfg, i, heads=(0, 1)):
    T = vT; G = []
    for hh in heads:
        for n in range(4):
            pre = []
            if n == 0:
                if hh == 0: pre += [f"s_add_u32 {sT4}, {sROT}, {i}", f"s_and_b32 {sT4}, {sT4}, 7", f"s_lshl_b32 {sT4}, {sT4}, 19"]
                else: pre += [f"s_add_u32 {sT4}, {sT4}, 256"]
                pre += [f"s_add_u32 m0, {sW4K}, {VBASE + hh*49152 + (i%3)*16384}"]
            G.append((pre, f"buffer_load_dwordx4 v{T+8+n}, {SWQ}, {sT4} offen offset:{1024*n} {cfg.polw} lds ; tag=W{i} loc=u{4 + hh*3 + i%3}"))
    return G

def kunit(t): return t & 3
def vunit(t): return 4 + ((t + 2) & 3)

def kv_dma(cfg, which, t):
    joint = cfg.off == 6 and t >= 3
    so = sKO if which == 'K' or joint else sVO
    u = kunit(t) if which == 'K' else vunit(t)
    pol = cfg.polkv if which == 'K' or cfg.polv is None else cfg.polv
    if t < cfg.ntf: pol = ''
    G = []
    for n in range(4):
        pre = []
        if n == 0:
            if t > 0 and not (joint and which == 'V'):
                pre.append(f"s_sub_u32 {so}, {so}, {sMASK}")
                pre.append(f"s_and_b32 {so}, {so}, {sMASK}")
            pre.append(f"s_add_u32 m0, {sW4K}, {u*16384}" if u else f"s_and_b32 m0, {sW4K}, 0xffff")
        v = vKD + n if which == 'K' else vVD + (n & 1)
        G.append((pre, f"buffer_load_dwordx4 v{v}, {SK if which == 'K' else SV}, {so} offen offset:{1024*n} {pol} lds"))
    return G

def wo_dma(cfg, i, u):
    G = []
    for n in range(4):
        pre = []
        if n == 0:
            pre.append(f"s_xor_b32 {sT4}, s{sWC + (i >> 2)}, {(i & 3) * 65536}")
            pre.append(f"s_add_u32 m0, {sW4K}, {u*16384}")
        G.append((pre, f"buffer_load_dwordx4 v{vWD+n}, {SWO}, {sT4} offen offset:{1024*n} {cfg.polw} lds ; tag=O{i} loc=u{u}" + (",g0,g1" if u == cfg.gA else ",ck" if u == cfg.gS else "")))
    return G

def flat(G):
    L = []
    for pre, d in G:
        L += pre; L.append(d)
    return L

def place_dma(st, G, g0, g1, alone=0):
    empty = [g for g in range(g0 + len(G[0][0]), g1 + 1) if st.used[g] == 0]
    if alone == 1 and len(empty) >= len(G):
        ch = [empty[(i * len(empty)) // len(G)] for i in range(len(G))]
        for (_, d), g in zip(G, ch):
            st.force(g, d); st.used[g] = 2
    elif alone == 2:
        a0 = g0 + len(G[0][0]); ch = []; m = len(G)
        for i, (_, d) in enumerate(G):
            lo = max(a0 + (i * (g1 - a0 + 1)) // m, ch[-1] + 1 if ch else 0); hi = max(lo, a0 + ((i + 1) * (g1 - a0 + 1)) // m - 1)
            gg = min(range(lo, hi + 1), key=lambda t: (st.used[t] + 2 * any(y.startswith('v_exp') for y in st.fill[t]) + 9 * (t in st.block), t))
            st.force(gg, d); ch.append(gg)
    else:
        ch = st.spread([d for _, d in G], g0 + len(G[0][0]), g1)
    prev = g0 - 1
    isexp = lambda t: any(y.startswith('v_exp') for y in st.fill[t])
    nos = lambda t: not any(y.startswith('s_') or y.startswith('@') for y in st.fill[t])
    for (pre, d), g in zip(G, ch):
        lo = max(prev + 1, g0)
        k = len(pre)
        assert not pre or g >= lo, (g, lo, pre)
        hi = max(lo, g - 1); pos = []
        for idx in range(k - 1, -1, -1):
            cand = [t for t in range(hi, lo + idx - 1, -1) if nos(t) and (align.size(pre[idx].split('\n')[0]) == 8 or isexp(t))]
            t = cand[0] if cand else min(max(lo, g - k + idx), hi)
            pos.append(t); hi = max(lo, t - 1)
        for s, t in zip(pre, reversed(pos)): st.force(t, s)
        prev = g
    return ch

def race(e, cfg, filler):
    e(f"s_or_b32 {sT0}, {sMODE}, {sW}")
    e("s_cbranch_scc1 L_norace" if not cfg.norace else "s_branch L_norace")
    e("s_waitcnt lgkmcnt(0)")
    e(f"s_not_b32 {sDONE}, {sGC}")
    e("@noauto")
    e(f"s_load_dword {sMK}, s[24:25], {sPA} glc")
    e(f"s_load_dword {sDONE}, s[24:25], {sPB} glc")
    e("@auto")
    e("s_waitcnt lgkmcnt(1)")
    e("L_norace:")
    for l in filler: e(l)
    e(f"s_cmp_lg_u32 {sDONE}, {sGC}")
    if cfg.home < 2: e(f"s_cmp_eq_u32 {sBR}, {cfg.home}")
    e(f"s_cselect_b32 {sT0}, 1, 0x10001")
    e(f"v_mov_b32 v{vONE1}, {sT0}")
    if cfg.tann < 0:
        nit = (cfg.NT - 4 - cfg.l0) // 4
        e(f"s_lshr_b32 {sT0}, s2, 3"); e(f"s_mul_i32 {sT0}, {sT0}, {nit}"); e(f"s_lshr_b32 {sT0}, {sT0}, 5"); e(f"s_sub_u32 {sPA}, {sT0}, {nit}")

def apply_sel():
    return [f"s_xor_b32 {sMO}, {sMO}, {sSEL}", f"s_xor_b32 {sPST}, {sPST}, {sSEL}", f"v_xor_b32 v{vFD}, {sSEL}, v{vFD}", f"v_xor_b32 v{vFL}, {sSEL}, v{vFL}"]

def warm(e, cfg):
    e("s_mov_b64 exec, 0")
    for k in range(1, cfg.wch):
        e(f"s_cmp_eq_u32 {sW}, {k}")
        e(f"s_cbranch_scc1 L_w{k}")
    e("s_branch L_w0")
    e(".p2align 12")
    e("L_wdone:")
    e("s_mov_b64 exec, -1")

def qproj(e0, cfg):
    T = vT
    def xw(S):
        G = []
        for it in S.split(','):
            if it: G += x_dma(cfg, int(it[1])) if it[0] == 'x' else wq_dma(cfg, int(it[1]), {'w': (0, 1), 'a': (0,), 'b': (1,)}[it[0]])
        return G
    SU = []; e = SU.append
    if cfg.pfpos == 1: code_prefetch(e, cfg)
    prologue2(e, cfg)
    flags_setup(e, cfg)
    vX, vW = vXA, T + 16
    e(f"s_mul_i32 {sT1}, {sHH}, 49152"); e(f"s_lshl_b32 {sT0}, {sKH}, 7")
    for k in range(4):
        e(f"v_xor_b32 v{vW+k}, {sT0}, v{vVA+k}")
        e(f"v_add_u32 v{vW+k}, {sT1}, v{vW+k}")
    e(f"s_lshl_b32 {sT0}, {sKH}, 13")
    for s in range(4):
        e(f"v_mov_b32 v{vX+s}, v{vKA+s}")
        e(f"v_add_u32 v{vKA+s}, {sT0}, v{vKA+s}")
    e(f"s_lshl_b32 {sT3}, {sW}, 6")
    for k in range(2):
        e(f"v_xor_b32 v{vWA[2+k]}, {sT3}, v{vVA+k}")
        e(f"v_subrev_u32 v{vWA[k]}, {VBASE}, v{vWA[2+k]}")
        e(f"v_add_u32 v{vWA[4+k]}, {VBASE}, v{vWA[2+k]}")
    for dt in range(8): e(f"v_add_u32 v{vVA+dt}, {sT0}, v{vVA+dt}")
    e(f"s_lshl_b32 {sT1}, {sHH}, 14"); e(f"s_add_u32 {sT1}, {sT1}, {8*16384}")
    e(f"s_add_u32 {sT3}, {sT1}, {sT0}")
    e(f"v_add_u32 v{vQR}, {sT3}, v{vL16}")
    e(f"v_xor_b32 v{vQR+1}, 0x2000, v{vQR}")
    e(f"s_lshl_b32 {sT0}, {sKH}, 11"); e(f"s_add_u32 {sT1}, {sT1}, {sT0}")
    e(f"v_lshrrev_b32 v3, 1, v{vG}"); e(f"v_lshl_add_u32 v3, v3, 8, {sT1}")
    e(f"v_lshl_add_u32 v3, v{vI15}, 4, v3")
    e(f"v_and_b32 v25, 1, v{vG}"); e(f"v_lshl_add_u32 v{vQW}, v25, 3, v3")
    e("@split")
    gA, gB, gS = cfg.gA, cfg.gB, cfg.gS
    e(f"v_add_u32 v{vGA}, {gA*16384}, v{vL16}"); e(f"v_add_u32 v{vGA+1}, {gB*16384}, v{vL16}")
    e(f"s_mul_i32 {sT0}, {sHH}, {(gB - gA)*16384}"); e(f"s_lshl_b32 {sT1}, {sKH}, 11"); e(f"s_add_u32 {sT0}, {sT0}, {sT1}")
    e(f"v_add_u32 v{vGW}, {sT0}, v{vGA}"); e(f"v_xor_b32 v{vGW+1}, 0x800, v{vGW}")
    e(f"s_lshl_b32 {sT0}, {sW}, 10"); e(f"s_add_u32 {sT0}, {sT0}, {gS*16384}")
    e(f"v_add_u32 v{vGW+2}, {sT0}, v{vL16}"); e(f"v_xor_b32 v{vGW+3}, 0x400, v{vGW+2}")
    e(f"v_add_u32 v{vCK+1}, {gS*16384}, v{vL16}"); e(f"v_lshl_add_u32 v{vCK}, {sW}, 2, v{vCK+1}")
    e(f"s_lshl_b32 {sPST}, {sGRP}, 21")
    e(f"s_lshl4_add_u32 {sT0}, {sW}, {sMEM}"); e(f"s_lshl_b32 {sT0}, {sT0}, 15"); e(f"s_add_u32 {sPLD}, {sPST}, {sT0}")
    e(f"s_lshl_b32 {sT1}, {sW}, 17"); e(f"s_add_u32 {sPST}, {sPST}, {sT1}")
    e(f"s_lshl_b32 {sT1}, {sW}, 2"); e(f"s_xor_b32 {sT1}, {sT1}, {sMEM}")
    e(f"s_and_b32 {sT0}, {sT1}, 8"); e(f"s_add_u32 {sT1}, {sT1}, {sT0}"); e(f"s_lshl_b32 {sT1}, {sT1}, 10")
    e(f"s_add_u32 {sPST}, {sPST}, {sT1}")
    e(f"s_lshl_b32 {sT3}, {sB}, 17")
    e(f"s_and_b32 {sT0}, {sMEM}, 3"); e(f"s_lshl_b32 {sT0}, {sT0}, 15"); e(f"s_add_u32 {sT3}, {sT3}, {sT0}")
    e(f"s_lshl_b32 {sT0}, {sBR}, 10"); e(f"s_add_u32 {sT3}, {sT3}, {sT0}")
    e(f"s_add_u32 {sT0}, {sW}, {sB}"); e(f"s_and_b32 {sT0}, {sT0}, 3"); e(f"s_lshl_b32 {sT0}, {sT0}, 8"); e(f"s_add_u32 {sT3}, {sT3}, {sT0}")
    e(f"s_lshr_b32 {sT0}, {sMEM}, 2"); e(f"s_lshl_b32 {sT0}, {sT0}, 6"); e(f"s_add_u32 {sT3}, {sT3}, {sT0}")
    e(f"v_lshl_add_u32 v3, v{vI15}, 11, {sT3}")
    e(f"v_lshl_add_u32 v{vOUT}, v{vG}, 4, v3")
    e(f"s_lshl_b32 {sT1}, {sGRP}, 4")
    e("v_cmp_eq_u32 vcc, 0, v0")
    e(f"v_mov_b32 v27, {sT1}")
    e(f"v_cndmask_b32 v{vOT}, 2.0, v{vOUT}, vcc")
    e("v_cndmask_b32 v26, 2.0, v27, vcc")
    e(f"v_add_u32 v{vFL}, {sPLD}, v{vL16}")
    e(f"s_lshl_b32 {sGO}, {sGRP}, 4")
    e("@s3")
    e("v_mov_b32 v3, 0x3f803f80")
    if cfg.smf:
        e(f"v_xor_b32 v25, v{vI15}, v{vG}"); e("v_and_b32 v25, 2, v25")
        e("v_cmp_eq_u32 vcc, 0, v25")
        e("v_cndmask_b32 v3, 0, v3, vcc")
        e(f"v_and_b32 v25, 1, v{vI15}"); e(f"v_mul_u32_u24 v25, 0xaaaa, v25"); e(f"v_add_u32 v{vSI}, 0x4444, v25")
    e(f"v_mov_b32 v{vSA0}, v3")
    e(f"s_mov_b32 {sSC}, {hex(QSCALE)}"); e(f"s_mov_b32 s69, {hex(QSCALE)}")
    e(f"v_and_b32 v3, 3, v{vI15}"); e(f"v_xor_b32 v25, v3, v{vG}")
    e("v_lshlrev_b32 v3, 8, v3"); e(f"v_lshl_add_u32 v{vPR}, v25, 4, v3")
    e = e0
    k = SU.index("@split"); S1, S2 = SU[:k], SU[k + 1:]
    SEL = []; selector(SEL.append, vSEL, 2)
    k = S2.index("@s3"); S2, S3 = S2[:k], (SEL + S2[k + 1:])
    S3, S4 = S3[:cfg.rf], S3[cfg.rf:]
    for si, step in enumerate(cfg.qs.split('|')):
        if step == 'S1':
            for l in S1: e(l)
        elif step == 'S2':
            for l in S2 if not cfg.s2s else []: e(l)
        elif step == 'R':
            race(e, cfg, S3)
            for l in S4: e(l)
        elif step == 'W':
            if cfg.wstep: warm(e, cfg)
        else:
            for l in flat(xw(step)): e(l)
    st = Stream()
    D = cfg.qD
    for _ in range(D): st.add(None)
    def xfrag(i, ks, q4): return (96, 192, 64)[i % 3] + (ks * 4 + q4) * 4
    def wfrag(i, ks, k): return (160, 224, 128)[i % 3] + (ks * 4 + k) * 4
    def acc(q4, k): return vO + (q4 * 4 + k) * 4
    done = {}
    order = [(i, ks, k, q4) for i in range(6) for ks in range(2) for k in range(4) for q4 in range(4)]
    nA = cfg.qA
    order += [(6, ks, k, q4) for ks in range(2) for k in range(4) for q4 in range(nA)]
    n7 = len(order)
    order += [(i, ks, k, q4) for q4 in range(4) for k in range(4) for i in ((7,) if q4 < nA else (6, 7)) for ks in range(2)]
    for i, ks, k, q4 in order:
        a = vr(acc(q4, k))
        c = "0" if (i == 0 and ks == 0) else a
        done[q4, k] = st.add(f"{MF} {a}, {ar(wfrag(i, ks, k))}, {ar(xfrag(i, ks, q4))}, {c} ; use=w{i}_{ks}_{k},x{i}_{ks}_{q4}")
    xs = dict(it.split(':') for it in cfg.qx.split(',') if it)
    latex = []
    for i in range(8):
        g0 = 32 * i if i < 7 else n7 - cfg.q7
        g1 = g0 + 32 if i != 6 else n7 - cfg.q7
        need = f"W{i}" + (f",X{i>>1}" if i % 2 == 0 else "")
        st.force(g0, f"@vmwait {need}" + (" lgkm0" if i or cfg.l00 else ""))
        st.force(g0, "s_barrier")
        if cfg.diag == 3:
            for l in lstamp(i + 2): st.force(g0, l)
        xr = lambda ks, q4: f"ds_read_b128 {ar(xfrag(i, ks, q4))}, v{vX + 2*(i&1) + ks} offset:{(i>>1)*16384 + q4*4096}"
        wr = lambda ks, k: [f"ds_read_b64_tr_b16 {ar(wfrag(i, ks, k) + 2*u, 2)}, v{vW+k} offset:{(i%3)*16384 + ks*8192 + u*4096}" for u in range(2)]
        rd = []
        if i < 7:
            for ks in range(2):
                rd += wr(ks, 0) + [xr(ks, q4) for q4 in range(4 if i < 6 else nA)] + wr(ks, 1) + wr(ks, 2) + wr(ks, 3)
            if i == 6: latex = [xr(ks, q4) for q4 in range(nA, 4) for ks in range(2)]
        else:
            rd = [xr(0, 0), xr(1, 0)] + sum((wr(ks, k) for k in range(4) for ks in range(2)), []) + [xr(ks, q4) for q4 in range(1, 4) for ks in range(2)] + latex
        G = wq_dma(cfg, i + 2) if i + 2 < 8 and f'w{i+2}' not in cfg.qs else []
        G += xw(xs.get(str(i), ''))
        qk = cfg.qkv.split('|')
        for it in qk[i - 8 + len(qk)].split(',') if i >= 8 - len(qk) else []:
            if it: G += kv_dma(cfg, it[0], int(it[1:]))
        if G: place_dma(st, G, g0 + 1, g1 - 4 if i != 6 else g1 - 1)
        ch = st.spread(rd, g0, g1 - 1 - cfg.qG if i < 7 else g0 + cfg.q7r)
    if cfg.s2s:
        g = 32 * cfg.s2s + 2
        for l in S2: g = st.put(g, l) + 1
        assert g < 32 * 7
    gb = ch[-1] + 6
    st.force(gb, "@vmwait _ lgkm0"); st.force(gb + 1, "s_barrier")
    def fin(q4, k, pk):
        a = acc(q4, k)
        if pk: L = [f"v_pk_mul_f32 {vr(a+j, 2)}, {vr(a+j, 2)}, {sSC2}" for j in (0, 2)]
        else: L = [f"v_mul_f32 v{a+j}, {sSC}, v{a+j}" for j in range(4)]
        L += [f"v_cvt_pk_bf16_f32 v{a+j}, v{a+2*j}, v{a+2*j+1}" for j in range(2)]
        return L, f"ds_write_b64 v{vQW}, {vr(a, 2)} offset:{(q4*4 + (k>>1))*1024 + (k&1)*512}"
    tiles = [(q4, k) for q4 in range(4) for k in range(4)]
    G = []
    for it in cfg.fkv.split(','):
        if it: G += kv_dma(cfg, it[0], int(it[1:]))
    if cfg.fin and G:
        place_dma(st, G, max(gb + 2, 32 * 7 + 28 - 32 + cfg.qA * 8), st.n() - 1); G = []
    g = 0; gw = gb + 1; nt = 0
    while True:
        q4, k = tiles[nt]
        g = max(g, done[q4, k] + 4)
        if max(g, gw) + 4 >= st.n(): break
        V, wr = fin(q4, k, False)
        for x in V: g = st.put(g, x)
        gw = st.put(max(g, gw) + 1, wr)
        nt += 1
    if '-v' in sys.argv: print("Q tiles finalised in stream:", nt)
    for l in st.lines(): e(l)
    if cfg.diag == 3:
        for l in lstamp(10): e(l)
    cfg.pre_issued = set(it for part in (cfg.qkv + '|' + cfg.fkv).split('|') for it in part.split(',') if it)
    rest = tiles[nt:]
    pend = None
    for idx, (q4, k) in enumerate(rest):
        V, wr = fin(q4, k, True)
        for x in V: e(x)
        if pend: e(pend)
        pend = wr
        while G and len(G) > (len(rest) - 1 - idx) * cfg.fden // 12:
            for x in flat(G[:1]): e(x)
            G = G[1:]
    e(pend)
    if cfg.diag == 3:
        for l in lstamp(11): e(l)

def Qreg(qt, s): return ar(aQ + (qt * 4 + s) * 4)
def k_reads(t):
    return [f"ds_read_b128 {ar(aKF + (t & 1)*32 + (kt*4+s)*4)}, v{vKA+s} offset:{kunit(t)*16384 + kt*4096}" for kt in range(2) for s in range(4)]
def v_reads(t):
    return [f"ds_read_b64_tr_b16 {ar(aVF + (t & 1)*32 + dt*4 + 2*u, 2)}, v{vVA+dt} offset:{vunit(t)*16384 - VBASE + u*4096}" for dt in range(8) for u in range(2)]

def afrag(j, kk, k): return (192, 224, 128, 160)[j & 3] + (kk * 2 + k) * 4
def a_reads(j, wo_unit):
    rd = []
    for kk in range(4):
        i = 2 * j + (kk >> 1); u = wo_unit[i]
        for k in range(2):
            for h in range(2):
                rd.append(f"ds_read_b64_tr_b16 {ar(afrag(j, kk, k) + 2*h, 2)}, v{vWA[2*(u>>2) + k]} offset:{(u&3)*16384 + (kk&1)*8192 + h*4096}")
    return rd

def selector(e, base, tmp):
    e(f"v_lshrrev_b32 v{tmp}, 2, v{vI15}")
    e(f"v_cmp_eq_u32 vcc, v{tmp}, v{vG}")
    e(f"v_and_b32 v{tmp}, 1, v{vI15}")
    e(f"v_lshlrev_b32 v{tmp}, 4, v{tmp}")
    e(f"v_mov_b32 v{tmp+1}, 0x3f80")
    e(f"v_lshlrev_b32 v{tmp}, v{tmp}, v{tmp+1}")
    e(f"v_cndmask_b32 v{tmp}, 0, v{tmp}, vcc")
    e(f"v_and_b32 v{tmp+1}, 2, v{vI15}")
    e(f"v_cmp_eq_u32 vcc, 0, v{tmp+1}")
    for i in (0, 1, 4, 5): e(f"v_mov_b32 v{base+i}, 0")
    e(f"v_cndmask_b32 v{base+2}, 0, v{tmp}, vcc")
    e(f"v_sub_u32 v{base+3}, v{tmp}, v{base+2}")

def retry_block(name, dst, voff, srdn, off, val):
    return [f"{name}:", f"s_mov_b32 {sCNT}, 0", f"{name}_l:",
            f"buffer_load_dword v{dst}, v{voff}, {srdn}, 0 offen offset:{off} sc1",
            f"s_add_u32 {sCNT}, {sCNT}, 1", "s_waitcnt vmcnt(0)",
            f"v_cmp_gt_u32 vcc, {val}, v{dst}",
            f"s_cmp_ge_u32 {sCNT}, {SPIN}", f"s_cbranch_scc1 {name}_b",
            f"s_cbranch_vccnz {name}_l", f"s_branch {name}_b"]

def check_in_stream(st, g, tag, name, dst, val):
    st.force(g, f"@vmwait {tag}")
    st.force(g, f"v_cmp_gt_u32 vcc, {val}, v{dst}")
    st.force(g + 1, f"s_cbranch_vccnz {name}")
    st.force(g + 1, f"@label {name}_b")
    return g + 1

def norm_head(qt):
    A = vL if qt == 0 else vL1
    return [f"v_add_f32 v{A}, v{A}, v{A+1}", f"v_add_f32 v{A+2}, v{A+2}, v{A+3}", f"v_add_f32 v{A}, v{A}, v{vL+8+qt}",
            f"v_add_f32 v{1+qt}, v{A}, v{A+2}", f"v_rcp_f32 v{26+qt}, v{1+qt}"]
def norm_frag(cfg, qt, s, pk):
    a = vO + (qt * 8 + 2 * s) * 4
    if pk: L = [f"v_pk_mul_f32 {vr(a+j, 2)}, {vr(a+j, 2)}, v[26:27] op_sel:[0,{qt}] op_sel_hi:[1,{qt}]" for j in range(0, 8, 2)]
    else: L = [f"v_mul_f32 v{a+j}, v{26+qt}, v{a+j}" for j in range(8)]
    L += [f"v_cvt_pk_bf16_f32 v{a+j}, v{a+2*j}, v{a+2*j+1}" for j in range(4)]
    return L, f"ds_write_b128 v{vGW}, {vr(a)} offset:{(s*4+qt)*1024}"

def attention(e, cfg, ool):
    NT = cfg.NT
    ta, tb = NT - 2, NT - 1
    mu = [(t, qt) for t in range(NT - 2) for qt in (2, 3, 0, 1)]
    mu += [(ta, 2), (ta, 3), (tb, 2), (tb, 3), (ta, 0), (tb, 0), (ta, 1), (tb, 1)]
    n = len(mu)
    gA, gB, gS = cfg.gA, cfg.gB, cfg.gS
    e(f"s_cmp_eq_u32 {sMODE}, 0")
    e("@vmwait K0,V0 lgkm0")
    e("s_barrier")
    e("s_cbranch_scc0 L_slow")
    if cfg.diag == 3:
        for l in lstamp(12): e(l)
        for l in lstamp(13): e(l)
        e("v_mov_b32 v126, v254"); e("v_mov_b32 v127, v255")
    if cfg.diag in (2, 4, 6): e('s_mov_b32 s49, 0')
    pr = [f"ds_read_b128 {ar(aPR + s*4)}, v{vPR} offset:{kunit(0)*16384 + 64*s}" for s in range(4)]
    qr = lambda qt: [f"ds_read_b128 {Qreg(qt, s)}, v{vQR + (qt >> 1)} offset:{(qt&1)*4096 + s*1024}" for s in range(4)]
    for x, y in zip(pr, qr(2)): e(x); e(y)
    for l in qr(3): e(l)
    for i in range(4): e(f"v_mov_b32 v{vSA+i}, v{vSA0}")
    for i in range(8): e(f"v_mov_b32 v{vL+i}, 0")
    for i in (2, 3): e(f"v_mov_b32 v{vL1+i}, 0")
    if cfg.ob:
        for i in range(4): e(f"v_mov_b32 v{vL+8+i}, {hex(f2u(cfg.ob / 100))}")
    def probe(qt):
        d = vr(vCI + 4 * qt)
        return [f"{MF} {d}, {ar(aPR + s*4)}, {Qreg(qt, s)}, {'0' if s == 0 else d} ; use=pr{s},q{qt}_{s}" for s in range(4)]
    def pfin(qt):
        a = vCI + 4 * qt
        if cfg.so:
            return [f"v_max3_f32 v{a}, v{a}, v{a+1}, v{a+2}", f"v_max_f32 v{a}, v{a}, v{a+3}"] + [f"v_sub_f32 v{a+j}, {hex(f2u(-float(cfg.so)))}, v{a}" for j in (1, 2, 3, 0)]
        return [f"v_min3_f32 v{a}, -v{a}, -v{a+1}, -v{a+2}"] + [f"v_min_f32_e64 v{a+j}, v{a}, -v{a+3}" for j in (1, 2)] + \
               [f"v_mov_b32 v{a}, v{a+1}", f"v_mov_b32 v{a+3}, v{a+1}"]
    def addO(qt):
        L = []
        for s in range(4):
            for T in range(2):
                o = vr(vO + (qt * 8 + 2 * s + T) * 4)
                L.append(f"{MF} {o}, {vr(vSEL + 2 - 2*T)}, {ar(aQ + 32 + (qt*4+s)*4)}, {o} ; use=_,po{qt}_{s}")
        return L
    st = Stream()
    st.wsh = cfg.wsh
    qk0 = {}; pv0 = {}; pvend = {}; smf = {}
    for x in probe(2) + probe(3): st.add(x)
    st.add(None)
    for i in range(-1, n):
        if i + 1 < n:
            t, qt = mu[i + 1]
            qk0[i + 1] = st.n()
            for kt in range(2):
                d = vr(vS + ((i + 1) & 1) * 8 + kt * 4)
                for s in range(4):
                    st.add(f"{MF} {d}, {ar(aKF + (t & 1)*32 + (kt*4+s)*4)}, {Qreg(qt, s)}, {vr(vCI + 4*qt) if s == 0 else d} ; use=k{t}_{kt}_{s},q{qt}_{s}")
        else:
            for x in addO(1): st.add(x)
        if i >= 0:
            t, qt = mu[i]
            p = vr(vP + (i & 1) * 4)
            if i & 1:
                smf[i] = st.add(f"v_smfmac_f32_16x16x64_bf16 {vr(vL1 if i == n - 1 else vL + 4*(qt >> 1))}, {vr(vSA)}, {vr(vP, 8)}, v{vSI}")
            pv0[i] = st.n()
            for dt in range(8):
                o = vr(vO + (qt * 8 + dt) * 4)
                pvend[i] = st.add(f"{MF} {o}, {ar(aVF + (t & 1)*32 + dt*4)}, {p}, {(vr(vL+8) if cfg.ob else '0') if t == 0 else o} ; use=v{t}_{dt},p{i}")
            if i == n - 3:
                gadd = st.n()
                for x in addO(0): st.add(x)
        else:
            gp0 = st.n()
            for x in probe(0) + probe(1): st.add(x)
            st.add(None)
    for i in range(n):
        g = qk0[i] + cfg.expoff
        sb = vS + (i & 1) * 8; pb = vP + (i & 1) * 4
        for j in range(8):
            st.force(g + 2 * j, f"v_exp_f32 v{sb+j}, v{sb+j}")
            if j & 1: st.force(g + 2 * j + 1, f"v_cvt_pk_bf16_f32 v{pb + j//2}, v{sb+j-1}, v{sb+j} ; def=p{i}")
    G0 = lambda t: qk0[4 * t]
    for k, x in enumerate(k_reads(0) + qr(0) + qr(1)): st.force(k // 2, x)
    for x in pfin(2): st.force(8, x)
    for qt, g in ((3, G0(0) + 3), (0, gp0 + 8), (1, gp0 + 12)):
        for x in pfin(qt): g = st.put(g, x)
    st.spread(v_reads(0), G0(0), G0(0) + 14)
    isexp = lambda t: any(y.startswith('v_exp') for y in st.fill[t])
    def seq_put(L, g, cap):
        for x in L:
            while g < st.n() - 1 and (isexp(g) or st.used[g] >= cap): g += 1
            st.force(g, x)
        return g
    ool += ["L_rG:", f"s_mov_b32 {sCNT}, 0", "L_rG_l:", f"s_load_dword {sGC}, s[32:33], {sGO} glc", f"s_add_u32 {sCNT}, {sCNT}, 1", "s_waitcnt lgkmcnt(0)",
            f"s_cmp_ge_u32 {sCNT}, {SPIN}", "s_cbranch_scc1 L_rG_b", f"s_and_b32 {sT2}, {sGC}, 0xfff0", "s_cbranch_scc0 L_rG_l", "s_branch L_rG_b"]
    wo_unit = {}; free = [8, 9]
    def wo_next(k):
        G = []
        while k and free and len(wo_unit) < 16:
            i = len(wo_unit); wo_unit[i] = free.pop(0); G += wo_dma(cfg, i, wo_unit[i]); k -= 1
        return G
    if cfg.roll:
        for t in range(cfg.l0, NT - 3, 4):
            gm = G0(t) - cfg.mk
            while st.used[gm]: gm += 1
            assert gm < G0(t) - 1
            if t == cfg.l0: st.force(gm - 1, f"s_mov_b32 {sLOOP}, {-((NT - 4 - cfg.l0) // 4)}")
            else:
                st.force(gm - 1, f"s_add_u32 {sLOOP}, {sLOOP}, 1")
                st.force(gm, "s_cbranch_scc0 L_att")
            st.force(gm, "@iter L_att")
            st.used[gm] = 2
    seq_put([f"v_mov_b32 v{vL1}, v{vL+2}", f"v_mov_b32 v{vL1+1}, v{vL+3}", f"v_mov_b32 v{vL+2}, 0", f"v_mov_b32 v{vL+3}, 0"], G0(tb) - 10, 2)
    g = G0(tb) + 2; gw = g
    for h in range(2):
        g = max(g, pvend[n - 6 + h] - 2)
        for s in range(4):
            a = vO + ((2 + h) * 8 + 2 * s) * 4
            g = seq_put([f"v_cvt_pk_bf16_f32 v{a+j}, v{a+2*j}, v{a+2*j+1}" for j in range(4)], max(g, pv0[n - 6 + h] + 2 * s + 6), cfg.xc)
            gw = max(g + 1, gw + cfg.xw)
            while isexp(gw): gw += 1
            st.force(gw, f"ds_write_b128 v{vGW+1}, {vr(a)} offset:{(s*4+h)*1024} ; tag=OX{h} loc=" + (f"u{gA},u{gB},g0" if h == 0 else "g1"))
        if h == 0:
            g = seq_put([f"v_add_f32 v{vL+4}, v{vL+4}, v{vL+5}", f"v_add_f32 v{vL+5}, v{vL+6}, v{vL+7}"], max(g, smf[n - 5] + 5), cfg.xc)
            gw = max(g + 1, gw + cfg.xw)
            while isexp(gw): gw += 1
            st.force(gw, f"ds_write_b64 v{vGW+3}, {vr(vL + 4, 2)}")
    gx = gw + cfg.xb
    st.force(gx - 1, "@vmwait _ lgkm0"); st.force(gx, "s_barrier")
    gy = G0(ta) + cfg.gy
    while isexp(gy): gy += 1
    if cfg.wt: st.fill[gx - 1] = [x.replace("@vmwait _", "@vmwait O2,O3") for x in st.fill[gx - 1]]; gy = gx + 12
    else: st.force(gy - 1, "@vmwait O2,O3"); st.force(gy, "s_barrier")
    rd = [f"ds_read_b128 {ar(aQ + 32 + (h*4+s)*4)}, v{vGW} offset:{(s*4+h)*1024}" for h in range(2) for s in range(4)]
    rd.insert(4, f"ds_read_b64 {vr(vL + 8, 2)}, v{vGW+2} ; rd=LX")
    if '-v' in sys.argv: print("exchange barrier at", gx - G0(ta), "first add at", gadd - G0(ta), "end", st.n() - G0(ta))
    assert gx + 4 < gadd
    st.spread(rd[:5], gx, gx + 4); st.spread(rd[5:], gx + 5, gx + 12)
    g = seq_put(norm_head(0), gadd + 1, 3); gw = g
    for s in range(4):
        V, wr = norm_frag(cfg, 0, s, False)
        g = seq_put(V, max(g + (s == 0), gadd + 2 * s + 6), cfg.nc)
        gw = min(max(g + 1, gw + cfg.xw), st.n() - 1)
        while isexp(gw): gw += 1
        assert gw > g
        st.force(gw, wr)
    if '-v' in sys.argv: print("first gather write done at", gw - G0(ta))
    if cfg.diag == 7:
        for k, gg in ((1, G0(4)), (2, G0(NT - 4)), (3, G0(NT - 3)), (4, G0(NT - 2)), (5, G0(NT - 1)), (6, gx)):
            st.force(gg - (60 if k == 1 else 0), "\n".join(lstamp(k, 126)))
    seq = [(wh, t) for t in range(NT) for wh in 'KV' if f"{wh}{t}" not in cfg.pre_issued]
    GB = {}
    for t in range(NT):
        o = max(cfg.b0, cfg.bk) if t == 0 else cfg.bk if t < NT - 3 else (2 * cfg.bk // 3, cfg.bk // 4, 0)[t - NT + 3]
        gb = G0(t) + o
        while st.used[gb] or not isexp(gb - 1): gb += 1
        GB[t] = gb
        st.force(gb - 1, f"@vmwait K{t+1},V{t+1}{',O0,O1' if t == tb else ''} rd:K{t},V{t},QX")
        st.force(gb, "s_barrier")
        if cfg.diag == 2 or (cfg.diag in (4, 6) and t % 2 == 0):
            st.force(gb, "\n".join(["s_memrealtime s[98:99]", "s_memtime s[96:97]", "s_add_u32 s49, s49, 1", "s_mov_b32 s100, m0", "s_mov_b32 m0, s49", "s_waitcnt lgkmcnt(0)", "v_writelane_b32 v126, s98, m0", "v_writelane_b32 v127, s96, m0", "s_mov_b32 m0, s100"]))
    st.force(GB[NT - 4] + 1, f"s_load_dword {sGC}, s[32:33], {sGO}")
    st.force(GB[NT - 3] + 1, f"s_and_b32 {sT2}, {sGC}, 0xfff0\ns_cbranch_scc0 L_rG\n@label L_rG_b")
    g = GB[NT - 3] + 2
    for x in [f"s_and_b32 {sT2}, {sGC}, 0x3fff", f"s_mul_i32 {sT2}, {sT2}, 3", f"s_lshr_b32 {sGC}, {sGC}, 14",
              f"s_cmp_ge_u32 {sGC}, {sT2}\ns_cselect_b32 {sSEL}, 0x2000, 0\ns_cselect_b32 {sOLD}, {sOLD1}, {sOLD}"] + apply_sel() + \
             [f"s_xor_b32 {sT2}, {sPST}, 0x2000", f"buffer_load_dword v{vPF2}, off, {SWS}, {sT2}"]:
        g = st.put(g, x) + 1
    def reads(t):
        first_qk, first_pv = (qk0[4 * t + 4], pv0[4 * t + 4]) if t < ta else (qk0[n - 6], pv0[n - 6])
        pl = pv0[4 * t - 1] if t > 0 else 0
        lo = [0] * 8 + [pl + d // 2 for d in range(16)]
        end = GB[t + 1] - cfg.rdend
        hi = [min(end, first_qk - 7 + k // 2) for k in range(8)] + [min(end, first_pv - 8 + d // 2) for d in range(16)]
        st.spreadc(k_reads(t + 1) + v_reads(t + 1), GB[t], min(end - 1, first_pv - 4), lo, hi)
    if cfg.bk:
        for t in range(tb): reads(t)
    carry = []
    for t in range(NT):
        g0 = G0(t); g1 = G0(t + 1) if t + 1 < NT else g0 + 66
        G = []; k = 0
        if t + 3 >= NT: free += [u for u in (kunit(t - 1), vunit(t - 1)) if u not in (gA, gB, gS)]
        while seq and 2 * seq[0][1] + (seq[0][0] == 'V') <= 2 * t + cfg.off + 1:
            wh, tt = seq.pop(0); G += kv_dma(cfg, wh, tt); k += 1
        if t < cfg.cu:
            G = carry + G
            m = 8 + -(-(len(G) - 8) // (cfg.cu - t))
            G, carry = G[:m], G[m:]
        if not seq and not k: G += wo_next(int(cfg.wl[t - NT]))
        if cfg.pf == 2 and t % 4 == cfg.pft and t >= cfg.l0:
            G = G + [([], f"buffer_load_dword v{vPF2}, v{vPF}, s[88:91], 0 offen sc1")]
        if t == cfg.tout:
            G = [([], f"buffer_store_dword v{vONE1}, v{vOT}, {SOUT}, 0 offen")] + G
        if cfg.tann < 0 and cfg.l0 <= t < NT - 4 and (t - cfg.l0) % 4 == -cfg.tann - 1:
            G = [([f"s_cmp_eq_u32 {sLOOP}, {sPA}\ns_cselect_b32 s34, 0x100, 0"], f"buffer_atomic_add v{vONE1}, v26, {SDBG}, 0 offen sc1")] + G
        if t == cfg.tann:
            G = [([], f"buffer_atomic_add v{vONE1}, v26, {SDBG}, 0 offen sc1")] + G
        if G: gl = place_dma(st, G, g0 + 2, g1 - cfg.mk - 3 if t < ta else g0 + cfg.wa if t == ta else g0 + 17 * int(cfg.wl[-1]), 1 if t < tb and len(G) < 11 and not cfg.bk else 2)[-1]
        if t < tb and not cfg.bk: reads(t)
    st.spreadc(a_reads(0, wo_unit), GB[tb] + 1, gx - 6, None, [gx - 5] * 16)
    free += [wo_unit[0], wo_unit[1]]
    place_dma(st, wo_next(cfg.wx), max(gx, gl) + 1, st.n() - 2, 2)
    st.spreadc(a_reads(1, wo_unit), gy, st.n() - 6, None, [st.n() - 4] * 16)
    if cfg.soft: st.late = set(range(G0(cfg.soft0), G0(cfg.soft) - cfg.mk - 1))
    for l in st.lines(): e(l)
    if '-v' in sys.argv:
        over = sum(max(0, u - 2) for u, m in zip(st.used, st.mf) if m)
        print("attention gaps", st.n(), "overfull slots", over, "in last two periods", sum(max(0, u - 2) for u in st.used[G0(ta):]), "wo units", wo_unit)
    cfg.wo_pre = dict(wo_unit)
    return wo_unit, free, wo_next

def oproj(e, cfg, wo_unit, free, wo_next):
    gA, gB, gS = cfg.gA, cfg.gB, cfg.gS
    ls = lambda k: lstamp(k, 126) if cfg.diag == 7 else []
    def b_reads(q4):
        return [f"ds_read_b128 {ar((ks8*4+q4)*4)}, v{vGA + (ks8>>2)} offset:{((ks8&3)*4+q4)*1024}" for ks8 in range(8)]
    e("L_norm:")
    for l in ls(7): e(l)
    for l in norm_head(1): e(l)
    e("@vmwait O4,O5 lgkm0"); e("s_barrier")
    stamp(e, cfg, 3)
    for l in b_reads(0): e(l)
    e("v_add_f32 v25, v1, v2")
    wrs = [f"ds_write_b32 v{vCK}, v25 offset:4096"]
    free += [wo_unit[2], wo_unit[3]]
    Gb = wo_next(2)
    for s in range(cfg.nb):
        V, wr = norm_frag(cfg, 1, s, True)
        if s < cfg.nbd:
            for l in flat(Gb[:1]): e(l)
            Gb = Gb[1:]
        for l in V: e(l)
        if s < cfg.nb - 1: e(wr)
        else: wrs.append(wr)
    for l in ls(8): e(l)
    st = Stream()
    st.wsh = cfg.wsh
    def acc(c, q4, k): return vO + c * 32 + q4 * 8 + k * 4
    S0 = lambda j: 32 * j
    qend = {}
    for c in range(4):
        qs = (0, 2, 1, 3) if c == 0 else range(4)
        if cfg.om[c] == 'Q': order = [(ks8, k, q4) for q4 in qs for k in range(2) for ks8 in range(8)]
        else: order = [(4 * hf + kk, k, q4) for hf in range(2) for q4 in qs for k in range(2) for kk in range(4)]
        for ks8, k, q4 in order:
            j, kk = 2 * c + (ks8 >> 2), ks8 & 3
            a = vr(acc(c, q4, k))
            qend[c, q4] = st.add(f"{MF} {a}, {ar(afrag(j, kk, k))}, {ar((ks8*4+q4)*4)}, {'0' if ks8 == 0 else a} ; use=a{j}_{kk}_{k},b{ks8}_{q4}")
    if cfg.diag == 7:
        for j in (2, 4, 6): st.force(S0(j) + 2, "\n".join(lstamp(8 + j // 2, 126)))
        st.force(st.n() - 1, "\n".join(lstamp(12, 126)))
    for k, l in enumerate(b_reads(2)): st.force(k, l)
    gw = -1
    for l in wrs: gw = st.force(gw + 2, l)
    g = 0
    for s in range(cfg.nb, 4):
        V, wr = norm_frag(cfg, 1, s, False)
        for x in V: g = st.put(g, x)
        gw = st.force(max(g + 1, gw + 3), wr)
    g1 = max(cfg.g1, gw + 5)
    if '-v' in sys.argv: print("second gather barrier at", g1)
    place_dma(st, Gb, 0, g1 - 2, 2)
    st.spread(a_reads(2, wo_unit), 4, g1 - 6)
    st.force(g1 - 1, "@vmwait O6,O7,O8 lgkm0"); st.force(g1, "s_barrier")
    rd = b_reads(1); rd.insert(4, f"ds_read_b128 {vr(vS)}, v{vCK+1} offset:4096 ; rd=CK")
    for k, l in enumerate(rd): st.force(g1 + k // 2, l)
    g = g1 + 10
    for l in [f"v_add_f32 v{vS}, v{vS}, v{vS+1}", f"v_add_f32 v{vS+2}, v{vS+2}, v{vS+3}", f"v_add_f32 v{vS}, v{vS}, v{vS+2}", f"v_cmp_nge_f32 vcc, {hex(f2u(2.0**(cfg.T - cfg.so)))}, v{vS}"]:
        g = st.put(g, l) + 1
    st.force(g, "s_cbranch_vccnz L_fail\n@label L_fail_b")
    gck = g
    free += [wo_unit[4], wo_unit[5]]
    g2 = cfg.g2
    gl = place_dma(st, wo_next(2), g1 + 1, g1 + cfg.w2o, 2)[-1]
    st.spread(b_reads(3), g1 + 5, g1 + 14)
    rdst = {x: (x - 2 if cfg.om[x >> 1] == 'Q' and x & 1 else x - 1) for x in range(3, 8)}
    if rdst[3] == 1: st.spread(a_reads(3, wo_unit), g1 + 15, 57)
    st.force(g2 - 1, "@vmwait _ rd:G0,G1,CK"); st.force(g2, "s_barrier")
    free += [gS, gA, gB]
    place_dma(st, wo_next(3), max(g2, gl) + 1, max(g2, gl) + cfg.w3, 2)
    assert len(wo_unit) == 16
    seen = set(range(9))
    for j in range(2, 7):
        todo = [x for x in range(3, 8) if rdst[x] == j]
        need = [i for x in todo for i in (2 * x, 2 * x + 1) if i not in seen]
        if need:
            st.force(S0(j) + cfg.bo - 1, "@vmwait " + ",".join(f"O{i}" for i in need)); st.force(S0(j) + cfg.bo, "s_barrier")
            seen.update(range(max(need) + 1))
        if todo: st.spread(sum((a_reads(x, wo_unit) for x in todo), []), S0(j) + cfg.bo, S0(j) + 25)
    left = []; g = 0
    for c in range(4):
        for q4 in ((0, 2, 1, 3) if c == 0 else range(4)):
            a = acc(c, q4, 0)
            g = max(g, qend[c, q4] + 5, cfg.pst)
            if g + 6 >= st.n(): left.append(q4); continue
            st.put(g, f"s_xor_b32 {sT3}, {sPST}, {spread(c*262144 + q4*17408)}")
            for k in range(4): g = st.put(g, f"v_cvt_pk_bf16_f32 v{a+k}, v{a+2*k}, v{a+2*k+1}")
            g = st.put(g + 2, f"buffer_store_dwordx4 {vr(a)}, v{vL16}, {SWS}, {sT3} offen sc1 ; tag=PS{c}") + 1 + (cfg.psp if c < 3 else 0)
    g = S0(5) + 4
    for l in [f"s_movk_i32 s{sWC+k}, {hex(spread(4096*k))}" for k in range(1, 4)] + [f"s_mov_b32 {sCNT}, 0", f"s_mov_b32 {sDONE}, 0"]: g = st.put(g, l) + 1
    if cfg.rsm:
        SL = [f"v_lshrrev_b32 v1, 3, v{vI15}", f"v_and_b32 v2, 1, v{vG}", "v_cmp_eq_u32 vcc, v1, v2",
              f"v_and_b32 v1, 1, v{vI15}", "v_lshlrev_b32 v1, 4, v1", "v_mov_b32 v2, 0x3f80", "v_lshlrev_b32 v1, v1, v2", "v_cndmask_b32 v1, 0, v1, vcc",
              f"v_and_b32 v2, 4, v{vI15}", "v_cmp_eq_u32 vcc, 0, v2", f"v_bfe_u32 v2, v{vI15}, 1, 1", "v_mul_u32_u24 v2, 0xaaaa, v2", "v_cndmask_b32 v8, 0, v1, vcc",
              "v_sub_u32 v10, v1, v8", "v_add_u32 v20, 0x4444, v2", "v_mov_b32 v13, v8", "v_mov_b32 v15, v10"] + [f"v_mov_b32 v{r}, 0" for r in (9, 11, 12, 14, 4, 5, 6, 7, 16, 17, 18, 19)]
        g = S0(3) + 2
        for l in SL: g = st.put(g, l) + 1
    flag = lambda c: [f"@vmwait PS{c}", f"buffer_atomic_xor v{vFB}, v{vFD}, {SWS}, 0 offen offset:{128*c} sc1"]
    if cfg.n1: st.force(S0(7) + cfg.pp, f"@vmwait _ lgkm0\ns_load_dword {sMK}, s[24:25], {sMO} glc")
    for c in range(cfg.f0):
        gg = S0(7) + cfg.f0p + c * cfg.f0d
        assert gg > gck
        st.force(gg, flag(c)[0]); st.put(gg, flag(c)[1])
    for l in st.lines(): e(l)
    if '-v' in sys.argv: print("oproj overfull", sum(max(0, u - 2) for u in st.used))
    stamp(e, cfg, 4)
    for q4 in left:
        a = acc(3, q4, 0)
        e(f"s_xor_b32 {sT3}, {sPST}, {spread(3*262144 + q4*17408)}")
        for k in range(4): e(f"v_cvt_pk_bf16_f32 v{a+k}, v{a+2*k}, v{a+2*k+1}")
        e(f"buffer_store_dwordx4 {vr(a)}, v{vL16}, {SWS}, {sT3} offen sc1 ; tag=PS3")
    def lowest(k):
        for _ in range(k):
            e(f"s_sub_u32 {sT2}, {sT1}, 1"); e(f"s_and_b32 {sT1}, {sT1}, {sT2}")
        e(f"s_xor_b32 {sT0}, {sT0}, {sT1}")
    def sweep(tag):
        e(f"s_or_b32 {sDONE}, {sDONE}, {sT0}")
        e("@noauto")
        for q in range(4):
            e(f"s_and_b32 {sT1}, {sT0}, {hex(15 << (4*q))}")
            e(f"s_cbranch_scc0 L_{tag}q{q}")
            for j in range(4 * q, 4 * q + 4):
                e(f"s_bitcmp1_b32 {sT0}, {j}")
                e(f"s_cbranch_scc0 L_{tag}j{j}")
                if cfg.cap and tag == 'p': e(f"s_waitcnt vmcnt({cfg.cap - 1})")
                e(f"buffer_load_dwordx4 {vr(vO+4*j)}, v{vFL}, {SWS}, {'s%d' % (sWC + q) if q else 0} offen offset:{1024*(j&3)} sc1")
                e(f"L_{tag}j{j}:")
            e(f"L_{tag}q{q}:")
        e("@auto")
    if cfg.n1:
        for c in range(cfg.f0, 3 if cfg.n1f else 2):
            for l in flag(c): e(l)
        e(f"s_xor_b32 {sT0}, {sMK}, {sOLD}"); e(f"s_mov_b32 {sT1}, {sT0}")
        e(f"s_load_dword {sMK}, s[24:25], {sMO} glc")
        lowest(cfg.n1)
        sweep("e")
        e("s_waitcnt vmcnt(0)")
        for c in range(3 if cfg.n1f else 2, 4): e(flag(c)[1])
    else:
        e(f"s_load_dword {sMK}, s[24:25], {sMO} glc")
        for c in range(cfg.f0, 4):
            for l in flag(c): e(l)
    if cfg.fb: e("s_barrier")
    stamp(e, cfg, 5)
    e("s_waitcnt lgkmcnt(0)")
    e("s_branch L_pF_e")
    e("L_pF:")
    e(f"s_load_dword {sMK}, s[24:25], {sMO} glc")
    e(f"s_add_u32 {sCNT}, {sCNT}, 1")
    e(f"s_cmp_ge_u32 {sCNT}, {SPIN}")
    e("s_waitcnt lgkmcnt(0)")
    e("s_cbranch_scc1 L_pF_x")
    e("L_pF_e:")
    e(f"s_xor_b32 {sMK}, {sMK}, {sOLD}")
    e(f"s_andn2_b32 {sT0}, {sMK}, {sDONE}")
    e("s_cbranch_scc0 L_pF")
    if cfg.thr:
        e(f"s_cmp_eq_u32 {sMK}, 0xffff")
        e(f"s_cselect_b32 {sT1}, 0, {sT0}")
        lowest(cfg.thr)
    sweep("p")
    e(f"s_cmp_eq_u32 {sDONE}, 0xffff")
    e("s_cbranch_scc0 L_pF")
    e("L_pF_x:")
    stamp(e, cfg, 6)
    e("s_waitcnt vmcnt(0)")
    for j in range(0, 16, 2) if cfg.rsm else []:
        e(f"v_smfmac_f32_16x16x64_bf16 v[16:19], v[8:11], {vr(vO+4*j, 8)}, v20")
        e(f"v_smfmac_f32_16x16x64_bf16 v[4:7], v[12:15], {vr(vO+4*j, 8)}, v20")
    for j in range(16) if not cfg.rsm else []:
        e(f"{MF} v[16:19], {vr(vSEL+2)}, {vr(vO+4*j)}, {'0' if j == 0 else 'v[16:19]'}")
        e(f"{MF} v[4:7], {vr(vSEL)}, {vr(vO+4*j)}, {'0' if j == 0 else 'v[4:7]'}")
    e("v_cvt_pk_bf16_f32 v16, v16, v17"); e("v_cvt_pk_bf16_f32 v17, v18, v19")
    e("v_cvt_pk_bf16_f32 v18, v4, v5"); e("v_cvt_pk_bf16_f32 v19, v6, v7")
    for op in ("v_permlane32_swap_b32", "v_permlane16_swap_b32"):
        e(f"{op} v16, v18"); e(f"{op} v17, v19")
    e(f"buffer_store_dwordx4 v[16:19], v{vOUT}, {SOUT}, 0 offen {cfg.polout}")

def slow_path(cfg):
    L = []; e = L.append
    vM, vLs, vA, vX = vCI, vCI + 2, vCI + 4, vCI + 6
    e("L_slow:")
    for l in apply_sel(): e(l)
    e("s_waitcnt vmcnt(0)")
    for qt in range(2):
        for s in range(4): e(f"ds_read_b128 {Qreg(qt, s)}, v{vQR} offset:{qt*4096 + s*1024}")
    for i in range(64): e(f"v_mov_b32 v{vO+i}, 0")
    for qt in range(2):
        e(f"v_mov_b32 v{vM+qt}, 0xff7fffff"); e(f"v_mov_b32 v{vLs+qt}, 0")
    e(f"s_mov_b32 {sKO}, 0"); e(f"s_mov_b32 {sLOOP}, 0")
    e("L_sl:")
    e("s_waitcnt lgkmcnt(0)")
    e(f"s_bitcmp1_b32 {sLOOP}, 0")
    e("s_cbranch_scc1 L_sl2")
    e("s_barrier")
    for srdn, base, regs in ((SK, 0, [vKD + n for n in range(4)]), (SV, VBASE, [vVD + (n & 1) for n in range(4)])):
        e(f"s_add_u32 m0, {sW4K}, {base}")
        for n in range(4): e(f"buffer_load_dwordx4 v{regs[n]}, {srdn}, {sKO} offen offset:{1024*n} lds")
    e(f"s_sub_u32 {sKO}, {sKO}, {sMASK}"); e(f"s_and_b32 {sKO}, {sKO}, {sMASK}")
    e("s_waitcnt vmcnt(0)")
    e("s_barrier")
    e("L_sl2:")
    for kt in range(2):
        for s in range(4): e(f"ds_read_b128 {ar(aKF + (kt*4+s)*4)}, v{vKA+s} offset:{kt*4096}")
    for dt in range(8):
        for u in range(2): e(f"ds_read_b64_tr_b16 {ar(aVF + dt*4 + 2*u, 2)}, v{vVA+dt} offset:{u*4096}")
    for r in range(vKA, vKA + 12): e(f"v_xor_b32 v{r}, 0x2000, v{r}")
    for qt in range(2):
        for kt in range(2):
            d = vr(vS + kt * 4)
            for s in range(4): e(f"{MF} {d}, {ar(aKF + (kt*4+s)*4)}, {Qreg(qt, s)}, {'0' if s == 0 else d}")
        e(f"v_max3_f32 v{vX}, v{vS}, v{vS+1}, v{vM+qt}")
        for j in (2, 4, 6): e(f"v_max3_f32 v{vX}, v{vS+j}, v{vS+j+1}, v{vX}")
        for op in ("v_permlane32_swap_b32", "v_permlane16_swap_b32"):
            e(f"v_mov_b32 v{vX+1}, v{vX}"); e(f"{op} v{vX}, v{vX+1}"); e(f"v_max_f32 v{vX}, v{vX}, v{vX+1}")
        e(f"v_sub_f32 v{vA}, v{vM+qt}, v{vX}"); e(f"v_exp_f32 v{vA}, v{vA}"); e(f"v_mov_b32 v{vM+qt}, v{vX}")
        e(f"v_mul_f32 v{vLs+qt}, v{vA}, v{vLs+qt}")
        for j in range(8): e(f"v_sub_f32 v{vS+j}, v{vS+j}, v{vX}")
        for j in range(8): e(f"v_exp_f32 v{vS+j}, v{vS+j}")
        for j in range(8): e(f"v_add_f32 v{vLs+qt}, v{vLs+qt}, v{vS+j}")
        for j in range(4): e(f"v_cvt_pk_bf16_f32 v{vP+j}, v{vS+2*j}, v{vS+2*j+1}")
        for i in range(32): e(f"v_mul_f32 v{vO+32*qt+i}, v{vA}, v{vO+32*qt+i}")
        for dt in range(8):
            o = vr(vO + (qt * 8 + dt) * 4)
            e(f"{MF} {o}, {ar(aVF + dt*4)}, {vr(vP)}, {o}")
    e(f"s_add_u32 {sLOOP}, {sLOOP}, 1")
    e(f"s_cmp_lt_u32 {sLOOP}, 64")
    e("s_nop 7")
    e("s_cbranch_scc1 L_sl")
    for qt in range(2):
        for op in ("v_permlane32_swap_b32", "v_permlane16_swap_b32"):
            e(f"v_mov_b32 v{vX+1}, v{vLs+qt}"); e(f"{op} v{vLs+qt}, v{vX+1}"); e(f"v_add_f32 v{vLs+qt}, v{vLs+qt}, v{vX+1}")
    for r in list(range(vL, vL + 10)) + list(range(vL1, vL1 + 4)): e(f"v_mov_b32 v{r}, 0")
    e(f"v_mov_b32 v{vL}, v{vLs}"); e(f"v_mov_b32 v{vL1}, v{vLs+1}")
    for l in norm_head(0): e(l)
    for s in range(4):
        V, wr = norm_frag(cfg, 0, s, True)
        for l in V + [wr.split(' ; ')[0]]: e(l)
    W = cfg.wo_pre
    strip = lambda X: [x.split(' ; ')[0] for x in X]
    e("s_barrier")
    for i in range(4):
        for l in strip(flat(wo_dma(cfg, i, W[i]))): e(l)
    e("s_waitcnt vmcnt(0)"); e("s_barrier")
    for l in strip(a_reads(0, W) + a_reads(1, W)): e(l)
    e("s_waitcnt lgkmcnt(0)"); e("s_barrier")
    for i in range(4, len(W)):
        for l in strip(flat(wo_dma(cfg, i, W[i]))): e(l)
    e("s_waitcnt vmcnt(0)")
    e("s_nop 7")
    e("s_branch L_norm")
    L = finish(L)
    return ["L_fail:", f"s_cmp_eq_u32 {sMODE}, 0", "s_cbranch_scc0 L_fail_b", f"s_mov_b32 {sMODE}, 1",
            "s_waitcnt vmcnt(0) lgkmcnt(0)", "s_barrier", "s_nop 7", "s_branch L_top"] + L

def diag_dump(e, cfg):
    if not cfg.diag: return
    e("s_waitcnt vmcnt(0)")
    stamp(e, cfg, 7)
    if cfg.spin >= 0:
        if cfg.spin >= 200:
            e(f"s_lshr_b32 s3, {sGC}, 2"); e("s_sub_u32 s62, 16, s3"); e("s_cmp_ge_u32 s3, 9")
            e("s_cselect_b32 s3, s62, 0" if cfg.spin == 200 else "s_cselect_b32 s3, 0, s3")
        elif cfg.spin >= 100:
            e("s_getreg_b32 s3, hwreg(HW_REG_XCC_ID)"); e("s_sub_u32 s3, s3, s2"); e(f"s_add_u32 s3, s3, {cfg.spin - 100}"); e("s_and_b32 s3, s3, 7")
        else: e(f"s_sub_u32 s3, s{70+2*cfg.spin}, s{70+2*cfg.spin0}")
        e(f"s_mul_i32 s3, s3, {cfg.spinmul}")
        e("s_min_u32 s3, s3, 20000")
        e("L_spin:")
        e("s_memrealtime s[62:63]")
        e("s_waitcnt lgkmcnt(0)")
        e("s_sub_u32 s62, s62, s84")
        e("s_cmp_lt_u32 s62, s3")
        e("s_cbranch_scc1 L_spin")
        return
    e("s_lshl_b32 s3, s2, 2"); e(f"s_add_u32 s3, s3, {sW}"); e("s_lshl_b32 s3, s3, 7")
    e("s_add_u32 s3, s3, 0x8000000")
    e("v_mov_b32 v3, s3")
    if cfg.diag >= 2:
        e("s_lshl_b32 s62, s2, 2"); e(f"s_add_u32 s62, s62, {sW}"); e("s_lshl_b32 s62, s62, 9"); e("s_add_u32 s62, s62, 0x9000000")
        e(f"v_lshrrev_b32 v4, 2, v{vL16}")
        e(f"buffer_store_dword v126, v4, {SWS}, s62 offen")
        e(f"buffer_store_dword v127, v4, {SWS}, s62 offen offset:256")
    for k in range(11):
        e(f"v_mov_b32 v4, s{70+2*k}")
        e(f"buffer_store_dword v4, v3, {SWS}, 0 offen offset:{4*k}")
        e(f"v_mov_b32 v5, s{71+2*k}")
        e(f"buffer_store_dword v5, v3, {SWS}, 0 offen offset:{64+4*k}")

def roll(L):
    idx = [i for i, x in enumerate(L) if x.startswith('.iter')]
    if not idx: return L
    name = L[idx[0]].split()[1]
    strip = lambda X: [x.split(' ; ')[0].rstrip() for x in X]
    body = strip(L[idx[0] + 1: idx[1]])
    for a, b in zip(idx[1:-1], idx[2:]):
        other = strip(L[a + 1:b])
        assert len(other) == len(body)
        for k, (x, y) in enumerate(zip(body, other)):
            if x == y: continue
            assert x.startswith('s_waitcnt') and re.sub(r'\d+', '', x) == re.sub(r'\d+', '', y), (x, y)
            m = iter(min(int(p), int(q)) for p, q in zip(re.findall(r'\d+', x), re.findall(r'\d+', y)))
            body[k] = re.sub(r'\d+', lambda _: str(next(m)), x)
    return L[:idx[0]] + [".iter", name + ":"] + body + L[idx[-1] + 1:]

def finish(L, step=0, nchain=1):
    L = [(x.split()[1] + ":") if x.startswith('@label') else x.replace('@iter', '.iter').replace('v_nop_pad', 's_nop 3') for x in L]
    keep = {}; on = True; M = []
    for x in L:
        if x == '@noauto': on = False
        elif x == '@auto': on = True
        elif not on and (x.startswith('buffer_load') or x.startswith('s_load')):
            keep[f"s_setprio K{len(keep)}"] = x; M.append(f"s_setprio K{len(keep)-1}")
        else: M.append(x)
    L = M
    errs = frag_check(L)
    assert not errs, errs[:5]
    L = auto_wait(L)
    L, nn = hazard.fix(L)
    errs = hazard.check(L, verbose=('-v' in sys.argv))
    assert not errs, errs[:5]
    errs = lds_check(L)
    assert not errs, errs[:5]
    L = roll([keep.get(x, x) for x in L])
    L, bad = align.align8(L, promote=('noal' not in sys.argv), step=step, nchain=nchain)
    if '-v' in sys.argv: print("auto nops", nn, "misaligned", bad, "pads", align.align8.npads)
    return [x for x in L if x != '.iter']

HEAD = """
Fused GQA block x2 (q projection, attention over the cache, output projection), one launch, one workgroup per CU.
Kernarg (pointers): A x,k,v,wq,wo @0..32, B x,k,v,wq,wo @40..72, out @80, debug @88, ws @96.
Workgroup = (branch, batch, pair of query heads); wave = (head, half of every 64-key tile), 64 query rows.
1. Q^T = wq^T x^T (LDS-DMA staging, transposing LDS reads), scaled by log2(e)/sqrt(128), exchanged through LDS.
2. S^T = K Q^T - ref, P = exp2(S^T), O^T += V^T P^T, row sums by a sparse MFMA.  ref = (true maximum of the row over
   the first four keys) + 5.  Run-time guard: if any row sum of the workgroup is not finite or exceeds 2^25, the
   workgroup starts over (L_fail) and runs L_slow, an online softmax with the running true maximum.
3. Partial output projection over the two heads, bf16 partial sums handed to the 16 workgroups of the batch through
   ws (write-through stores, then a toggled mask bit per producer), each wave adds one 16x32 block in fixed order.
Generated by a scheduling script; every wait state and counter value is checked by that script.
"""
def gen(cfg):
    L = []; e = L.append
    ool = []
    prologue(e, cfg)
    qproj(e, cfg)
    if cfg.diag != 8: stamp(e, cfg, 1)
    wo = attention(e, cfg, ool)
    stamp(e, cfg, 2)
    oproj(e, cfg, *wo)
    diag_dump(e, cfg)
    e("L_end:")
    e("s_endpgm")
    L = finish(L, cfg.wstep, cfg.wch)
    L += ["L_last:"]
    size = sum(align.size(x) for x in L)
    L += ool + slow_path(cfg)
    if '-v' in sys.argv: print("code bytes", size)
    assert size < 32768 or cfg.diag or not cfg.roll
    fmt = lambda X: "\n".join((x if x.endswith(':') else "  " + x.split(' ; ')[0].rstrip()) for x in X) + "\n"
    s = header(HEAD.strip("\n").split("\n") + ["@launch grid=(256,1,1) block=(256,1,1) lds=163840"])
    s += kernel_begin(KNAME) + fmt(L)
    s += rodata([descriptor(KNAME)])
    return s

if __name__ == "__main__":
    out = sys.argv[1]
    kw = {}
    for a in sys.argv[2:]:
        if '=' in a:
            k, v = a.split('=', 1)
            kw[k] = int(v) if v.lstrip('-').isdigit() else v.replace('+', ' ')
    open(out, "w").write(gen(Cfg(**kw)))
```
